```python
import torch

def _softmax(x, axis=-1):
    return torch.softmax(x, dim=axis)
def _gelu(x):
    return torch.nn.functional.gelu(x, approximate="tanh")
def _silu(x):
    return torch.nn.functional.silu(x)
def _sigmoid(x):
    return torch.sigmoid(x)
def _layernorm(x, axis=-1, eps=1e-5):
    m = x.mean(dim=axis, keepdim=True)
    v = x.var(dim=axis, keepdim=True, unbiased=False)
    return (x - m) / torch.sqrt(v + eps)
def _scatter_add(tgt, idx, src, axis=0):
    return tgt.clone().index_add_(axis, idx, src)
def _segment_sum(src, seg, n):
    out = torch.zeros((n,) + src.shape[1:], dtype=src.dtype)
    return out.index_add_(0, seg, src)
def _pad(x, pw):
    flat = tuple(v for pair in reversed(pw) for v in pair)
    return torch.nn.functional.pad(x, flat)

kernel_name = 'recurrent_scan__sliding_block_cached__dense_activation_squared_relu__decode'

def setup_inputs():

    _w = (lambda a: (lambda t: t.to(torch.bfloat16) if t.is_floating_point() else t)(torch.as_tensor(a)))
    def _A_setup():
        B, Sq, D = 2, 1, 512
        Hq, Hkv, Sk, Dh = 32, 8, 32768, 128
        assert Hq % Hkv == 0, (Hq, Hkv)
        return {
            "x": _w((lambda *s: torch.randn(*s, dtype=torch.bfloat16) * 0.05)(B, Sq, D)),
            "k_cache": _w((lambda *s: torch.randn(*s, dtype=torch.bfloat16) * 1.6)(B, Hkv, Sk, Dh)),
            "v_cache": _w((lambda *s: torch.randn(*s, dtype=torch.bfloat16) * 0.2)(B, Hkv, Sk, Dh)),
            "wq": _w((lambda *s: torch.randn(*s, dtype=torch.bfloat16) * 1.6)(D, Hq * Dh) * (D ** -0.5)),
            "wo": _w((lambda *s: torch.randn(*s, dtype=torch.bfloat16) * 0.2)(Hq * Dh, D) * ((Hq * Dh) ** -0.5)),
        }
    _A_in = _A_setup()

    def _B_setup():
        B, S, D, F = 2, 1, 512, 1792
        return {
            "x": _w((lambda *s: torch.randn(*s, dtype=torch.bfloat16) * 0.05)(B, S, D)),
            "w1": _w((lambda *s: torch.randn(*s, dtype=torch.bfloat16) * 0.1)(D, F)),
            "b1": _w((lambda *s: torch.randn(*s, dtype=torch.bfloat16) * 0.8)(F)),
            "w2": _w((lambda *s: torch.randn(*s, dtype=torch.bfloat16) * 0.1)(F, D)),
            "b2": _w((lambda *s: torch.randn(*s, dtype=torch.bfloat16) * 12.8)(D)),
        }
    _B_in = _B_setup()

    return {
        "A_x": _A_in["x"],
        "A_k_cache": _A_in["k_cache"],
        "A_v_cache": _A_in["v_cache"],
        "A_wq": _A_in["wq"],
        "A_wo": _A_in["wo"],
        "B_x": _B_in["x"],
        "B_w1": _B_in["w1"],
        "B_b1": _B_in["b1"],
        "B_w2": _B_in["w2"],
        "B_b2": _B_in["b2"],
    }

def reference(A_x, A_k_cache, A_v_cache, A_wq, A_wo, B_x, B_w1, B_b1, B_w2, B_b2):
    def _A_ref(x, k_cache, v_cache, wq, wo):
        B, Sq, D = x.shape
        Hq, Dh = 32, 128
        Hkv, Sk = k_cache.shape[1], k_cache.shape[2]
        W = min(4096, max(256, Sk // 4))
        rep = Hq // Hkv
        q = (lambda x, *d: x.permute(*d))((x @ wq).reshape(B, Sq, Hq, Dh), 0, 2, 1, 3)
        k = (lambda x, n, axis: torch.repeat_interleave(x, n, dim=axis))(k_cache[:, :, Sk - W:, :], rep, axis=1)
        v = (lambda x, n, axis: torch.repeat_interleave(x, n, dim=axis))(v_cache[:, :, Sk - W:, :], rep, axis=1)
        scores = torch.einsum("bhqd,bhkd->bhqk", q, k) * (Dh ** -0.5)
        p = _softmax(scores, axis=-1)
        o = torch.einsum("bhqk,bhkd->bhqd", p, v)
        return (lambda x, *d: x.permute(*d))(o, 0, 2, 1, 3).reshape(B, Sq, Hq * Dh) @ wo

    def _B_ref(x, w1, b1, w2, b2):
        h = torch.einsum("bsd,df->bsf", x, w1) + b1
        zero = torch.zeros_like(h)
        r = torch.where(h > zero, h, zero)
        h = r * r
        out = torch.einsum("bsf,fd->bsd", h, w2) + b2
        return out

    x = A_x
    xn = _layernorm(x, axis=-1)
    s = _A_ref(xn, A_k_cache, A_v_cache, A_wq, A_wo)
    g = _silu(_B_ref(xn, B_w1, B_b1, B_w2, B_b2))
    return x + s * g
```

```python
import re

TRANS = ("v_exp_f32", "v_log_f32", "v_rcp_f32", "v_rsq_f32", "v_sqrt_f32", "v_sin_f32", "v_cos_f32")

def regs_of(op):
    op = op.strip().lstrip("-")
    m = re.fullmatch(r"abs\((.*)\)", op)
    if m: op = m.group(1)
    op = op.strip("|")
    m = re.fullmatch(r"([vsa])(\d+)", op)
    if m: return {(m.group(1), int(m.group(2)))}
    m = re.fullmatch(r"([vsa])\[(\d+):(\d+)\]", op)
    if m: return {(m.group(1), i) for i in range(int(m.group(2)), int(m.group(3)) + 1)}
    if op in ("vcc", "vcc_lo", "vcc_hi"): return {("x", "vcc")}
    if op in ("exec", "exec_lo", "exec_hi"): return {("x", "exec")}
    if op == "m0": return {("x", "m0")}
    return set()

class Ins:
    def __init__(self, text):
        self.text = text
        t = text.split(";")[0].strip()
        self.label = t.endswith(":")
        self.directive = t.startswith(".")
        self.mn = t.split()[0] if t and not self.label else ""
        rest = t[len(self.mn):].strip() if self.mn else ""
        ops = [o.strip() for o in rest.split(",")] if rest else []
        if ops:
            joined = []; depth = 0; cur = ""
            for ch in rest:
                if ch == "[": depth += 1
                if ch == "]": depth -= 1
                if ch == "," and depth == 0: joined.append(cur.strip()); cur = ""
                else: cur += ch
            joined.append(cur.strip())
            last = joined[-1].split()
            self.mods = " ".join(last[1:])
            joined[-1] = last[0] if last else ""
            ops = joined
        else:
            self.mods = ""
        self.ops = ops
        mn = self.mn
        self.mfma = mn.startswith("v_mfma")
        self.valu = mn.startswith("v_") and not self.mfma
        self.salu = mn.startswith("s_")
        self.vmem = mn.startswith(("global_", "buffer_", "flat_"))
        self.ds = mn.startswith("ds_")
        self.dpp = "_dpp" in mn or "quad_perm" in self.mods or "row_" in self.mods
        self.permlane = mn.startswith("v_permlane")
        self.trans = any(mn.startswith(x) for x in TRANS)
        self.lds_dma = self.vmem and ("_lds_" in mn or " lds" in " " + self.mods)
        R = [regs_of(o) for o in ops]
        w = set(); r = set()
        store = mn.startswith(("global_store", "buffer_store", "ds_write", "global_atomic", "ds_add"))
        if self.label or self.directive or not ops: pass
        elif store or self.lds_dma or mn.startswith(("s_cmp", "s_cbranch", "s_branch", "s_waitcnt", "s_nop", "s_setprio", "s_sleep", "s_bitcmp", "s_setpc")):
            for x in R: r |= x
        elif self.permlane:
            w = R[0] | R[1]; r = R[0] | R[1]
        else:
            w = set(R[0])
            k = 1
            if mn.startswith(("v_add_co", "v_addc_co", "v_sub_co", "v_div_scale")): w |= R[1]; k = 2
            for x in R[k:]: r |= x
            if mn.startswith(("v_fmac", "v_dot2c", "v_writelane")) or self.dpp: r |= R[0]
            if mn.startswith("v_cndmask") and len(ops) == 3: r.add(("x", "vcc"))
            if "saveexec" in mn: w.add(("x", "exec")); r.add(("x", "exec"))
        if self.lds_dma: r.add(("x", "m0"))
        self.w, self.r = w, r
        self.wide_store = mn in ("global_store_dwordx4", "global_store_dwordx3", "buffer_store_dwordx4", "buffer_store_dwordx3")
        if self.wide_store:
            self.sdata = R[1] if mn.startswith("global") else R[0]
        if self.mfma:
            self.srcc = R[3]; self.srcab = R[1] | R[2]
            self.passes = 8 if "32x32" in mn else 4
    def states(self):
        if self.label or self.directive or not self.mn: return 0
        if self.mn == "s_nop": return int(self.ops[0], 0) + 1
        return 1

def need(p, c):
    n = 0
    vw = {x for x in p.w if x[0] in "va"}
    sw = {x for x in p.w if x[0] == "s" or x == ("x", "vcc")}
    if p.valu:
        if c.mfma and vw & c.r: n = max(n, 2)
        if c.valu and (c.dpp or c.permlane) and vw & c.r: n = max(n, 2)
        if c.mn.startswith(("v_readfirstlane", "v_readlane")) and vw & c.r: n = max(n, 1)
        if p.trans and (c.valu or c.mfma) and vw & c.r: n = max(n, 2 if c.mfma else 1)
        if c.valu and sw & c.r: n = max(n, 4 if c.mn.startswith(("v_readlane", "v_writelane", "v_div_fmas")) else 2)
        if c.vmem and sw & c.r: n = max(n, 5)
        if c.salu and sw & c.r: n = max(n, 1)
    if p.mfma:
        big = {4: 8, 8: 12}[p.passes]
        if c.mfma:
            if p.w & c.srcab: n = max(n, big)
            if p.w & c.srcc and not (p.w == c.srcc and p.passes == c.passes): n = max(n, big - 2)
            if p.w & c.w and not (p.w & c.srcc): n = max(n, big)
        elif (c.valu or c.vmem or c.ds) and p.w & (c.r | c.w): n = max(n, big)
        if c.valu and p.srcc & c.w: n = max(n, {4: 3, 8: 7}[p.passes])
    if p.salu and ("x", "m0") in p.w and c.lds_dma: n = max(n, 1)
    if p.wide_store and p.sdata & c.w and not c.salu: n = max(n, 2)
    return n

class Asm:
    def __init__(self): self.L = []
    def __call__(self, text):
        for line in text.split("\n"):
            line = line.strip()
            if line: self.L.append(line)
    def finish(self):
        out = []
        for line in self.L:
            if line.startswith(";"):
                out.append(Ins(";")); out[-1].text = line; continue
            c = Ins(line)
            if c.mn and not c.directive:
                dist = 0; pad = 0
                for p in reversed(out):
                    if dist >= 12: break
                    if p.mn in ("s_branch", "s_endpgm", "s_setpc_b64"): break
                    if p.mn and not p.directive:
                        pad = max(pad, need(p, c) - dist)
                    dist += p.states()
                if pad > 0: out.append(Ins(f"s_nop {pad-1}"))
            out.append(c)
        return "\n".join(("" if (i.label or i.text.startswith((";", "."))) else "    ") + i.text for i in out) + "\n"
```

```python
import sys, os
sys.path.insert(0, os.path.dirname(os.path.abspath(__file__)))
from asmlib import Asm
NAME = "recurrent_scan__sliding_block_cached__dense_activation_squared_relu__decode"

QP, HP, OP, ML, SPS, SPF, STAMP = 0x10000, 0x50000, 0x100000, 0x180000, 0x200000, 0x250000, 0x400000
SPSTR = 1152
L_K, L_Q, L_MX, L_LW, L_O, L_RED = 18432, 0, 1280, 1344, 1536, 9728
L_QSTR = 272
LDS_BYTES = 83968
LOG2E = 0x3fb8aa3b
SCALE = 0x3db504f3

def v(a, n=1): return f"v{a}" if n == 1 else f"v[{a}:{a+n-1}]"
def s(a, n=1): return f"s{a}" if n == 1 else f"s[{a}:{a+n-1}]"

def gen(diag=False, nt="nt", barA=True, limit=200000, hdr=None):
    A = Asm()
    sX, sK, sV, sWQ, sWO, sW1, sB1, sW2, sB2, sOUT, sWS = 4, 6, 8, 10, 12, 16, 18, 20, 22, 24, 26
    sT, sWAVE, sXC, sJ = 28, 29, 30, 31
    sCNT = 46
    nstamp = [0]
    def stamp(k):
        if diag: A(f"s_memrealtime s[{64+2*k}:{65+2*k}]")
    def addbase(r, off):
        A(f"s_add_u32 s{r}, s{r}, {off}\ns_addc_u32 s{r+1}, s{r+1}, 0")
    def allred(regs, op, bits, tmp):
        dpp = {0: "quad_perm:[1,0,3,2]", 1: "quad_perm:[2,3,0,1]", 2: "row_half_mirror", 3: "row_mirror"}
        for b in bits:
            for r in regs:
                if b < 4:
                    A(f"{op}_dpp v{r}, v{r}, v{r} {dpp[b]} row_mask:0xf bank_mask:0xf")
                else:
                    A(f"v_mov_b32 v{tmp}, v{r}")
                    A(f"v_permlane{16 if b == 4 else 32}_swap_b32 v{r}, v{tmp}")
                    A(f"{op} v{r}, v{r}, v{tmp}")
    def bf16r(dst, src):
        A(f"v_cvt_pk_bf16_f32 v{dst}, v{src}, v{src}\nv_and_b32 v{dst}, 0xffff0000, v{dst}")
    def unpack(dst, src, n):
        for i in range(n):
            A(f"v_lshlrev_b32 v{dst+2*i}, 16, v{src+i}\nv_and_b32 v{dst+2*i+1}, 0xffff0000, v{src+i}")
    def delta(dst, val, masks, n, tmp):
        A(f"v_cvt_pk_bf16_f32 v{tmp}, v{val}, v{val}")
        for j in range(n): A(f"v_and_b32 v{dst+j}, v{tmp}, v{masks+j}")
    def tag(r, n, vT):
        for i in range(n): A(f"v_bfi_b32 v{r+i}, v{vT+1}, v{vT}, v{r+i}")
    def poll(name, loads, tmp):
        A(f"s_mov_b32 s{sCNT}, {limit}")
        A(f"{name}:")
        dws = []
        for (d, n, a, off) in loads:
            A(f"global_load_dword{'x%d' % n if n > 1 else ''} {v(d, n)}, v{a}, s[{sWS}:{sWS+1}] offset:{off} sc1")
            dws += list(range(d, d + n))
        A("s_waitcnt vmcnt(0)")
        A(f"v_bitop3_b32 v{tmp}, v{dws[0]}, v{dws[1]}, s{sT} bitop3:0x7e")
        for d in dws[2:]: A(f"v_bitop3_b32 v{tmp}, v{tmp}, v{d}, s{sT} bitop3:0xf6")
        A(f"v_and_b32 v{tmp}, 0xff, v{tmp}\nv_cmp_ne_u32 vcc, 0, v{tmp}")
        A(f"s_sub_u32 s{sCNT}, s{sCNT}, 1\ns_cbranch_scc1 {name}_x")
        A(f"s_and_b64 exec, exec, vcc\ns_cbranch_scc1 {name}")
        A(f"{name}_x:\ns_mov_b64 exec, -1")
    def get_tag():
        A(f"s_waitcnt lgkmcnt(0)\ns_add_u32 s{sT}, s{sT}, 1\ns_and_b32 s{sT}, s{sT}, 0xff")
    def dump(nst, slot):
        if not diag: return
        A("s_waitcnt lgkmcnt(0)")
        A(f"s_lshl_b32 s40, s2, 3\ns_add_u32 s40, s40, s{sWAVE}\ns_lshl_b32 s40, s40, 6\ns_add_u32 s40, s40, {STAMP}")
        A("s_mov_b64 exec, 1\nv_mov_b32 v5, s40")
        for k in range(nst):
            A(f"v_mov_b32 v6, s{64+2*k}\nglobal_store_dword v5, v6, s[{sWS}:{sWS+1}] offset:{4*k}")

    K = NAME + "_kernel"
    A(f"{K}:")
    stamp(0)
    A("s_cmp_ge_u32 s2, 256\ns_cbranch_scc1 L_end")
    A("s_load_dwordx16 s[4:19], s[0:1], 0\ns_load_dwordx4 s[20:23], s[0:1], 64")
    A("s_load_dwordx2 s[24:25], s[0:1], 80\ns_load_dwordx2 s[26:27], s[0:1], 96")
    A("v_lshrrev_b32 v1, 6, v0\nv_and_b32 v0, 63, v0")
    A(f"s_and_b32 s{sXC}, s2, 7\ns_lshr_b32 s{sJ}, s2, 3")
    A(f"v_readfirstlane_b32 s{sWAVE}, v1")
    A("v_and_b32 v1, 15, v0\nv_lshrrev_b32 v2, 4, v0")
    if diag:
        for k in range(1, 12): A(f"s_mov_b64 s[{64+2*k}:{65+2*k}], 0")
    A(f"s_cmp_ge_u32 s{sWAVE}, 4\ns_cbranch_scc1 L_S")

    vC, vG, vB, vS3 = 1, 2, 3, 4
    MASK = 10; vTG = 14
    XS, XR, F, XO, W, ACC = 16, 24, 32, 48, 112, 176
    B1R = 180
    XF = 184
    FIN = 200
    A(f"v_bfe_u32 v3, v0, 3, 1\nv_and_b32 v4, 7, v0\nv_mov_b32 v{FIN+2}, 0")
    A(f"s_cmp_ge_u32 s{sWAVE}, 2\ns_cbranch_scc1 L_C23")
    A(f"s_cmp_eq_u32 s{sWAVE}, 1\ns_cbranch_scc1 L_C1par")
    A(f"s_mov_b32 s32, 8192\ns_mov_b32 s33, {16*8192}\ns_lshl_b32 s34, s{sXC}, 7\ns_mov_b32 s35, 32\ns_mov_b32 s36, 16")
    A(f"s_lshl_b32 s37, s{sJ}, 3\ns_add_u32 s37, s37, s{sXC}\ns_lshl_b32 s37, s37, 9\ns_add_u32 s37, s37, {QP}\ns_mov_b32 s38, {32*8*512}")
    A(f"s_lshl_b32 s39, s{sXC}, 19\ns_lshl_b32 s40, s{sJ}, 8\ns_add_u32 s39, s39, s40")
    A("s_waitcnt lgkmcnt(0)")
    A(f"s_mov_b64 s[42:43], s[{sWQ}:{sWQ+1}]\ns_branch L_C01")
    A("L_C1par:")
    A(f"s_cmp_ge_u32 s{sJ}, 14\ns_cselect_b32 s40, 1, 0\ns_cselect_b32 s41, 14, 0")
    A(f"s_lshl_b32 s42, s{sXC}, 1\ns_add_u32 s40, s40, s42\ns_sub_u32 s41, s{sJ}, s41")
    A(f"s_mov_b32 s32, 3584\ns_mov_b32 s33, {8*3584}\ns_lshl_b32 s34, s40, 6\ns_mov_b32 s35, 16\ns_mov_b32 s36, 0")
    A(f"s_mul_i32 s37, s40, 7168\ns_lshl_b32 s42, s41, 9\ns_add_u32 s37, s37, s42\ns_add_u32 s37, s37, {HP}\ns_mov_b32 s38, {16*7168}")
    A(f"s_mul_i32 s39, s40, {32*3584}\ns_lshl_b32 s42, s41, 8\ns_add_u32 s39, s39, s42")
    A("s_waitcnt lgkmcnt(0)")
    A(f"s_mov_b64 s[42:43], s[{sW1}:{sW1+1}]")
    A(f"s_cmp_ge_u32 s{sJ}, 28\ns_cbranch_scc0 L_C01")
    A(f"s_load_dword s{sT}, s[{sWS}:{sWS+1}], 0")
    if barA: A("s_barrier")
    A("s_branch L_Cmask")
    A("L_C01:")
    A(f"s_load_dword s{sT}, s[{sWS}:{sWS+1}], 0")
    addbase(42, "s39")
    A("v_lshl_add_u32 v5, v2, 3, v4\nv_lshlrev_b32 v5, 5, v5\nv_lshl_add_u32 v5, v3, 10, v5")
    A(f"global_load_dwordx4 {v(XS,4)}, v5, s[{sX}:{sX+1}]\nglobal_load_dwordx4 {v(XS+4,4)}, v5, s[{sX}:{sX+1}] offset:16")
    A("v_mul_lo_u32 v6, v2, s35\nv_lshl_add_u32 v6, v3, 10, v6\nv_add_u32 v6, s34, v6\nv_add_u32 v7, s36, v6")
    A(f"global_load_dwordx4 {v(XR,4)}, v6, s[{sX}:{sX+1}]\nglobal_load_dwordx4 {v(XR+4,4)}, v7, s[{sX}:{sX+1}]")
    A("v_mul_lo_u32 v8, v2, s33\nv_lshl_add_u32 v8, v1, 4, v8")
    for t in range(16):
        if t == 8: A(f"s_cmp_eq_u32 s{sWAVE}, 1\ns_cbranch_scc1 L_Cwdone")
        A(f"global_load_dwordx4 {v(W+4*t,4)}, v8, s[42:43] {nt}")
        if t != 15: addbase(42, "s32")
    A("L_Cwdone:")
    if barA: A("s_barrier")
    stamp(1)
    A("L_Cmask:")
    A("v_and_b32 v5, 3, v0\nv_lshlrev_b32 v5, 4, v5\nv_mov_b32 v6, 0xffff\nv_mov_b32 v7, 0\nv_lshlrev_b64 v[6:7], v5, v[6:7]")
    A("v_cmp_gt_u32 vcc, 4, v4")
    A(f"v_cndmask_b32 v{MASK}, 0, v6, vcc\nv_cndmask_b32 v{MASK+1}, 0, v7, vcc")
    A(f"v_cndmask_b32 v{MASK+2}, v6, 0, vcc\nv_cndmask_b32 v{MASK+3}, v7, 0, vcc")
    get_tag()
    A(f"v_mov_b32 v{vTG}, s{sT}\nv_mov_b32 v{vTG+1}, 0xff")
    A(f"s_cmp_ge_u32 s{sJ}, 28\ns_cselect_b32 s44, s{sWAVE}, 0\ns_cmp_eq_u32 s44, 1\ns_cbranch_scc1 L_Cpre")
    A(f"s_cmp_eq_u32 s{sWAVE}, 1\ns_cbranch_scc1 L_Cw8\ns_waitcnt vmcnt(16)\ns_branch L_Cw\nL_Cw8:\ns_waitcnt vmcnt(8)\nL_Cw:")
    stamp(2)
    unpack(F, XS, 8)
    A(f"v_add_f32 v5, v{F}, v{F+1}\nv_add_f32 v6, v{F+2}, v{F+3}")
    for i in range(4, 16, 2): A(f"v_add_f32 v5, v5, v{F+i}\nv_add_f32 v6, v6, v{F+i+1}")
    A("v_add_f32 v5, v5, v6")
    allred([5], "v_add_f32", [0, 1, 2, 4, 5], 6)
    A("v_mul_f32 v5, 0x3b000000, v5")
    for i in range(16): A(f"v_sub_f32 v{F+i}, v{F+i}, v5")
    A(f"v_mul_f32 v6, v{F}, v{F}\nv_mul_f32 v7, v{F+1}, v{F+1}")
    for i in range(2, 16, 2): A(f"v_fmac_f32 v6, v{F+i}, v{F+i}\nv_fmac_f32 v7, v{F+i+1}, v{F+i+1}")
    A("v_add_f32 v6, v6, v7")
    allred([6], "v_add_f32", [0, 1, 2, 4, 5], 7)
    A("v_mul_f32 v6, 0x3b000000, v6")
    bf16r(5, 5); bf16r(6, 6)
    A("v_add_f32 v6, 0x3727c5ac, v6"); bf16r(6, 6)
    A("v_sqrt_f32 v6, v6"); bf16r(6, 6)
    A("v_rcp_f32 v6, v6")
    unpack(F, XR, 8)
    for i in range(16): A(f"v_sub_f32 v{F+i}, v{F+i}, v5")
    for i in range(8): A(f"v_cvt_pk_bf16_f32 v{XR+i}, v{F+2*i}, v{F+2*i+1}")
    unpack(F, XR, 8)
    for i in range(16): A(f"v_mul_f32 v{F+i}, v{F+i}, v6")
    for t in range(16):
        if t == 8: A(f"s_cmp_eq_u32 s{sWAVE}, 1\ns_cbranch_scc1 L_Cd8")
        delta(XO + 4*t, F + t, MASK, 4, 5)
    A("L_Cd8:")
    A("v_lshrrev_b32 v5, 1, v2\nv_mul_lo_u32 v5, v5, s38\nv_and_b32 v6, 1, v2\nv_lshl_add_u32 v5, v6, 4, v5\nv_lshl_add_u32 v5, v1, 5, v5\nv_add_u32 v5, s37, v5")
    A("s_waitcnt vmcnt(0)")
    stamp(3)
    for t in range(16):
        if t == 8: A(f"s_cmp_eq_u32 s{sWAVE}, 1\ns_cbranch_scc1 L_Cm8")
        A(f"v_mfma_f32_16x16x32_bf16 {v(ACC,4)}, {v(XO+4*t,4)}, {v(W+4*t,4)}, {v(ACC,4) if t else 0}")
    A("L_Cm8:\ns_nop 7")
    tag(ACC, 4, vTG)
    A(f"global_store_dwordx4 v5, {v(ACC,4)}, s[{sWS}:{sWS+1}] sc1")
    stamp(4)
    A(f"s_cmp_ge_u32 s{sJ}, 28\ns_cbranch_scc1 L_Cpre")
    A(f"s_mul_i32 s40, s{sXC}, 7\ns_lshr_b32 s41, s{sJ}, 2\ns_add_u32 s40, s40, s41\ns_lshl_b32 s40, s40, 1\ns_add_u32 s40, s40, s{sWAVE}")
    A(f"s_lshl_b32 s41, s40, 5\nv_lshl_add_u32 v5, v2, 3, s41")
    A(f"global_load_dwordx2 {v(B1R,2)}, v5, s[{sB1}:{sB1+1}]")
    A(f"s_lshl_b32 s41, s40, 6\ns_add_u32 s41, s41, {HP}\ns_mov_b32 s42, 7168")
    A("v_lshl_add_u32 v5, v3, 4, v4\nv_mul_lo_u32 v5, v5, s42\nv_lshl_add_u32 v5, v2, 4, v5\nv_add_u32 v5, s41, v5")
    A(f"v_add_u32 v6, {8*7168}, v5")
    poll("L_pollH", [(XS, 4, 5, 0), (XS+4, 4, 6, 0)], 7)
    stamp(5)
    for i in range(4): A(f"v_add_f32 v{XS+i}, v{XS+i}, v{XS+4+i}")
    allred([XS, XS+1, XS+2, XS+3], "v_add_f32", [0, 1, 2], 7)
    A(f"v_cvt_pk_bf16_f32 v5, v{XS}, v{XS+1}\nv_cvt_pk_bf16_f32 v6, v{XS+2}, v{XS+3}")
    unpack(XS, 5, 2); unpack(XS+4, B1R, 2)
    for i in range(4): A(f"v_add_f32 v{XS+i}, v{XS+i}, v{XS+4+i}")
    A(f"v_cvt_pk_bf16_f32 v5, v{XS}, v{XS+1}\nv_cvt_pk_bf16_f32 v6, v{XS+2}, v{XS+3}")
    unpack(XS, 5, 2)
    for i in range(4): A(f"v_max_f32 v{XS+i}, 0, v{XS+i}")
    for i in range(4): A(f"v_mul_f32 v{XS+i}, v{XS+i}, v{XS+i}")
    for i in range(4): delta(XF + 4*i, XS + i, MASK, 4, 5)
    A("s_branch L_Cpre")

    A("L_C23:")
    A("s_waitcnt lgkmcnt(0)")
    A(f"s_load_dword s{sT}, s[{sWS}:{sWS+1}], 0")
    if barA: A("s_barrier")
    A("v_and_b32 v5, 3, v0\nv_lshlrev_b32 v5, 4, v5\nv_mov_b32 v6, 0xffff\nv_mov_b32 v7, 0\nv_lshlrev_b64 v[6:7], v5, v[6:7]")
    A("v_cmp_gt_u32 vcc, 4, v4")
    A(f"v_cndmask_b32 v{MASK}, 0, v6, vcc\nv_cndmask_b32 v{MASK+1}, 0, v7, vcc")
    A(f"v_cndmask_b32 v{MASK+2}, v6, 0, vcc\nv_cndmask_b32 v{MASK+3}, v7, 0, vcc")
    A(f"s_lshl_b32 s40, s{sXC}, 5\ns_add_u32 s40, s40, s{sJ}")
    A("s_lshr_b32 s41, s40, 6\ns_lshl_b32 s41, s41, 7\ns_and_b32 s42, s40, 15\ns_lshl_b32 s42, s42, 3\ns_add_u32 s41, s41, s42")
    A("s_bfe_u32 s42, s40, 0x10004\ns_lshl_b32 s42, s42, 2\ns_add_u32 s41, s41, s42")
    A("s_bfe_u32 s42, s40, 0x10005\ns_lshl_b32 s42, s42, 9\ns_add_u32 s42, s42, s41")
    A(f"v_add_lshl_u32 v{FIN+2}, v2, s42, 1\nv_add_lshl_u32 v5, v2, s41, 1")
    A(f"global_load_ushort v{FIN}, v{FIN+2}, s[{sX}:{sX+1}]\nglobal_load_ushort v{FIN+1}, v5, s[{sB2}:{sB2+1}]")
    A(f"s_lshr_b32 s40, s{sJ}, 4\ns_lshl_b32 s40, s40, 5\ns_lshl_b32 s41, s{sXC}, 2\ns_add_u32 s40, s40, s41")
    A(f"s_sub_u32 s41, s{sWAVE}, 2\ns_lshl_b32 s41, s41, 1\ns_add_u32 s40, s40, s41\ns_lshl_b32 s40, s40, 12\ns_add_u32 s40, s40, {QP}")
    A("v_lshrrev_b32 v6, 5, v0\nv_and_b32 v7, 31, v0\nv_lshlrev_b32 v5, 12, v6\nv_lshl_add_u32 v5, v7, 4, v5\nv_add_u32 v5, s40, v5")
    A(f"v_add_u32 v6, s41, v6\nv_mul_u32_u24 v6, {L_QSTR}, v6\nv_lshl_add_u32 v6, v7, 3, v6")
    get_tag()
    A(f"v_mov_b32 v{vTG}, s{sT}\nv_mov_b32 v{vTG+1}, 0xff")
    stamp(1)
    poll("L_pollQ", [(W + 4*k, 4, 5, 512*k) for k in range(8)], 7)
    stamp(5)
    for k in (1, 2, 4):
        for a in range(0, 8, 2*k):
            for i in range(4): A(f"v_add_f32 v{W+4*a+i}, v{W+4*a+i}, v{W+4*(a+k)+i}")
    A(f"v_cvt_pk_bf16_f32 v8, v{W}, v{W+1}\nv_cvt_pk_bf16_f32 v9, v{W+2}, v{W+3}")
    A(f"ds_write_b64 v6, v[8:9] offset:{L_Q}")

    A("L_Cpre:")
    W2R, WOR, G = W, W + 16, W + 32
    A(f"s_and_b32 s40, s{sJ}, 3\ns_lshl_b32 s40, s40, 8\ns_lshr_b32 s41, s{sJ}, 2")
    A(f"s_mul_i32 s42, s{sXC}, 7\ns_add_u32 s42, s42, s41\ns_lshl_b32 s42, s42, 1\ns_add_u32 s42, s42, s{sWAVE}\ns_lshl_b32 s42, s42, 14\ns_add_u32 s42, s42, s40")
    addbase(sW2, "s42")
    A(f"s_lshl_b32 s42, s{sXC}, 3\ns_add_u32 s47, s42, s41\ns_lshl_b32 s42, s47, 2\ns_add_u32 s42, s42, s{sWAVE}\ns_lshl_b32 s42, s42, 14\ns_add_u32 s42, s42, s40")
    addbase(sWO, "s42")
    A("v_lshlrev_b32 v8, 12, v2\nv_lshl_add_u32 v8, v1, 4, v8")
    A(f"s_lshr_b32 s42, s{sJ}, 3\ns_and_b32 s43, s41, 1\ns_lshl_b32 s43, s43, 2\ns_add_u32 s43, s43, s{sWAVE}\ns_lshl_b32 s43, s43, 6")
    A(f"s_lshl_b32 s44, s42, 9\ns_add_u32 s43, s43, s44\ns_lshl_b32 s44, s{sXC}, 16\ns_add_u32 s43, s43, s44\ns_add_u32 s43, s43, {OP}")
    A(f"s_lshl_b32 s42, s42, 4\ns_lshl_b32 s44, s{sXC}, 11\ns_add_u32 s42, s42, s44\ns_add_u32 s42, s42, {ML}")
    A("v_lshl_add_u32 v5, v3, 4, v4")
    A(f"v_lshlrev_b32 v{XR}, 11, v5\nv_lshl_add_u32 v{XR}, v2, 4, v{XR}\nv_add_u32 v{XR}, s43, v{XR}\nv_add_u32 v{XR+1}, {8*2048}, v{XR}")
    A(f"v_lshl_add_u32 v{XR+2}, v5, 6, s42")
    A(f"s_and_b32 s40, s{sJ}, 3\ns_lshl_b32 s40, s40, 6\ns_add_u32 s40, s40, s47\ns_mul_i32 s40, s40, {SPSTR}")
    A(f"s_cmp_eq_u32 s{sWAVE}, 0\ns_cselect_b32 s41, 0, {SPF-SPS}\ns_add_u32 s40, s40, s41\ns_add_u32 s40, s40, {SPS}\nv_lshl_add_u32 v{XR+3}, v0, 4, s40")
    A(f"s_lshl_b32 s40, s{sXC}, 5\ns_add_u32 s40, s40, s{sJ}\ns_lshr_b32 s41, s40, 6\ns_mul_i32 s41, s41, {64*SPSTR}\ns_and_b32 s40, s40, 63\ns_lshl_b32 s40, s40, 4")
    A(f"s_add_u32 s40, s40, s41\ns_add_u32 s40, s40, {SPS}\nv_mul_u32_u24 v{XR+4}, {SPSTR}, v0\nv_add_u32 v{XR+4}, s40, v{XR+4}\nv_add_u32 v{XR+5}, {SPF-SPS}, v{XR+4}")
    A(f"s_lshl_b32 s40, s{sWAVE}, 10\nv_lshl_add_u32 v{XR+6}, v0, 4, s40\nv_lshlrev_b32 v{XR+7}, 4, v0")
    A(f"s_cmp_lt_u32 s{sJ}, 28\ns_cselect_b32 s45, 2, 0\ns_cmp_lt_u32 s{sWAVE}, s45\ns_cselect_b32 s45, 1, 0")
    for i in range(4): A(f"v_mov_b32 v{ACC+i}, 0")
    A("s_waitcnt lgkmcnt(0)")
    stamp(6)
    A("s_barrier")
    A("s_cmp_eq_u32 s45, 0\ns_cbranch_scc1 L_Cnow2")
    for i in range(4): A(f"global_load_dwordx4 {v(W2R+4*i,4)}, v8, s[{sW2}:{sW2+1}] offset:{1024*i} {nt}")
    A("L_Cnow2:")
    for i in range(4): A(f"global_load_dwordx4 {v(WOR+4*i,4)}, v8, s[{sWO}:{sWO+1}] offset:{1024*i} {nt}")
    A("s_barrier")
    A("s_barrier")
    stamp(7)
    A("s_cmp_eq_u32 s45, 0\ns_cbranch_scc1 L_Cnoffn2")
    A("s_waitcnt vmcnt(4)")
    for i in range(4): A(f"v_mfma_f32_16x16x32_bf16 {v(ACC,4)}, {v(XF+4*i,4)}, {v(W2R+4*i,4)}, {v(ACC,4)}")
    A("L_Cnoffn2:")
    poll("L_pollO", [(G+8, 2, XR+2, 0), (G+10, 2, XR+2, 512), (G, 4, XR, 0), (G+4, 4, XR+1, 0)], 7)
    stamp(8)
    A(f"ds_write_b128 v{XR+6}, {v(ACC,4)} offset:{L_RED+4096}")
    m0, l0, m1, l1 = G+8, G+9, G+10, G+11
    A(f"v_and_b32 v{m0}, 0xffffff00, v{m0}\nv_and_b32 v{m1}, 0xffffff00, v{m1}\nv_max_f32 v5, v{m0}, v{m1}")
    allred([5], "v_max_f32", [0, 1, 2], 7)
    A(f"v_sub_f32 v{m0}, v{m0}, v5\nv_sub_f32 v{m1}, v{m1}, v5\nv_mul_f32 v{m0}, {LOG2E}, v{m0}\nv_mul_f32 v{m1}, {LOG2E}, v{m1}")
    A(f"v_exp_f32 v{m0}, v{m0}\nv_exp_f32 v{m1}, v{m1}")
    A(f"v_mul_f32 v{l0}, v{l0}, v{m0}")
    for i in range(4): A(f"v_mul_f32 v{G+i}, v{G+i}, v{m0}")
    A(f"v_fmac_f32 v{l0}, v{l1}, v{m1}")
    for i in range(4): A(f"v_fmac_f32 v{G+i}, v{G+4+i}, v{m1}")
    allred([l0, G, G+1, G+2, G+3], "v_add_f32", [0, 1, 2], 7)
    A(f"v_rcp_f32 v{l0}, v{l0}")
    for i in range(4): A(f"v_mul_f32 v{G+i}, v{G+i}, v{l0}")
    for i in range(4): delta(XO + 4*i, G + i, MASK, 4, 5 + (i & 1))
    for i in range(4): A(f"v_mfma_f32_16x16x32_bf16 {v(F,4)}, {v(XO+4*i,4)}, {v(WOR+4*i,4)}, {v(F,4) if i else 0}")
    A(f"ds_write_b128 v{XR+6}, {v(F,4)} offset:{L_RED}")
    A("s_waitcnt lgkmcnt(0)\ns_barrier")
    stamp(9)
    A(f"s_cmp_eq_u32 s{sWAVE}, 2\ns_cbranch_scc1 L_Cfin\ns_cmp_eq_u32 s{sWAVE}, 3\ns_cbranch_scc1 L_Cdone")
    A(f"s_cmp_eq_u32 s{sWAVE}, 1\ns_cbranch_scc1 L_Cpubf")
    for i in range(4): A(f"ds_read_b128 {v(G+4*i,4)}, v{XR+7} offset:{L_RED+1024*i}")
    A("s_waitcnt lgkmcnt(0)")
    for i in range(4): A(f"v_add_f32 v{G+i}, v{G+i}, v{G+8+i}\nv_add_f32 v{G+4+i}, v{G+4+i}, v{G+12+i}")
    A("s_branch L_Cpub")
    A("L_Cpubf:")
    for i in range(2): A(f"ds_read_b128 {v(G+4*i,4)}, v{XR+7} offset:{L_RED+4096+1024*i}")
    A("s_waitcnt lgkmcnt(0)")
    A("L_Cpub:")
    for i in range(4): A(f"v_add_f32 v{G+i}, v{G+i}, v{G+4+i}")
    tag(G, 4, vTG)
    A(f"global_store_dwordx4 v{XR+3}, {v(G,4)}, s[{sWS}:{sWS+1}] sc1")
    A("s_branch L_Cdone")
    A("L_Cfin:")
    poll("L_pollS", [(G, 4, XR+4, 0), (G+4, 4, XR+5, 0)], 7)
    stamp(10)
    for a in (G, G+1, G+4, G+5): A(f"v_permlane32_swap_b32 v{a}, v{a+2}")
    for a in (G, G+1, G+4, G+5): A(f"v_add_f32 v{a}, v{a}, v{a+2}")
    for a in (G, G+4): A(f"v_permlane16_swap_b32 v{a}, v{a+1}")
    for a in (G, G+4): A(f"v_add_f32 v{a}, v{a}, v{a+1}")
    allred([G, G+4], "v_add_f32", [0, 1, 2, 3], 7)
    A(f"v_cvt_pk_bf16_f32 v5, v{G}, v{G+4}\nv_lshlrev_b32 v{FIN}, 16, v{FIN}\nv_lshlrev_b32 v{FIN+1}, 16, v{FIN+1}")
    A(f"v_and_b32 v6, 0xffff0000, v5\nv_lshlrev_b32 v5, 16, v5\nv_add_f32 v6, v6, v{FIN+1}")
    bf16r(6, 6)
    A(f"v_mul_f32 v7, {LOG2E ^ 0x80000000}, v6\nv_exp_f32 v7, v7\nv_add_f32 v7, 1.0, v7\nv_rcp_f32 v7, v7\nv_mul_f32 v6, v6, v7")
    bf16r(6, 6)
    A("v_mul_f32 v5, v5, v6"); bf16r(5, 5)
    A(f"v_add_f32 v5, v5, v{FIN}\nv_cvt_pk_bf16_f32 v5, v5, v5")
    A("s_mov_b32 exec_lo, 0x00010001\ns_mov_b32 exec_hi, 0x00010001")
    A(f"global_store_short v{FIN+2}, v5, s[{sOUT}:{sOUT+1}]")
    A("s_cmp_eq_u32 s2, 0\ns_cbranch_scc0 L_Cdone")
    A(f"s_mov_b64 exec, 1\nv_mov_b32 v5, 0\nglobal_store_dword v5, v{vTG}, s[{sWS}:{sWS+1}]")
    A("L_Cdone:")
    stamp(11)
    dump(12, 0)
    A("s_endpgm")

    A("L_S:")
    KO, KA, QF, PM = 4, 8, 16, 12
    VV, KF, SC, XP, A1, A2 = 32, 96, 160, 176, 208, 212
    sW = 33
    A(f"s_sub_u32 s{sW}, s{sWAVE}, 4")
    A(f"s_lshr_b32 s34, s{sJ}, 4\ns_lshl_b32 s34, s34, 3\ns_add_u32 s34, s34, s{sXC}\ns_lshl_b32 s34, s34, 23\ns_add_u32 s34, s34, {28672*256}")
    A(f"s_and_b32 s35, s{sJ}, 15\ns_lshl_b32 s35, s35, 2\ns_add_u32 s35, s35, s{sW}\ns_lshl_b32 s35, s35, 12\ns_add_u32 s34, s34, s35")
    for i in range(4):
        A(f"v_lshl_add_u32 v14, v2, 2, {i}\nv_xor_b32 v14, v14, v1\nv_lshlrev_b32 v14, 4, v14\nv_lshl_add_u32 v{KO+i}, v2, 8, v14")
    A("v_lshlrev_b32 v3, 4, v0")
    A(f"s_lshl_b32 s36, s{sW}, 14\ns_add_u32 s36, s36, {L_K}")
    A("s_waitcnt lgkmcnt(0)")
    A(f"s_load_dword s{sT}, s[{sWS}:{sWS+1}], 0")
    addbase(sK, "s34"); addbase(sV, "s34")
    if barA: A("s_barrier")
    for T in range(4):
        A(f"s_mov_b32 m0, s36\ns_add_u32 s36, s36, 4096")
        for i in range(4): A(f"global_load_lds_dwordx4 v{KO+i}, s[{sK}:{sK+1}] offset:{1024*i} {nt}")
        if T < 3: addbase(sK, 262144)
    for T in range(4):
        for i in range(4): A(f"global_load_dwordx4 {v(VV+16*T+4*i,4)}, v3, s[{sV}:{sV+1}] offset:{1024*i} {nt}")
        if T < 3: addbase(sV, 262144)
    stamp(1)
    A(f"v_and_b32 v14, 3, v1\nv_lshlrev_b32 v14, 10, v14\nv_lshrrev_b32 v15, 2, v1\nv_lshl_add_u32 v14, v15, 8, v14\ns_lshl_b32 s36, s{sW}, 14\ns_add_u32 s36, s36, {L_K}\nv_add_u32 v14, s36, v14")
    for u in range(4):
        A(f"v_add_u32 v13, {4*u}, v2\nv_xor_b32 v13, v13, v1\nv_lshl_add_u32 v{KA+u}, v13, 4, v14")
    A(f"v_mul_u32_u24 v14, {L_QSTR}, v15\nv_lshl_add_u32 v14, v2, 4, v14")
    A(f"v_and_b32 v13, 3, v0\nv_lshlrev_b32 v13, 4, v13\nv_mov_b32 v{PM}, 0xffff")
    A(f"v_mov_b32 v3, v13\nv_mov_b32 v{PM+1}, 0\nv_lshlrev_b64 v[{PM}:{PM+1}], v3, v[{PM}:{PM+1}]")
    A(f"s_lshl_b32 s36, s{sW}, 2\nv_lshlrev_b32 v15, 4, v15\nv_add_u32 v3, s36, v15")
    get_tag()
    A("s_barrier")
    stamp(2)
    for u in range(4): A(f"ds_read_b128 {v(QF+4*u,4)}, v14 offset:{L_Q+64*u}")
    A("s_waitcnt vmcnt(16)")
    for T in range(4):
        for u in range(4): A(f"ds_read_b128 {v(KF+16*T+4*u,4)}, v{KA+u} offset:{4096*T}")
    for T in range(4):
        A(f"s_waitcnt lgkmcnt({12-4*T})")
        for u in range(4):
            A(f"v_mfma_f32_16x16x32_bf16 {v(SC+4*T,4)}, {v(KF+16*T+4*u,4)}, {v(QF+4*u,4)}, {v(SC+4*T,4) if u else 0}")
    TM = KF
    for i in range(8): A(f"v_cvt_pk_bf16_f32 v{TM+i}, v{SC+2*i}, v{SC+2*i+1}")
    unpack(SC, TM, 8)
    for i in range(16): A(f"v_mul_f32 v{SC+i}, {SCALE}, v{SC+i}")
    for i in range(8): A(f"v_cvt_pk_bf16_f32 v{TM+i}, v{SC+2*i}, v{SC+2*i+1}")
    unpack(SC, TM, 8)
    A(f"v_max3_f32 v4, v{SC}, v{SC+1}, v{SC+2}")
    for i in range(3, 15, 2): A(f"v_max3_f32 v4, v4, v{SC+i}, v{SC+i+1}")
    A(f"v_max_f32 v4, v4, v{SC+15}")
    allred([4], "v_max_f32", [4, 5], 5)
    A(f"ds_write_b32 v3, v4 offset:{L_MX}\ns_waitcnt lgkmcnt(0)\ns_barrier")
    A(f"ds_read_b128 v[4:7], v15 offset:{L_MX}\ns_waitcnt lgkmcnt(0)")
    A(f"v_max3_f32 v4, v4, v5, v6\nv_max_f32 v4, v4, v7\nv_mul_f32 v4, {LOG2E ^ 0x80000000}, v4\ns_mov_b32 s36, {LOG2E}")
    for i in range(16): A(f"v_fma_f32 v{SC+i}, v{SC+i}, s36, v4")
    for i in range(16): A(f"v_exp_f32 v{SC+i}, v{SC+i}")
    for i in range(16): delta(XP + 2*i, SC + i, PM, 2, 5 + (i & 1))
    A(f"v_add_f32 v4, v{SC}, v{SC+1}\nv_add_f32 v5, v{SC+2}, v{SC+3}")
    for i in range(4, 16, 2): A(f"v_add_f32 v4, v4, v{SC+i}\nv_add_f32 v5, v5, v{SC+i+1}")
    A("v_add_f32 v4, v4, v5")
    allred([4], "v_add_f32", [4, 5], 5)
    A(f"ds_write_b32 v3, v4 offset:{L_LW}")
    A(f"s_lshl_b32 s36, s{sW}, 11\nv_lshl_add_u32 v8, v0, 4, s36")
    A(f"v_and_b32 v9, 1, v0\nv_lshlrev_b32 v9, 10, v9\nv_bfe_u32 v10, v0, 1, 4\nv_lshl_add_u32 v9, v10, 4, v9\ns_lshl_b32 s36, s{sW}, 8\nv_add_u32 v9, s36, v9")
    A(f"s_lshl_b32 s34, s{sXC}, 5\ns_add_u32 s34, s34, s{sJ}\ns_lshl_b32 s34, s34, 2\ns_add_u32 s34, s34, s{sW}")
    A(f"s_lshl_b32 s35, s34, 9\ns_add_u32 s35, s35, {OP}\ns_lshl_b32 s34, s34, 4\ns_add_u32 s34, s34, {ML}")
    A("v_lshl_add_u32 v10, v0, 4, s35\nv_mov_b32 v11, s34\nv_cmp_gt_u32 vcc, 32, v0\nv_cndmask_b32 v10, v11, v10, vcc")
    A(f"s_lshl_b32 s36, s{sW}, 4\nv_mov_b32 v11, s36\nv_mov_b32 v14, s{sT}\nv_mov_b32 v15, 0xff")
    stamp(3)
    for n in range(16):
        A(f"s_waitcnt vmcnt({15-n})")
        A(f"v_mfma_f32_16x16x16_bf16 {v(A1,4)}, {v(XP+2*n,2)}, {v(VV+4*n,2)}, {v(A1,4) if n else 0}")
        A(f"v_mfma_f32_16x16x16_bf16 {v(A2,4)}, {v(XP+2*n,2)}, {v(VV+4*n+2,2)}, {v(A2,4) if n else 0}")
    stamp(4)
    A(f"ds_write_b128 v8, {v(A1,4)} offset:{L_O}\nds_write_b128 v8, {v(A2,4)} offset:{L_O+1024}")
    A("s_waitcnt lgkmcnt(0)\ns_barrier")
    for i in range(4): A(f"ds_read_b128 {v(KF+4*i,4)}, v9 offset:{L_O+2048*i}")
    A(f"ds_read_b128 v[16:19], v11 offset:{L_MX}\nds_read_b128 v[20:23], v11 offset:{L_LW}")
    A("s_waitcnt lgkmcnt(2)")
    for i in range(4): A(f"v_add_f32 v{KF+i}, v{KF+i}, v{KF+4+i}\nv_add_f32 v{KF+8+i}, v{KF+8+i}, v{KF+12+i}")
    A("s_waitcnt lgkmcnt(0)")
    A("v_max3_f32 v16, v16, v17, v18\nv_add_f32 v20, v20, v21\nv_add_f32 v22, v22, v23\nv_max_f32 v16, v16, v19\nv_add_f32 v20, v20, v22")
    for i in range(4): A(f"v_add_f32 v{KF+i}, v{KF+i}, v{KF+8+i}")
    A(f"v_cndmask_b32 v{KF}, v16, v{KF}, vcc\nv_cndmask_b32 v{KF+1}, v20, v{KF+1}, vcc")
    tag(KF, 4, 14)
    A("s_mov_b32 exec_hi, 1")
    A(f"global_store_dwordx4 v10, {v(KF,4)}, s[{sWS}:{sWS+1}] sc1")
    stamp(5)
    dump(6, 1)
    A("L_end:\ns_endpgm")

    head = (hdr or "") + f"; @launch grid=(256,1,1) block=(512,1,1) lds={LDS_BYTES}\n"
    head += f'.amdgcn_target "amdgcn-amd-amdhsa--gfx950"\n.text\n.globl {K}\n.p2align 8\n.type {K},@function\n'
    tail = f""".section .rodata,"a"
.p2align 6
.amdhsa_kernel {K}
  .amdhsa_next_free_vgpr 216
  .amdhsa_next_free_sgpr 96
  .amdhsa_accum_offset 216
  .amdhsa_group_segment_fixed_size 0
  .amdhsa_kernarg_size 104
  .amdhsa_user_sgpr_count 2
  .amdhsa_user_sgpr_kernarg_segment_ptr 1
  .amdhsa_system_sgpr_workgroup_id_x 1
  .amdhsa_float_denorm_mode_32 3
.end_amdhsa_kernel
"""
    return head + A.finish() + tail

def header():
    ref = open(f"cdna_kernels/{NAME}.s.ref").read().split("\n")
    return "\n".join(l for l in ref if l.startswith(";") and "@launch" not in l and not l.startswith("; Override") and not l.startswith("; grid=")) + "\n"

if __name__ == "__main__":
    out = sys.argv[1] if len(sys.argv) > 1 else f"cdna_kernels/{NAME}.s"
    open(out, "w").write(gen(hdr=header()))
```

```python
import sys, os
sys.path.insert(0, os.path.dirname(os.path.abspath(__file__)))
from asmlib import Asm
NAME = "recurrent_scan__sliding_block_cached__dense_activation_squared_relu__decode"

IDS = 0x1000
QP, HP, OP, ML, SPS, SPF, STAMP = 0x10000, 0x50000, 0x100000, 0x180000, 0x200000, 0x250000, 0x400000
SPSTR = 1152
DELTA = 0x800000
L_K, L_Q, L_MX, L_LW, L_O, L_RED = 18432, 0, 1280, 1344, 1536, 9728
L_QSTR = 272
L_FT, L_FV, L_FQ, L_FK, L_FP = 1408, 1424, 1440, 1456, 1472
L_P = L_RED
LDS_BYTES = 83968
TAGM = 0x3ff
LOG2E = 0x3fb8aa3b
SCALE = 0x3db504f3

CNAMES = ["start", "issued", "LNdone", "pub1", "FT", "qgath", "FK", "pready", "FV", "first", "barC", "wohere", "gathO", "pubS", "gathS", "end"]
SNAMES = ["start", "first", "Kiss", "issued", "pready", "PVdone", "barC", "pub"]
def v(a, n=1): return f"v{a}" if n == 1 else f"v[{a}:{a+n-1}]"

def gen(diag=False, nt="nt", limit=200000, hdr=None, hops=0, trig=18, paceK=6, paceV=7, kpos=5, warmLN=False,
        wofirst=False, pretouch=True, fbmask=31, prioC=0, diagwo=True, woTrig=0, spin=1, pat=0, owait=1, ackwait=True, head=3, lite=False, paceVUntil=16, fvpos=15, dirty=0, fsleep=0, lx="first", cpf=512, sfirst=True, probe=False, smtest=False, qst="", qld="sc1", noq=False, noh=False, preQ=0, hlate=True):
    A = Asm()
    sX, sK, sV, sWQ, sWO, sW1, sB1, sW2, sB2, sOUT, sWS = 4, 6, 8, 10, 12, 16, 18, 20, 22, 24, 26
    sT, sWAVE, sXC, sJ = 28, 29, 30, 31
    sCNT, sWSB, sID, sT8 = 46, 48, 50, 51
    role = ["C"]
    def stamp(k):
        names = SNAMES if role[0] == "S" else CNAMES
        if diag or (lite and role[0] == "C" and k in ("start", "end", lx)): A(f"s_memrealtime s[{64+2*names.index(k)}:{65+2*names.index(k)}]")
    def addbase(r, off):
        A(f"s_add_u32 s{r}, s{r}, {off}\ns_addc_u32 s{r+1}, s{r+1}, 0")
    DPP = {0: "quad_perm:[1,0,3,2]", 1: "quad_perm:[2,3,0,1]", 2: "row_half_mirror", 3: "row_mirror"}
    def allred(regs, op, bits, tmp):
        for b in bits:
            for r in regs:
                if b < 4:
                    A(f"{op}_dpp v{r}, v{r}, v{r} {DPP[b]} row_mask:0xf bank_mask:0xf")
                else:
                    A(f"v_mov_b32 v{tmp}, v{r}")
                    A(f"v_permlane{16 if b == 4 else 32}_swap_b32 v{r}, v{tmp}")
                    A(f"{op} v{r}, v{r}, v{tmp}")
    def bf16r(dst, src):
        A(f"v_cvt_pk_bf16_f32 v{dst}, v{src}, v{src}\nv_and_b32 v{dst}, 0xffff0000, v{dst}")
    def unpack(dst, src, n):
        for i in range(n):
            A(f"v_lshlrev_b32 v{dst+2*i}, 16, v{src+i}\nv_and_b32 v{dst+2*i+1}, 0xffff0000, v{src+i}")
    def delta(dst, val, masks, n, tmp):
        A(f"v_cvt_pk_bf16_f32 v{tmp}, v{val}, v{val}")
        for j in range(n): A(f"v_and_b32 v{dst+j}, v{tmp}, v{masks+j}")
    def tag(r, n, vT):
        for i in range(n): A(f"v_bfi_b32 v{r+i}, v{vT+1}, v{vT}, v{r+i}")
    def issue(loads, base, fl="sc1"):
        for (d, n, a, off) in loads:
            A(f"global_load_dword{'x%d' % n if n > 1 else ''} {v(d, n)}, v{a}, s[{base}:{base+1}] offset:{off} {fl}")
    def poll(name, loads, tmp, loadsB=None, first=None, narrow=False):
        A(f"s_mov_b32 s{sCNT}, 0")
        if first is not None: A(f"s_waitcnt vmcnt({first})\ns_branch {name}_f")
        A(f"{name}:")
        if diag and name[-1] in "OS": A("s_memtime s[58:59]")
        issue(loads, sWS)
        dws = [r for (d, n, a, off) in loads for r in range(d, d + n)]
        A(f"{name}_c:\ns_waitcnt vmcnt(0)")
        A(f"{name}_f:\ns_add_u32 s{sCNT}, s{sCNT}, 1")
        if diag and name[-1] in "OS":
            r = 60 if name[-1] == "O" else 62
            A(f"s_memtime s[100:101]\ns_waitcnt lgkmcnt(0)\ns_sub_u32 s{r+1}, s100, s58\ns_cmp_eq_u32 s{sCNT}, 2\ns_cselect_b32 s{r}, s{r+1}, s{r}")
        for d in dws: A(f"v_xor_b32 v{d}, s{sT8 if narrow else sT}, v{d}")
        A(f"v_or3_b32 v{tmp}, v{dws[0]}, v{dws[1]}, v{dws[2]}")
        for k in range(3, len(dws) - 1, 2): A(f"v_or3_b32 v{tmp}, v{tmp}, v{dws[k]}, v{dws[k+1]}")
        if len(dws) % 2 == 0: A(f"v_or_b32 v{tmp}, v{tmp}, v{dws[-1]}")
        A(f"v_and_b32 v{tmp}, {0xff if narrow else TAGM}, v{tmp}\nv_cmp_ne_u32 vcc, 0, v{tmp}")
        A(f"s_and_b64 exec, exec, vcc\ns_cbranch_scc0 {name}_x")
        A(f"s_cmp_gt_u32 s{sCNT}, {limit}\ns_cbranch_scc1 {name}_x")
        if loadsB:
            A(f"s_and_b32 s52, s{sCNT}, {fbmask}\ns_cbranch_scc1 {name}")
            issue(loadsB, sWSB)
            A(f"s_branch {name}_c")
        else:
            A(f"s_branch {name}")
        A(f"{name}_x:\ns_mov_b64 exec, -1")
        if diag: A(f"s_mov_b32 s{ {'H':96,'Q':96,'O':97,'S':98}[name[-1]] }, s{sCNT}")
    def store(addr, data, n, base, fl=""):
        A(f"global_store_dwordx{n} v{addr}, {v(data,n)}, s[{base}:{base+1}] {fl}")
    def waitflag(name, off, n, t, addr):
        A(f"{name}:\nds_read_b{32*n} {v(t,n)}, v{addr} offset:{off}\ns_waitcnt lgkmcnt(0)")
        if n == 4: A(f"v_and_b32 v{t}, v{t}, v{t+1}\nv_and_b32 v{t+2}, v{t+2}, v{t+3}\nv_and_b32 v{t}, v{t}, v{t+2}")
        A(f"v_readfirstlane_b32 s52, v{t}\ns_cmp_lg_u32 s52, 0\ns_cbranch_scc1 {name}_x\ns_sleep {spin}\ns_branch {name}\n{name}_x:")
    def wsb():
        A(f"s_add_u32 s{sWSB}, s{sWS}, {DELTA}\ns_addc_u32 s{sWSB+1}, s{sWS+1}, 0")
    def get_tag(b=True):
        if b: wsb()
        A(f"s_waitcnt lgkmcnt(0)\ns_add_u32 s{sT}, s{sT}, 1\ns_and_b32 s{sT}, s{sT}, {TAGM}\ns_and_b32 s{sT8}, s{sT}, 0xff")
        A(f"s_getreg_b32 s{sID}, hwreg(HW_REG_XCC_ID)\ns_lshl_b32 s{sID}, s{sID}, 10\ns_or_b32 s{sID}, s{sID}, s{sT}")
    def pr(k):
        if probe: A(f"s_memrealtime s[{96+2*k}:{97+2*k}]")
    def dump():
        if probe:
            A(f"s_waitcnt lgkmcnt(0)\ns_lshl_b32 s40, s2, 3\ns_add_u32 s40, s40, s{sWAVE}\ns_lshl_b32 s40, s40, 4\ns_add_u32 s40, s40, {STAMP+0x10000}")
            A(f"s_mov_b64 exec, 1\nv_mov_b32 v5, s40\nv_mov_b32 v6, s64\nv_mov_b32 v7, s96\nv_mov_b32 v8, s98\nglobal_store_dwordx3 v5, v[6:8], s[{sWS}:{sWS+1}]")
        if lite and role[0] == "C":
            A(f"s_waitcnt lgkmcnt(0)\ns_lshl_b32 s40, s2, 2\ns_add_u32 s40, s40, s{sWAVE}\ns_lshl_b32 s40, s40, 4\ns_add_u32 s40, s40, {STAMP}")
            A(f"s_mov_b64 exec, 1\nv_mov_b32 v5, s40\nv_mov_b32 v6, s64\nv_mov_b32 v7, s94\nv_mov_b32 v8, s{64+2*CNAMES.index(lx)}\nglobal_store_dwordx3 v5, v[6:8], s[{sWS}:{sWS+1}]")
        if not diag: return
        A("s_waitcnt lgkmcnt(0)")
        A(f"s_lshl_b32 s40, s2, 3\ns_add_u32 s40, s40, s{sWAVE}\ns_lshl_b32 s40, s40, 7\ns_add_u32 s40, s40, {STAMP}")
        A("s_mov_b64 exec, 1\nv_mov_b32 v5, s40")
        for k in range(16):
            A(f"v_mov_b32 v6, s{64+2*k}\nglobal_store_dword v5, v6, s[{sWS}:{sWS+1}] offset:{4*k}")
        for k in range(4):
            A(f"v_mov_b32 v6, s{60+k}\nglobal_store_dword v5, v6, s[{sWS}:{sWS+1}] offset:{80+4*k}")
        for k in range(4):
            A(f"v_mov_b32 v6, s{96+k}\nglobal_store_dword v5, v6, s[{sWS}:{sWS+1}] offset:{64+4*k}")

    K = NAME + "_kernel"
    A(f"{K}:")
    stamp("start")
    A("s_load_dwordx16 s[4:19], s[0:1], 0")
    if cpf:
        A(f"s_getpc_b64 s[40:41]\nv_lshlrev_b32 v5, 4, v0\nglobal_load_dword v207, v5, s[40:41] offset:{cpf}")
    def karg2(): A("s_load_dwordx4 s[20:23], s[0:1], 64\ns_load_dwordx2 s[24:25], s[0:1], 80\ns_load_dwordx2 s[26:27], s[0:1], 96")
    A("v_lshrrev_b32 v1, 6, v0\nv_and_b32 v0, 63, v0")
    A(f"s_lshr_b32 s{sJ}, s2, 3\ns_and_b32 s{sXC}, s2, 7")
    A(f"v_readfirstlane_b32 s{sWAVE}, v1")
    A(f"s_cmp_ge_u32 s{sJ}, 32\ns_cbranch_scc1 L_end")
    A("v_and_b32 v1, 15, v0\nv_lshrrev_b32 v2, 4, v0")
    if diag:
        for k in range(1, 18): A(f"s_mov_b64 s[{64+2*k}:{65+2*k}], 0")
        A("s_mov_b64 s[60:61], 0\ns_mov_b64 s[62:63], 0")
    A(f"s_cmp_lt_u32 s{sWAVE}, 4\ns_cbranch_scc1 L_C")
    entry = A.L; A.L = []
    A(".p2align 8\nL_C:")
    A(f"v_bfe_u32 v3, v0, 3, 1\nv_and_b32 v4, 7, v0\ns_cmp_ge_u32 s{sWAVE}, 2\ns_cbranch_scc1 L_Cnoffn")

    MASK = 10; vTG = 14
    XS, XR, F, XO, W, ACC = 16, 24, 32, 48, 112, 176
    B1R = 180
    XF = 184
    FIN = 200
    def masks():
        A("v_and_b32 v5, 3, v0\nv_lshlrev_b32 v5, 4, v5\nv_mov_b32 v6, 0xffff\nv_mov_b32 v7, 0\nv_lshlrev_b64 v[6:7], v5, v[6:7]")
        A("v_cmp_gt_u32 vcc, 4, v4")
        A(f"v_cndmask_b32 v{MASK}, 0, v6, vcc\nv_cndmask_b32 v{MASK+1}, 0, v7, vcc")
        A(f"v_cndmask_b32 v{MASK+2}, v6, 0, vcc\nv_cndmask_b32 v{MASK+3}, v7, 0, vcc")
    A(f"s_sub_u32 s33, 2, s{sWAVE}\ns_lshr_b32 s40, s{sJ}, s33\ns_lshl_b32 s41, s40, s33\ns_sub_u32 s41, s{sJ}, s41\ns_lshl_b32 s42, s{sXC}, s33\ns_add_u32 s41, s41, s42")
    A(f"s_movk_i32 s32, 8192\ns_cmp_eq_u32 s{sWAVE}, 1\ns_cmovk_i32 s32, 3584")
    A("s_add_u32 s34, s33, 2\ns_lshl_b32 s35, s32, s34\ns_mul_i32 s39, s40, s35\ns_lshl_b32 s39, s39, 2\ns_lshl_b32 s42, s41, 8\ns_add_u32 s39, s39, s42")
    A("v_lshl_add_u32 v5, v2, 3, v4\nv_lshlrev_b32 v5, 5, v5\nv_lshl_add_u32 v5, v3, 10, v5")
    A("v_lshl_add_u32 v6, s40, 2, v2\ns_add_u32 s34, s33, 3\nv_lshlrev_b32 v6, s34, v6\nv_lshl_add_u32 v6, v3, 10, v6")
    A("s_sub_u32 s36, s33, 1\ns_lshl_b32 s36, s36, 4\nv_add_u32 v7, s36, v6")
    A("v_mul_lo_u32 v8, v2, s35\nv_lshl_add_u32 v8, v1, 4, v8")
    A(f"s_mul_i32 s44, s{sXC}, s{sWAVE}\ns_cmp_eq_u32 s44, 7\ns_cbranch_scc1 L_Cnoffn")
    A(f"s_cmp_eq_u32 s{sWAVE}, 1\ns_waitcnt lgkmcnt(0)")
    if not ackwait or lite: stamp("first")
    pr(1)
    A(f"global_load_dwordx4 {v(XS,4)}, v5, s[{sX}:{sX+1}]\nglobal_load_dwordx4 {v(XS+4,4)}, v5, s[{sX}:{sX+1}] offset:16")
    A(f"s_cselect_b64 s[42:43], s[{sW1}:{sW1+1}], s[{sWQ}:{sWQ+1}]")
    A(f"global_load_dwordx4 {v(XR,4)}, v6, s[{sX}:{sX+1}]\nglobal_load_dwordx4 {v(XR+4,4)}, v7, s[{sX}:{sX+1}]")
    addbase(42, "s39")
    for t in range(16):
        if t == 8: A(f"s_cmp_eq_u32 s{sWAVE}, 1\ns_cbranch_scc1 L_Cwdone")
        A(f"global_load_dwordx4 {v(W+4*t,4)}, v8, s[42:43] {nt}")
        if t != 15: addbase(42, "s32")
    A("L_Cwdone:")
    karg2()
    pr(0)
    A("s_barrier")
    stamp("issued")
    A(f"s_waitcnt lgkmcnt(0)\ns_load_dword s{sT}, s[{sWS}:{sWS+1}], 0")
    if prioC: A(f"s_setprio {prioC}")
    A(f"s_lshl_b32 s37, s41, 3\ns_add_u32 s37, s37, s40\ns_lshl_b32 s37, s37, 9\ns_add_u32 s37, s37, {QP}\ns_mov_b32 s38, {32*8*512}")
    A(f"s_cmp_eq_u32 s{sWAVE}, 0\ns_cbranch_scc1 L_Cpa")
    A(f"s_mul_i32 s37, s40, 7168\ns_lshl_b32 s42, s41, 9\ns_add_u32 s37, s37, s42\ns_add_u32 s37, s37, {HP}\ns_mov_b32 s38, {16*7168}")
    A("L_Cpa:")
    A("v_and_b32 v5, 1, v2\nv_lshl_add_u32 v9, v5, 4, s37\nv_lshl_add_u32 v9, v1, 5, v9\nv_lshrrev_b32 v5, 1, v2\nv_mad_u32_u24 v9, v5, s38, v9")
    if preQ: A(f"global_load_dwordx4 {v(XF,4)}, v9, s[{sWS}:{sWS+1}] sc1")
    A("L_Cmask:")
    masks()
    get_tag()
    A(f"v_mov_b32 v{vTG}, s{sT}\nv_mov_b32 v{vTG+1}, {TAGM}")
    A(f"s_cmp_eq_u32 s{sWAVE}, 1\ns_cbranch_scc1 L_Cw8\ns_waitcnt vmcnt({16+preQ})\ns_branch L_Cw\nL_Cw8:\ns_waitcnt vmcnt({8+preQ})\nL_Cw:")
    unpack(F, XS, 8)
    A(f"v_add_f32 v5, v{F}, v{F+1}\nv_add_f32 v6, v{F+2}, v{F+3}")
    for i in range(4, 16, 2): A(f"v_add_f32 v5, v5, v{F+i}\nv_add_f32 v6, v6, v{F+i+1}")
    A("v_add_f32 v5, v5, v6")
    allred([5], "v_add_f32", [0, 1, 2, 4, 5], 6)
    A("v_mul_f32 v5, 0x3b000000, v5")
    for i in range(16): A(f"v_sub_f32 v{F+i}, v{F+i}, v5")
    A(f"v_mul_f32 v6, v{F}, v{F}\nv_mul_f32 v7, v{F+1}, v{F+1}")
    for i in range(2, 16, 2): A(f"v_fmac_f32 v6, v{F+i}, v{F+i}\nv_fmac_f32 v7, v{F+i+1}, v{F+i+1}")
    A("v_add_f32 v6, v6, v7")
    allred([6], "v_add_f32", [0, 1, 2, 4, 5], 7)
    A("v_mul_f32 v6, 0x3b000000, v6")
    bf16r(5, 5); bf16r(6, 6)
    A("v_add_f32 v6, 0x3727c5ac, v6"); bf16r(6, 6)
    A("v_sqrt_f32 v6, v6"); bf16r(6, 6)
    A("v_rcp_f32 v6, v6")
    unpack(F, XR, 8)
    for i in range(16): A(f"v_sub_f32 v{F+i}, v{F+i}, v5")
    for i in range(8): A(f"v_cvt_pk_bf16_f32 v{XR+i}, v{F+2*i}, v{F+2*i+1}")
    unpack(F, XR, 8)
    for i in range(16): A(f"v_mul_f32 v{F+i}, v{F+i}, v6")
    for t in range(16):
        if t == 8: A(f"s_cmp_eq_u32 s{sWAVE}, 1\ns_cbranch_scc1 L_Cd8")
        delta(XO + 4*t, F + t, MASK, 4, 5)
    A("L_Cd8:")
    if warmLN: A(f"s_cmp_ge_u32 s{sWAVE}, 2\ns_cbranch_scc1 L_C23b")
    stamp("LNdone")
    A(f"s_cmp_eq_u32 s{sWAVE}, 1\ns_cbranch_scc0 L_Cl0\ns_waitcnt vmcnt({preQ})\nL_Cl0:")
    for t in range(16):
        if t == 8: A(f"s_cmp_eq_u32 s{sWAVE}, 1\ns_cbranch_scc1 L_Cm8")
        if t % 4 == 0: A(f"s_waitcnt vmcnt({12 - t + preQ})")
        A(f"v_mfma_f32_16x16x32_bf16 {v(ACC,4)}, {v(XO+4*t,4)}, {v(W+4*t,4)}, {v(ACC,4) if t else 0}")
    A("L_Cm8:\ns_nop 7")
    A("v_mov_b32 v5, 0xff")
    for i in range(4): A(f"v_add_u32 v{ACC+i}, 0x80, v{ACC+i}")
    for i in range(4): A(f"v_bfi_b32 v{ACC+i}, v5, v{vTG}, v{ACC+i}")
    store(9, ACC, 4, sWS, qst)
    A(f"v_mov_b32 v{B1R+2}, v9")
    stamp("pub1")
    if not trig:
        A(f"s_cmp_eq_u32 s{sWAVE}, 0\ns_cbranch_scc0 L_Cmid\nv_mov_b32 v5, 0\nv_mov_b32 v6, 1\nds_write_b32 v5, v6 offset:{L_FT}")
    A("s_branch L_Cmid")

    A(f"L_Cnoffn:\nv_mov_b32 v9, 0\nv_mov_b32 v{B1R+2}, 0")
    karg2()
    A(f"v_mov_b32 v5, 0\nv_and_b32 v6, 31, v0\nv_lshlrev_b32 v6, 2, v6\nds_write_b32 v6, v5 offset:{L_FT}")
    A("s_waitcnt lgkmcnt(0)"); pr(1); pr(0); A("s_barrier")
    A(f"s_load_dword s{sT}, s[{sWS}:{sWS+1}], 0")
    wsb()
    if warmLN:
        A(f"s_cmp_eq_u32 s{sWAVE}, 2\ns_cbranch_scc1 L_Cw\nL_C23b:")
    get_tag(False)
    A(f"v_mov_b32 v{vTG}, s{sT}\nv_mov_b32 v{vTG+1}, {TAGM}")
    A(f"s_cmp_eq_u32 s{sWAVE}, 3\ns_cbranch_scc0 L_Cnoid")
    A(f"s_lshl_b32 s40, s{sXC}, 5\ns_add_u32 s40, s40, s{sJ}\ns_lshl_b32 s40, s40, 2\ns_add_u32 s40, s40, {IDS}")
    A(f"v_mov_b32 v5, s40\nv_mov_b32 v6, s{sID}\ns_mov_b64 exec, 1\nglobal_store_dword v5, v6, s[{sWS}:{sWS+1}] sc1\ns_mov_b64 exec, -1")
    if dirty:
        A("s_lshl_b32 s40, s2, 15\ns_add_u32 s40, s40, 0x1000000\nv_lshl_add_u32 v5, v0, 4, s40")
        for k in range(dirty): A(f"global_store_dwordx4 v5, v[16:19], s[{sWS}:{sWS+1}]\nv_add_u32 v5, 1024, v5")
    A("L_Cnoid:")
    masks()

    A("L_Cmid:")
    QG, QF, SC, KA, MA, KF = XO, XO + 16, XO + 32, XO + 48, XO + 52, W
    A(f"s_cmp_lt_u32 s{sXC}, 7\ns_cselect_b32 s45, 2, 0\ns_cmp_lt_u32 s{sWAVE}, s45\ns_cselect_b32 s45, 1, 0")
    A(f"s_lshr_b32 s40, s{sJ}, 4\ns_lshl_b32 s40, s40, 5\ns_lshl_b32 s41, s{sXC}, 2\ns_add_u32 s40, s40, s41\ns_add_u32 s40, s40, s{sWAVE}")
    A(f"s_lshl_b32 s40, s40, 12\ns_add_u32 s40, s40, {QP}\nv_lshl_add_u32 v{MA}, v0, 4, s40")
    if not trig: A(f"s_add_u32 s58, s{sWS}, s40\ns_addc_u32 s59, s{sWS+1}, 0")
    A(f"s_mul_i32 s40, s{sWAVE}, {L_QSTR}\nv_and_b32 v5, 31, v0\nv_lshl_add_u32 v{MA+1}, v5, 3, s40\nv_lshrrev_b32 v6, 5, v0\nv_lshl_add_u32 v{MA+1}, v6, 2, v{MA+1}")
    A(f"s_lshl_b32 s40, s{sXC}, 7\ns_add_u32 s40, s40, {IDS}\nv_lshl_add_u32 v{MA+2}, v5, 2, s40")
    A(f"v_and_b32 v5, 3, v1\nv_lshlrev_b32 v5, 10, v5\nv_lshrrev_b32 v6, 2, v1\nv_lshl_add_u32 v5, v6, 8, v5\ns_lshl_b32 s40, s{sWAVE}, 14\ns_add_u32 s40, s40, {L_K}\nv_add_u32 v5, s40, v5")
    for u in range(4):
        A(f"v_add_u32 v7, {4*u}, v2\nv_xor_b32 v7, v7, v1\nv_lshl_add_u32 v{KA+u}, v7, 4, v5")
    A(f"v_mul_u32_u24 v{MA+3}, {L_QSTR}, v6\nv_lshl_add_u32 v{MA+3}, v2, 4, v{MA+3}")
    A(f"s_lshl_b32 s40, s{sWAVE}, 2\nv_lshl_add_u32 v{MA+4}, v6, 4, s40\nv_mov_b32 v{MA+7}, s40\nv_mov_b32 v{MA+6}, 0")
    A(f"s_lshl_b32 s40, s{sWAVE}, 10\nv_lshl_add_u32 v{MA+5}, v0, 4, s40")
    A("v_and_b32 v5, 1, v0\nv_cmp_ne_u32 s[54:55], 0, v5\nv_and_b32 v5, 2, v0\nv_cmp_ne_u32 s[56:57], 0, v5")
    A(f"s_lshl_b32 s40, s{sXC}, 3\ns_lshr_b32 s41, s{sJ}, 2\ns_add_u32 s40, s40, s41\ns_lshl_b32 s40, s40, 1\ns_add_u32 s40, s40, s{sWAVE}")
    A(f"s_lshl_b32 s41, s40, 6\ns_add_u32 s41, s41, {HP}\nv_mul_u32_u24 v6, 7168, v4\nv_lshl_add_u32 v6, v2, 4, v6\nv_add_u32 v6, s41, v6")
    A(f"v_mul_u32_u24 v8, {16*7168}, v3\nv_add_u32 v{MA+9}, v6, v8\nv_add_u32 v{MA+10}, {8*7168}, v{MA+9}")
    A(f"s_lshl_b32 s41, s40, 5\nv_lshl_add_u32 v{MA+8}, v2, 3, s41")
    A(f"s_lshl_b32 s40, s{sXC}, 5\ns_add_u32 s40, s40, s{sJ}")
    A("s_lshr_b32 s41, s40, 6\ns_lshl_b32 s41, s41, 7\ns_and_b32 s42, s40, 15\ns_lshl_b32 s42, s42, 3\ns_add_u32 s41, s41, s42")
    A("s_bfe_u32 s42, s40, 0x10004\ns_lshl_b32 s42, s42, 2\ns_add_u32 s41, s41, s42")
    A("s_bfe_u32 s42, s40, 0x10005\ns_lshl_b32 s42, s42, 9\ns_add_u32 s42, s42, s41")
    A(f"v_add_lshl_u32 v{FIN+2}, v2, s42, 1\nv_add_lshl_u32 v7, v2, s41, 1")
    A(f"global_load_ushort v{FIN}, v{FIN+2}, s[{sX}:{sX+1}]\nglobal_load_ushort v{FIN+1}, v7, s[{sB2}:{sB2+1}]")
    W2R, WOR, G = W, W + 16, W + 32
    A(f"s_and_b32 s40, s{sJ}, 3\ns_lshl_b32 s40, s40, 8\ns_lshr_b32 s41, s{sJ}, 2")
    A(f"s_lshl_b32 s42, s{sXC}, 3\ns_add_u32 s47, s42, s41")
    A(f"s_lshl_b32 s42, s47, 1\ns_add_u32 s42, s42, s{sWAVE}\ns_lshl_b32 s42, s42, 14\ns_add_u32 s42, s42, s40")
    addbase(sW2, "s42")
    A(f"s_lshl_b32 s42, s47, 2\ns_add_u32 s42, s42, s{sWAVE}\ns_lshl_b32 s43, s42, 14\ns_add_u32 s43, s43, s40")
    addbase(sWO, "s43")
    A(f"v_lshlrev_b32 v{FIN+5}, 12, v2\nv_lshl_add_u32 v{FIN+5}, v1, 4, v{FIN+5}")
    A(f"s_lshl_b32 s42, s42, 11\ns_add_u32 s42, s42, {OP}\nv_lshl_add_u32 v{XR}, v0, 4, s42")
    A(f"s_lshr_b32 s42, s47, 1\ns_lshl_b32 s42, s42, 9\ns_add_u32 s42, s42, {ML}\nv_lshl_add_u32 v{XR+2}, v1, 4, s42")
    A(f"s_lshl_b32 s42, s{sXC}, 16\ns_bfe_u32 s43, s{sJ}, 0x30002\ns_lshl_b32 s43, s43, 8\ns_add_u32 s42, s42, s43\ns_lshl_b32 s43, s{sWAVE}, 6\ns_add_u32 s42, s42, s43\ns_add_u32 s42, s42, {OP}")
    A(f"v_lshl_add_u32 v7, v3, 4, v4\nv_lshlrev_b32 v7, 11, v7\nv_lshl_add_u32 v7, v2, 4, v7\nv_add_u32 v{FIN+3}, s42, v7\nv_add_u32 v{FIN+4}, {8*2048}, v{FIN+3}")
    A(f"s_and_b32 s40, s{sJ}, 3\ns_lshl_b32 s40, s40, 6\ns_add_u32 s40, s40, s47\ns_mul_i32 s40, s40, {SPSTR}")
    A(f"s_cmp_eq_u32 s{sWAVE}, 0\ns_cselect_b32 s41, 0, {SPF-SPS}\ns_add_u32 s40, s40, s41\ns_add_u32 s40, s40, {SPS}\nv_lshl_add_u32 v{XR+3}, v0, 4, s40")
    A(f"s_lshl_b32 s40, s{sXC}, 5\ns_add_u32 s40, s40, s{sJ}\ns_lshr_b32 s41, s40, 6\ns_mul_i32 s41, s41, {64*SPSTR}\ns_and_b32 s40, s40, 63\ns_lshl_b32 s40, s40, 4")
    A(f"s_add_u32 s40, s40, s41\ns_add_u32 s40, s40, {SPS}\nv_mul_u32_u24 v{XR+4}, {SPSTR}, v0\nv_add_u32 v{XR+4}, s40, v{XR+4}\nv_add_u32 v{XR+5}, {SPF-SPS}, v{XR+4}")
    A(f"s_lshl_b32 s40, s{sWAVE}, 10\nv_lshl_add_u32 v{XR+6}, v0, 4, s40\nv_lshlrev_b32 v{XR+7}, 4, v0")
    if trig: waitflag("L_wfT", L_FT, 4, F, MA+6)
    else:
        waitflag("L_wfT", L_FT, 1, F, MA+6)
        A(f"s_mov_b32 s{sCNT}, 0\nL_sq:")
        for k in range(8): A(f"s_load_dword s{32+k}, s[58:59], {512*k} glc")
        A(f"s_add_u32 s{sCNT}, s{sCNT}, 1\ns_waitcnt lgkmcnt(0)")
        A(f"s_xor_b32 s40, s32, s{sT8}")
        for k in range(1, 8): A(f"s_xor_b32 s41, s{32+k}, s{sT8}\ns_or_b32 s40, s40, s41")
        A(f"s_and_b32 s40, s40, 0xff\ns_cbranch_scc0 L_sq_x\ns_cmp_lt_u32 s{sCNT}, 64\ns_cbranch_scc1 L_sq\nL_sq_x:")
        if diag: A(f"s_mov_b32 s99, s{sCNT}")
    stamp("FT")
    if smtest:
        A(f"s_lshl_b32 s41, s2, 9\ns_add_u32 s41, s41, {QP}\ns_add_u32 s42, s{sWS}, s41\ns_addc_u32 s43, s{sWS+1}, 0")
        A("s_waitcnt lgkmcnt(0)\ns_memtime s[58:59]\ns_waitcnt lgkmcnt(0)\ns_load_dword s41, s[42:43], 0 glc\ns_waitcnt lgkmcnt(0)\ns_memtime s[100:101]\ns_waitcnt lgkmcnt(0)\ns_sub_u32 s99, s100, s58")
        A("s_memtime s[58:59]\ns_waitcnt lgkmcnt(0)\ns_load_dword s41, s[42:43], 0 glc\ns_waitcnt lgkmcnt(0)\ns_memtime s[100:101]\ns_waitcnt lgkmcnt(0)\ns_sub_u32 s41, s100, s58\ns_lshl_b32 s41, s41, 16\ns_or_b32 s99, s99, s41")
    QLD = [(QG + 4*k, 4, MA, 1024*k) for k in range(4)]
    HLD = [(XS, 4, MA+9, 0), (XS+4, 4, MA+10, 0)]
    A(f"global_load_dword v{MA+11}, v{MA+2}, s[{sWS}:{sWS+1}] sc1")
    if not noq: issue(QLD, sWS, qld)
    def hissue(lab):
        A(f"s_cmp_eq_u32 s45, 0\ns_cbranch_scc1 {lab}")
        if not noh: issue(HLD, sWS, qld)
        A(f"global_load_dwordx2 {v(B1R,2)}, v{MA+8}, s[{sB1}:{sB1+1}]")
    if hlate: A("s_waitcnt vmcnt(0)")
    else:
        hissue("L_Cnoh")
        A("s_waitcnt vmcnt(3)\ns_branch L_Cnoh1\nL_Cnoh:\ns_waitcnt vmcnt(0)\nL_Cnoh1:")
    A(f"v_cmp_ne_u32 vcc, s{sID}, v{MA+11}\ns_mov_b32 s53, 1\ns_cbranch_vccz L_Cnob\ns_mov_b32 s53, 3")
    A(f"s_cmp_eq_u32 s{sWAVE}, 0\ns_cselect_b32 s40, 1, s45\ns_cmp_eq_u32 s40, 0\ns_cbranch_scc1 L_Cnob")
    store(B1R+2, ACC, 4, sWSB, "sc1")
    A("L_Cnob:")
    if not noq: poll("L_pollQ", QLD, 7, QLD, first=63, narrow=True)
    stamp("qgath")
    for i in range(4): A(f"v_add_f32 v{QG+i}, v{QG+i}, v{QG+4+i}\nv_add_f32 v{QG+8+i}, v{QG+8+i}, v{QG+12+i}")
    for i in range(4): A(f"v_add_f32 v{QG+i}, v{QG+i}, v{QG+8+i}")
    for i in range(2): A(f"v_permlane32_swap_b32 v{QG+i}, v{QG+2+i}")
    for i in range(2): A(f"v_add_f32 v{QG+i}, v{QG+i}, v{QG+2+i}")
    A(f"v_cvt_pk_bf16_f32 v5, v{QG}, v{QG+1}\nds_write_b32 v{MA+1}, v5 offset:{L_Q}\nv_mov_b32 v6, s53")
    A(f"s_waitcnt lgkmcnt(0)\nds_write_b32 v{MA+7}, v6 offset:{L_FQ}")
    for i in range(4): A(f"v_mov_b32 v{ACC+i}, 0")
    if hlate: hissue("L_Cnoh"); A("L_Cnoh:")
    waitflag("L_wfK", L_FK, 1, F, MA+7)
    stamp("FK")
    for T in range(4):
        for u in range(4): A(f"ds_read_b128 {v(KF+16*T+4*u,4)}, v{KA+u} offset:{4096*T}")
    waitflag("L_wfq", L_FQ, 4, F, MA+6)
    for u in range(4): A(f"ds_read_b128 {v(QF+4*u,4)}, v{MA+3} offset:{L_Q+64*u}")
    for u in range(4):
        A(f"s_waitcnt lgkmcnt({3-u})")
        for T in range(4):
            A(f"v_mfma_f32_16x16x32_bf16 {v(SC+4*T,4)}, {v(KF+16*T+4*u,4)}, {v(QF+4*u,4)}, {v(SC+4*T,4) if u else 0}")
    E = F
    for T in range(4):
        A(f"v_cndmask_b32 v{SC+4*T}, v{SC+4*T}, v{SC+4*T+1}, s[54:55]\nv_cndmask_b32 v{SC+4*T+2}, v{SC+4*T+2}, v{SC+4*T+3}, s[54:55]")
    for T in range(4): A(f"v_cndmask_b32 v{E+T}, v{SC+4*T}, v{SC+4*T+2}, s[56:57]")
    A(f"v_cvt_pk_bf16_f32 v8, v{E}, v{E+1}\nv_cvt_pk_bf16_f32 v9, v{E+2}, v{E+3}")
    unpack(E, 8, 2)
    for i in range(4): A(f"v_mul_f32 v{E+i}, {SCALE}, v{E+i}")
    A(f"v_cvt_pk_bf16_f32 v8, v{E}, v{E+1}\nv_cvt_pk_bf16_f32 v9, v{E+2}, v{E+3}")
    unpack(E, 8, 2)
    A(f"v_max3_f32 v8, v{E}, v{E+1}, v{E+2}\nv_max_f32 v8, v8, v{E+3}")
    allred([8], "v_max_f32", [0, 1, 4, 5], 9)
    A(f"ds_write_b32 v{MA+4}, v8 offset:{L_MX}")
    A(f"v_mul_f32 v9, {LOG2E ^ 0x80000000}, v8\ns_mov_b32 s40, {LOG2E}")
    for i in range(4): A(f"v_fma_f32 v{E+i}, v{E+i}, s40, v9")
    for i in range(4): A(f"v_exp_f32 v{E+i}, v{E+i}")
    for i in range(4): A(f"v_cvt_pk_bf16_f32 v{SC+i}, v{E+i}, v{E+i}")
    A(f"ds_write_b128 v{MA+5}, {v(SC,4)} offset:{L_P}")
    A(f"v_add_f32 v8, v{E}, v{E+1}\nv_add_f32 v9, v{E+2}, v{E+3}\nv_add_f32 v8, v8, v9")
    A(f"s_waitcnt lgkmcnt(0)\nds_write_b32 v{MA+7}, v6 offset:{L_FP}")
    stamp("pready")
    allred([8], "v_add_f32", [0, 1, 4, 5], 9)
    A(f"ds_write_b32 v{MA+4}, v8 offset:{L_LW}")
    waitflag("L_wfV", L_FV, 4, F, MA+6)
    stamp("FV")
    OLD = [(G+8, 4, XR+2, 0), (G+12, 4, XR+2, 256), (G, 4, XR, 0), (G+4, 4, XR, 1024)]
    if pretouch: issue(OLD, sWS)
    def ldwo():
        for i in range(4): A(f"global_load_dwordx4 {v(WOR+4*i,4)}, v{FIN+5}, s[{sWO}:{sWO+1}] offset:{1024*i} {nt}")
    if wofirst: ldwo()
    A("s_cmp_eq_u32 s45, 0\ns_cbranch_scc1 L_Cnow2")
    for i in range(4): A(f"global_load_dwordx4 {v(W2R+4*i,4)}, v{FIN+5}, s[{sW2}:{sW2+1}] offset:{1024*i} {nt}")
    A("L_Cnow2:")
    if not wofirst: ldwo()
    A("s_cmp_eq_u32 s45, 0\ns_cbranch_scc1 L_Cnoh2")
    if not noh: poll("L_pollH", HLD, 7, HLD, first=8 + 4*bool(pretouch), narrow=True)
    for i in range(4): A(f"v_add_f32 v{XS+i}, v{XS+i}, v{XS+4+i}")
    allred([XS, XS+1, XS+2, XS+3], "v_add_f32", [0, 1, 2], 7)
    A(f"v_cvt_pk_bf16_f32 v5, v{XS}, v{XS+1}\nv_cvt_pk_bf16_f32 v6, v{XS+2}, v{XS+3}")
    unpack(XS, 5, 2); unpack(XS+4, B1R, 2)
    for i in range(4): A(f"v_add_f32 v{XS+i}, v{XS+i}, v{XS+4+i}")
    A(f"v_cvt_pk_bf16_f32 v5, v{XS}, v{XS+1}\nv_cvt_pk_bf16_f32 v6, v{XS+2}, v{XS+3}")
    unpack(XS, 5, 2)
    for i in range(4): A(f"v_max_f32 v{XS+i}, 0, v{XS+i}")
    for i in range(4): A(f"v_mul_f32 v{XS+i}, v{XS+i}, v{XS+i}")
    for i in range(4): delta(XF + 4*i, XS + i, MASK, 4, 5)

    A("L_Cnoh2:")
    A("s_waitcnt lgkmcnt(0)\ns_barrier")
    stamp("barC")
    A("s_cmp_eq_u32 s45, 0\ns_cbranch_scc1 L_Cnoffn2")
    A(f"s_waitcnt vmcnt({0 if wofirst else 4})")
    for i in range(4): A(f"v_mfma_f32_16x16x32_bf16 {v(ACC,4)}, {v(XF+4*i,4)}, {v(W2R+4*i,4)}, {v(ACC,4)}")
    A("L_Cnoffn2:")
    if owait is not None: A(f"s_waitcnt vmcnt({owait})")
    stamp("wohere")
    poll("L_pollO", OLD, 7, [(G+8, 4, XR+2, 0), (G+12, 4, XR+2, 256), (G, 4, FIN+3, 0), (G+4, 4, FIN+4, 0)])
    stamp("gathO")
    A(f"ds_write_b128 v{XR+6}, {v(ACC,4)} offset:{L_RED+4096}")
    m0, l0, m1, l1 = G+8, G+9, G+12, G+13
    A(f"v_max_f32 v5, v{m0}, v{m1}")
    allred([5], "v_max_f32", [0, 1, 2], 7)
    A(f"v_sub_f32 v{m0}, v{m0}, v5\nv_sub_f32 v{m1}, v{m1}, v5\nv_mul_f32 v{m0}, {LOG2E}, v{m0}\nv_mul_f32 v{m1}, {LOG2E}, v{m1}")
    A(f"v_exp_f32 v{m0}, v{m0}\nv_exp_f32 v{m1}, v{m1}")
    A(f"v_mul_f32 v{l0}, v{l0}, v{m0}")
    for i in range(4): A(f"v_mul_f32 v{G+i}, v{G+i}, v{m0}")
    A(f"v_fmac_f32 v{l0}, v{l1}, v{m1}")
    for i in range(4): A(f"v_fmac_f32 v{G+i}, v{G+4+i}, v{m1}")
    allred([l0, G, G+1, G+2, G+3], "v_add_f32", [0, 1, 2], 7)
    A(f"v_rcp_f32 v{l0}, v{l0}")
    for i in range(4): A(f"v_mul_f32 v{G+i}, v{G+i}, v{l0}")
    for i in range(4): delta(XO + 4*i, G + i, MASK, 4, 5 + (i & 1))
    for i in range(4): A(f"v_mfma_f32_16x16x32_bf16 {v(F,4)}, {v(XO+4*i,4)}, {v(WOR+4*i,4)}, {v(F,4) if i else 0}")
    A(f"ds_write_b128 v{XR+6}, {v(F,4)} offset:{L_RED}")
    A("s_waitcnt lgkmcnt(0)\ns_barrier")
    if ackwait: A(f"s_cmp_ge_u32 s{sWAVE}, 2\ns_cbranch_scc1 L_Cdone")
    else: A(f"s_cmp_eq_u32 s{sWAVE}, 2\ns_cbranch_scc1 L_Cfin\ns_cmp_eq_u32 s{sWAVE}, 3\ns_cbranch_scc1 L_Cdone")
    A(f"s_cmp_eq_u32 s{sWAVE}, 1\ns_cbranch_scc1 L_Cpubf")
    for i in range(4): A(f"ds_read_b128 {v(G+4*i,4)}, v{XR+7} offset:{L_RED+1024*i}")
    A("s_waitcnt lgkmcnt(0)")
    for i in range(4): A(f"v_add_f32 v{G+i}, v{G+i}, v{G+8+i}\nv_add_f32 v{G+4+i}, v{G+4+i}, v{G+12+i}")
    A("s_branch L_Cpub")
    A("L_Cpubf:")
    for i in range(2): A(f"ds_read_b128 {v(G+4*i,4)}, v{XR+7} offset:{L_RED+4096+1024*i}")
    A("s_waitcnt lgkmcnt(0)")
    A("L_Cpub:")
    for i in range(4): A(f"v_add_f32 v{G+i}, v{G+i}, v{G+4+i}")
    tag(G, 4, vTG)
    store(XR+3, G, 4, sWS, "sc1")
    stamp("pubS")
    if ackwait: A(f"s_cmp_eq_u32 s{sWAVE}, 1\ns_cbranch_scc1 L_Cdone\ns_waitcnt vmcnt(0)")
    else: A("s_branch L_Cdone")
    A("L_Cfin:")
    if fsleep: A(f"s_sleep {fsleep}")
    poll("L_pollS", [(G, 4, XR+4, 0), (G+4, 4, XR+5, 0)], 7)
    stamp("gathS")
    for a in (G, G+1, G+4, G+5): A(f"v_permlane32_swap_b32 v{a}, v{a+2}")
    for a in (G, G+1, G+4, G+5): A(f"v_add_f32 v{a}, v{a}, v{a+2}")
    for a in (G, G+4): A(f"v_permlane16_swap_b32 v{a}, v{a+1}")
    for a in (G, G+4): A(f"v_add_f32 v{a}, v{a}, v{a+1}")
    allred([G, G+4], "v_add_f32", [0, 1, 2, 3], 7)
    A(f"v_cvt_pk_bf16_f32 v5, v{G}, v{G+4}\nv_lshlrev_b32 v{FIN}, 16, v{FIN}\nv_lshlrev_b32 v{FIN+1}, 16, v{FIN+1}")
    A(f"v_and_b32 v6, 0xffff0000, v5\nv_lshlrev_b32 v5, 16, v5\nv_add_f32 v6, v6, v{FIN+1}")
    bf16r(6, 6)
    A(f"v_mul_f32 v7, {LOG2E ^ 0x80000000}, v6\nv_exp_f32 v7, v7\nv_add_f32 v7, 1.0, v7\nv_rcp_f32 v7, v7\nv_mul_f32 v6, v6, v7")
    bf16r(6, 6)
    A("v_mul_f32 v5, v5, v6"); bf16r(5, 5)
    A(f"v_add_f32 v5, v5, v{FIN}\nv_cvt_pk_bf16_f32 v5, v5, v5")
    if hops: A("s_branch L_hop0\nL_hopback:")
    A("s_mov_b32 exec_lo, 0x00010001\ns_mov_b32 exec_hi, 0x00010001")
    A(f"global_store_short v{FIN+2}, v5, s[{sOUT}:{sOUT+1}]")
    A("s_cmp_eq_u32 s2, 0\ns_cbranch_scc0 L_Cdone")
    A(f"s_mov_b64 exec, 1\nv_mov_b32 v5, 0\nglobal_store_dword v5, v{vTG}, s[{sWS}:{sWS+1}]")
    A("L_Cdone:")
    stamp("end")
    dump()
    A("s_endpgm")

    cpart = A.L; A.L = []
    role[0] = "S"
    KO, PM = 4, 12
    VV, KF, XP, A1, A2 = 32, 96, 112, 144, 148
    EA = 152
    sW = 33
    A(f"s_lshr_b32 s34, s2, 7\ns_lshl_b32 s34, s34, 3\ns_add_u32 s34, s34, s{sXC}\ns_lshl_b32 s34, s34, 23\ns_and_b32 s35, s{sJ}, 15")
    if pat == 0:
        A(f"s_lshl_b32 s35, s35, 2\ns_add_u32 s35, s35, s{sWAVE}\ns_lshl_b32 s35, s35, 12\ns_add_u32 s34, s34, s35\ns_add_u32 s34, s34, {28672*256 - 4*4096}")
    else:
        A(f"s_lshl_b32 s36, s{sWAVE}, 4\ns_add_u32 s35, s35, s36\ns_lshl_b32 s35, s35, 12\ns_add_u32 s34, s34, s35\ns_add_u32 s34, s34, {28672*256 - 64*4096}")
    A(f"v_lshlrev_b32 v14, 2, v2\nv_xor_b32 v14, v14, v1\nv_lshlrev_b32 v14, 4, v14\nv_lshl_add_u32 v{KO}, v2, 8, v14")
    for i in range(1, 4): A(f"v_xor_b32 v{KO+i}, {16*i}, v{KO}")
    A(f"s_lshl_b32 s36, s{sWAVE}, 14\ns_sub_u32 s36, s36, {4*16384 - L_K}")
    A("s_waitcnt lgkmcnt(0)"); pr(1)
    addbase(sK, "s34")
    def setup2():
        karg2()
        addbase(sV, "s34")
        A(f"s_sub_u32 s{sW}, s{sWAVE}, 4\nv_lshlrev_b32 v3, 4, v0\ns_lshl_b32 s37, s{sW}, 2\nv_mov_b32 v14, s37\nv_mov_b32 v15, 1")
        pr(0)
        A("s_barrier")
    if not head: setup2()
    stamp("first")
    later = Asm()
    B = later
    B(f"v_and_b32 v26, 3, v0\nv_lshlrev_b32 v26, 4, v26\nv_mov_b32 v{PM}, 0xffff\nv_mov_b32 v{PM+1}, 0\nv_lshlrev_b64 v[{PM}:{PM+1}], v26, v[{PM}:{PM+1}]")
    B(f"s_lshl_b32 s38, s{sW}, 10\nv_lshl_add_u32 v{EA+1}, v0, 4, s38")
    B(f"s_lshl_b32 s38, s{sW}, 11\nv_lshl_add_u32 v{EA+2}, v0, 4, s38")
    B(f"v_and_b32 v24, 1, v0\nv_lshlrev_b32 v24, 10, v24\nv_bfe_u32 v25, v0, 1, 4\nv_lshl_add_u32 v24, v25, 4, v24\ns_lshl_b32 s38, s{sW}, 8\nv_add_u32 v{EA+3}, s38, v24")
    B(f"s_lshl_b32 s38, s{sXC}, 2\ns_add_u32 s38, s38, s{sW}\ns_lshr_b32 s39, s{sJ}, 4\ns_and_b32 s40, s{sJ}, 7\ns_bfe_u32 s41, s{sJ}, 0x10003")
    B(f"s_lshl_b32 s39, s39, 7\ns_lshl_b32 s40, s40, 4\ns_add_u32 s39, s39, s40")
    B(f"s_lshl_b32 s40, s38, 14\ns_lshl_b32 s42, s41, 10\ns_add_u32 s40, s40, s42\ns_add_u32 s40, s40, s39\ns_add_u32 s40, s40, {OP}")
    B(f"v_bfe_u32 v24, v0, 2, 3\nv_lshlrev_b32 v24, 11, v24\nv_and_b32 v25, 3, v0\nv_lshl_add_u32 v24, v25, 8, v24\nv_add_u32 v{EA+4}, s40, v24")
    B(f"s_lshl_b32 s38, s38, 9\ns_lshl_b32 s41, s41, 8\ns_add_u32 s38, s38, s41\ns_add_u32 s38, s38, s39\ns_add_u32 s38, s38, {ML}\nv_mov_b32 v25, s38")
    B(f"v_cmp_gt_u32 vcc, 32, v0\ns_lshl_b32 s38, s{sXC}, 5\ns_add_u32 s38, s38, s{sJ}\nv_cndmask_b32 v{EA+4}, v25, v{EA+4}, vcc")
    B(f"s_lshl_b32 s38, s38, 2\ns_add_u32 s38, s38, s{sW}\ns_lshl_b32 s38, s38, 9\ns_add_u32 s38, s38, {OP}\nv_lshl_add_u32 v{EA+9}, v0, 4, s38\nv_cndmask_b32 v{EA+9}, v25, v{EA+9}, vcc")
    B(f"s_lshl_b32 s38, s{sW}, 4\nv_mov_b32 v{EA+6}, s38\nv_mov_b32 v{EA+8}, {TAGM}")
    chunks = [later.L[i::1] for i in (0,)][0]
    per = -(-len(chunks) // 8)
    cnt = [0]
    def after():
        cnt[0] += 1
        n = cnt[0]
        if n == head: setup2()
        if n == 13: A(f"s_waitcnt lgkmcnt(0)\ns_load_dword s{sT}, s[{sWS}:{sWS+1}], 0")
        if n == trig: A(f"ds_write_b32 v14, v15 offset:{L_FT}")
        if 4 <= n < 12:
            for line in chunks[(n-4)*per:(n-3)*per]: A(line)
        p = paceK if n <= 16 else (paceV if n - 16 <= paceVUntil else 0)
        if p and n >= p and n < 32: A(f"s_waitcnt vmcnt({p-1})")
        if n == 16: stamp("Kiss")
    for T in range(4):
        A(f"s_mov_b32 m0, s36\ns_add_u32 s36, s36, 4096")
        for i in range(4):
            A(f"global_load_lds_dwordx4 v{KO+i}, s[{sK}:{sK+1}] offset:{1024*i} {nt}"); after()
        if T < 3: addbase(sK, 262144)
    for n in range(16):
        A(f"global_load_dwordx4 {v(VV+4*n,4)}, v3, s[{sV}:{sV+1}] offset:{1024*(n&3)} {nt}"); after()
        if n == kpos: A(f"s_waitcnt vmcnt({n+1})\nds_write_b32 v14, v15 offset:{L_FK}")
        if n == fvpos and not woTrig: A(f"ds_write_b32 v14, v15 offset:{L_FV}")
        if n & 3 == 3 and n < 15: addbase(sV, 262144)
    stamp("issued")
    get_tag()
    A(f"v_mov_b32 v{EA+7}, s{sT}\ns_mov_b32 s36, {LOG2E}")
    waitflag("L_wfP", L_FP, 1, 4, 14)
    A(f"s_mov_b32 s40, s52\nds_read_b128 v[4:7], v{EA+1} offset:{L_P}\ns_waitcnt lgkmcnt(0)")
    for T in range(4):
        for i in range(4):
            for j in range(2):
                A(f"v_and_b32_dpp v{XP+2*(4*T+i)+j}, v{4+T}, v{PM+j} quad_perm:[{i},{i},{i},{i}] row_mask:0xf bank_mask:0xf")
    stamp("pready")
    for n in range(16):
        A(f"s_waitcnt vmcnt({15-n})")
        if woTrig == n + 1: A(f"ds_write_b32 v14, v15 offset:{L_FV}")
        A(f"v_mfma_f32_16x16x16_bf16 {v(A1,4)}, {v(XP+2*n,2)}, {v(VV+4*n,2)}, {v(A1,4) if n else 0}")
        A(f"v_mfma_f32_16x16x16_bf16 {v(A2,4)}, {v(XP+2*n,2)}, {v(VV+4*n+2,2)}, {v(A2,4) if n else 0}")
    stamp("PVdone")
    A(f"ds_write_b128 v{EA+2}, {v(A1,4)} offset:{L_O}\nds_write_b128 v{EA+2}, {v(A2,4)} offset:{L_O+1024}")
    A("s_waitcnt lgkmcnt(0)\ns_barrier")
    stamp("barC")
    A(f"ds_read_b128 v[16:19], v{EA+6} offset:{L_MX}\nds_read_b128 v[20:23], v{EA+6} offset:{L_LW}")
    for i in range(4): A(f"ds_read_b128 {v(KF+4*i,4)}, v{EA+3} offset:{L_O+2048*i}")
    A("s_waitcnt lgkmcnt(5)")
    A(f"v_max3_f32 v24, v16, v17, v18\nv_max_f32 v24, v24, v19\nv_mul_f32 v25, {LOG2E ^ 0x80000000}, v24")
    for i in range(4): A(f"v_fma_f32 v{16+i}, v{16+i}, s36, v25")
    for i in range(4): A(f"v_exp_f32 v{16+i}, v{16+i}")
    A("s_waitcnt lgkmcnt(3)")
    A("v_mul_f32 v25, v20, v16")
    for i in range(4): A(f"v_mul_f32 v{KF+i}, v{KF+i}, v16")
    A("v_fmac_f32 v25, v21, v17\nv_fmac_f32 v25, v22, v18\nv_fmac_f32 v25, v23, v19")
    for k in range(1, 4):
        A(f"s_waitcnt lgkmcnt({3-k})")
        for i in range(4): A(f"v_fmac_f32 v{KF+i}, v{KF+4*k+i}, v{16+k}")
    for i in range(2): A(f"v_cndmask_b32 v{KF+i}, v{24+i}, v{KF+i}, vcc")
    tag(KF, 4, EA+7)
    A("s_mov_b32 exec_hi, 1")
    store(EA+4, KF, 4, sWS)
    stamp("pub")
    A("s_cmp_eq_u32 s40, 1\ns_cbranch_scc1 L_Snob")
    store(EA+9, KF, 4, sWSB, "sc1")
    A("L_Snob:")
    dump()
    A("L_end:\ns_endpgm")
    A.L = entry + A.L + cpart
    if cpf: A(".fill 512, 4, 0xbf800000")
    for h in range(hops):
        A(f".p2align 10\nL_hop{h}:\ns_branch {'L_hop%d' % (h+1) if h + 1 < hops else 'L_hopback'}")

    head = (hdr or "") + f"; @launch grid=(256,1,1) block=(512,1,1) lds={LDS_BYTES}\n"
    head += f'.amdgcn_target "amdgcn-amd-amdhsa--gfx950"\n.text\n.globl {K}\n.p2align 8\n.type {K},@function\n'
    tail = f""".section .rodata,"a"
.p2align 6
.amdhsa_kernel {K}
  .amdhsa_next_free_vgpr 208
  .amdhsa_next_free_sgpr 102
  .amdhsa_accum_offset 208
  .amdhsa_group_segment_fixed_size 0
  .amdhsa_kernarg_size 104
  .amdhsa_user_sgpr_count 2
  .amdhsa_user_sgpr_kernarg_segment_ptr 1
  .amdhsa_system_sgpr_workgroup_id_x 1
  .amdhsa_float_denorm_mode_32 3
.end_amdhsa_kernel
"""
    return head + A.finish() + tail

def header():
    ref = open(f"cdna_kernels/{NAME}.s.ref").read().split("\n")
    return "\n".join(l for l in ref if l.startswith(";") and "@launch" not in l and not l.startswith("; Override") and not l.startswith("; grid=")) + "\n"

if __name__ == "__main__":
    out = sys.argv[1] if len(sys.argv) > 1 else f"cdna_kernels/{NAME}.s"
    open(out, "w").write(gen(hdr=header()))
```

```python
import sys, os
sys.path.insert(0, os.path.dirname(os.path.abspath(__file__)))
from asmlib import Asm
NAME = "recurrent_scan__sliding_block_cached__dense_activation_squared_relu__decode"

FLG = 0x300000
IDS = 0x1000
QP, HP, OP, ML, SPS, SPF, STAMP = 0x10000, 0x50000, 0x100000, 0x180000, 0x200000, 0x250000, 0x400000
SPSTR = 1152
DELTA = 0x800000
L_K, L_Q, L_MX, L_LW, L_O, L_RED = 18432, 0, 1280, 1344, 1536, 9728
L_QSTR = 272
L_FT, L_FV, L_FQ, L_FK, L_FP = 1408, 1424, 1440, 1456, 1472
L_FW = 1488
L_W = 83968
L_P = L_RED
LDS_BYTES = 83968
TAGM = 0x3ff
LOG2E = 0x3fb8aa3b
SCALE = 0x3db504f3

CNAMES = ["start", "issued", "LNdone", "pub1", "FT", "qgath", "FK", "pready", "FV", "first", "barC", "wohere", "gathO", "pubS", "gathS", "end"]
SNAMES = ["start", "first", "Kiss", "issued", "pready", "PVdone", "barC", "pub"]
def v(a, n=1): return f"v{a}" if n == 1 else f"v[{a}:{a+n-1}]"

def gen(diag=False, nt="nt", limit=200000, hdr=None, hops=0, trig=15, paceK=7, paceV=7, kpos=5, warmLN=False,
        wofirst=False, pretouch=True, fbmask=31, prioC=0, diagwo=True, woTrig=0, spin=1, pat=0, owait=2, ackwait=True, head=3, lite=False, paceVUntil=16, fvpos=15, dirty=0, fsleep=0, lx="first", cpf=244, sfirst=True, probe=False, smtest=False, qst="", qld="sc1", noq=False, noh=False, preQ=0, hlate=True, tlb=0, chain=0, echo=0, flag2=0, dfl="", ost="", hack=0, swap=False, opt=1, wpos=10, jx=0, jq=3, jk=0, wpat=0, boost=0, bw=1, pipeS=2, stagS=3, pipeO=0, stagO=1, spre="", sst="sc1", outfl="", ptpos=0, ptfl="sc1", fall=False, fdelay=0, merge=True, mstr=2304, coop=True, latetag=True):
    A = Asm()
    sX, sK, sV, sWQ, sWO, sW1, sB1, sW2, sB2, sOUT, sWS = 4, 6, 8, 10, 12, 16, 18, 20, 22, 24, 26
    sT, sWAVE, sXC, sJ = 28, 29, 30, 31
    sCNT, sWSB, sID, sT8 = 46, 48, 50, 51
    role = ["C"]
    def stamp(k):
        names = SNAMES if role[0] == "S" else CNAMES
        if diag or ((lite or echo) and role[0] == "C" and k in ("start", "end", lx)): A(f"s_memrealtime s[{64+2*names.index(k)}:{65+2*names.index(k)}]")
    def addbase(r, off):
        A(f"s_add_u32 s{r}, s{r}, {off}\ns_addc_u32 s{r+1}, s{r+1}, 0")
    DPP = {0: "quad_perm:[1,0,3,2]", 1: "quad_perm:[2,3,0,1]", 2: "row_half_mirror", 3: "row_mirror"}
    def allred(regs, op, bits, tmp):
        for b in bits:
            for r in regs:
                if b < 4:
                    A(f"{op}_dpp v{r}, v{r}, v{r} {DPP[b]} row_mask:0xf bank_mask:0xf")
                else:
                    A(f"v_mov_b32 v{tmp}, v{r}")
                    A(f"v_permlane{16 if b == 4 else 32}_swap_b32 v{r}, v{tmp}")
                    A(f"{op} v{r}, v{r}, v{tmp}")
    def bf16r(dst, src):
        A(f"v_cvt_pk_bf16_f32 v{dst}, v{src}, v{src}\nv_and_b32 v{dst}, 0xffff0000, v{dst}")
    def unpack(dst, src, n):
        for i in range(n):
            A(f"v_lshlrev_b32 v{dst+2*i}, 16, v{src+i}\nv_and_b32 v{dst+2*i+1}, 0xffff0000, v{src+i}")
    def delta(dst, val, masks, n, tmp):
        A(f"v_cvt_pk_bf16_f32 v{tmp}, v{val}, v{val}")
        for j in range(n): A(f"v_and_b32 v{dst+j}, v{tmp}, v{masks+j}")
    def tag(r, n, vT):
        for i in range(n): A(f"v_bfi_b32 v{r+i}, v{vT+1}, v{vT}, v{r+i}")
    def issue(loads, base, fl="sc1"):
        for (d, n, a, off) in loads:
            A(f"global_load_dword{'x%d' % n if n > 1 else ''} {v(d, n)}, v{a}, s[{base}:{base+1}] offset:{off} {fl}")
    def poll(name, loads, tmp, loadsB=None, first=None, narrow=False, strip=True):
        A(f"s_mov_b32 s{sCNT}, 0")
        if first is not None: A(f"s_waitcnt vmcnt({first})\ns_branch {name}_f")
        A(f"{name}:")
        if diag and name[-1] in "OS": A("s_memtime s[58:59]")
        issue(loads, sWS)
        dws = [r for (d, n, a, off) in loads for r in range(d, d + n)]
        A(f"{name}_c:\ns_waitcnt vmcnt(0)")
        A(f"{name}_f:\ns_add_u32 s{sCNT}, s{sCNT}, 1")
        if diag and name[-1] in "OS":
            r = 60 if name[-1] == "O" else 62
            A(f"s_memtime s[100:101]\ns_waitcnt lgkmcnt(0)\ns_sub_u32 s{r+1}, s100, s58\ns_cmp_eq_u32 s{sCNT}, 2\ns_cselect_b32 s{r}, s{r+1}, s{r}")
        if strip:
            for d in dws: A(f"v_xor_b32 v{d}, s{sT8 if narrow else sT}, v{d}")
            A(f"v_or3_b32 v{tmp}, v{dws[0]}, v{dws[1]}, v{dws[2]}")
            for k in range(3, len(dws) - 1, 2): A(f"v_or3_b32 v{tmp}, v{tmp}, v{dws[k]}, v{dws[k+1]}")
            if len(dws) % 2 == 0: A(f"v_or_b32 v{tmp}, v{tmp}, v{dws[-1]}")
        else:
            A(f"v_bitop3_b32 v{tmp}, v{dws[0]}, v{dws[1]}, s{sT} bitop3:0x7e")
            for d in dws[2:]: A(f"v_bitop3_b32 v{tmp}, v{tmp}, v{d}, s{sT} bitop3:0xf6")
        A(f"v_and_b32 v{tmp}, {0xff if narrow else TAGM}, v{tmp}\nv_cmp_ne_u32 vcc, 0, v{tmp}")
        A(f"s_and_b64 exec, exec, vcc\ns_cbranch_scc0 {name}_x")
        A(f"s_cmp_gt_u32 s{sCNT}, {limit}\ns_cbranch_scc1 {name}_x")
        if loadsB:
            A(f"s_and_b32 s52, s{sCNT}, {fbmask}\ns_cbranch_scc1 {name}\ns_cmp_eq_u32 s53, 1\ns_cbranch_scc1 {name}")
            issue(loadsB, sWSB)
            A(f"s_branch {name}_c")
        else:
            A(f"s_branch {name}")
        A(f"{name}_x:\ns_mov_b64 exec, -1")
        if diag: A(f"s_mov_b32 s{ {'H':96,'Q':96,'O':97,'S':98}[name[-1]] }, s{sCNT}")
    def pollpipe(name, addrs, sets, final, tmp, stag, loadsB=None):
        nl = len(addrs); R = len(sets)
        def iss(r): issue([(sets[r] + 4*k, 4, a, off) for k, (a, off) in enumerate(addrs)], sWS)
        A(f"s_mov_b32 s{sCNT}, 0\ns_mov_b64 s[54:55], -1")
        for r in range(R):
            iss(r)
            if r < R - 1 and stag: A(f"s_sleep {stag}")
        A(f"{name}:")
        for r in range(R):
            dws = list(range(sets[r], sets[r] + 4*nl))
            A(f"s_waitcnt vmcnt({nl*(R-1)})")
            A(f"v_bitop3_b32 v{tmp}, v{dws[0]}, v{dws[1]}, s{sT} bitop3:0x7e")
            for d in dws[2:]: A(f"v_bitop3_b32 v{tmp}, v{tmp}, v{d}, s{sT} bitop3:0xf6")
            A(f"v_and_b32 v{tmp}, {TAGM}, v{tmp}\nv_cmp_ne_u32 vcc, 0, v{tmp}\ns_andn2_b64 exec, exec, vcc")
            for k, d in enumerate(dws): A(f"v_xor_b32 v{final+k}, s{sT}, v{d}")
            A(f"s_and_b64 exec, s[54:55], vcc\ns_cbranch_scc0 {name}_x\ns_mov_b64 s[54:55], exec")
            iss(r)
        A(f"s_add_u32 s{sCNT}, s{sCNT}, 1\ns_cmp_lt_u32 s{sCNT}, {limit}\ns_cbranch_scc1 {name}")
        A(f"{name}_x:\ns_mov_b64 exec, -1")
        if diag: A(f"s_mov_b32 s{ {'O':97,'S':98}[name[-1]] }, s{sCNT}")
    def store(addr, data, n, base, fl=""):
        A(f"global_store_dwordx{n} v{addr}, {v(data,n)}, s[{base}:{base+1}] {fl}")
    def waitflag(name, off, n, t, addr):
        A(f"{name}:\nds_read_b{32*n} {v(t,n)}, v{addr} offset:{off}\ns_waitcnt lgkmcnt(0)")
        if n == 4: A(f"v_and_b32 v{t}, v{t}, v{t+1}\nv_and_b32 v{t+2}, v{t+2}, v{t+3}\nv_and_b32 v{t}, v{t}, v{t+2}")
        A(f"v_readfirstlane_b32 s52, v{t}\ns_cmp_lg_u32 s52, 0\ns_cbranch_scc1 {name}_x\ns_sleep {spin}\ns_branch {name}\n{name}_x:")
    def wsb():
        A(f"s_add_u32 s{sWSB}, s{sWS}, {DELTA}\ns_addc_u32 s{sWSB+1}, s{sWS+1}, 0")
    def get_tag(b=True):
        if b: wsb()
        A(f"s_waitcnt lgkmcnt(0)\ns_add_u32 s{sT}, s{sT}, 1\ns_and_b32 s{sT}, s{sT}, {TAGM}\ns_and_b32 s{sT8}, s{sT}, 0xff")
        A(f"s_getreg_b32 s{sID}, hwreg(HW_REG_XCC_ID)\ns_lshl_b32 s{sID}, s{sID}, 10\ns_or_b32 s{sID}, s{sID}, s{sT}")
    def pr(k):
        if probe: A(f"s_memrealtime s[{96+2*k}:{97+2*k}]")
    def dump():
        if probe:
            A(f"s_waitcnt lgkmcnt(0)\ns_lshl_b32 s40, s2, 3\ns_add_u32 s40, s40, s{sWAVE}\ns_lshl_b32 s40, s40, 4\ns_add_u32 s40, s40, {STAMP+0x10000}")
            A(f"s_mov_b64 exec, 1\nv_mov_b32 v5, s40\nv_mov_b32 v6, s64\nv_mov_b32 v7, s96\nv_mov_b32 v8, s98\nglobal_store_dwordx3 v5, v[6:8], s[{sWS}:{sWS+1}]")
        if lite and role[0] == "C":
            A(f"s_waitcnt lgkmcnt(0)\ns_lshl_b32 s40, s2, 2\ns_add_u32 s40, s40, s{sWAVE}\ns_lshl_b32 s40, s40, 4\ns_add_u32 s40, s40, {STAMP}")
            A(f"s_mov_b64 exec, 1\nv_mov_b32 v5, s40\nv_mov_b32 v6, s64\nv_mov_b32 v7, s94\nv_mov_b32 v8, s{64+2*CNAMES.index(lx)}\nglobal_store_dwordx3 v5, v[6:8], s[{sWS}:{sWS+1}]")
        if not diag: return
        A("s_waitcnt lgkmcnt(0)")
        A(f"s_lshl_b32 s40, s2, 3\ns_add_u32 s40, s40, s{sWAVE}\ns_lshl_b32 s40, s40, 7\ns_add_u32 s40, s40, {STAMP}")
        A("s_mov_b64 exec, 1\nv_mov_b32 v5, s40")
        for k in range(16):
            A(f"v_mov_b32 v6, s{64+2*k}\nglobal_store_dword v5, v6, s[{sWS}:{sWS+1}] offset:{4*k}")
        for k in range(4):
            A(f"v_mov_b32 v6, s{60+k}\nglobal_store_dword v5, v6, s[{sWS}:{sWS+1}] offset:{80+4*k}")
        A(f"s_getreg_b32 s40, hwreg(HW_REG_HW_ID)\nv_mov_b32 v6, s40\nglobal_store_dword v5, v6, s[{sWS}:{sWS+1}] offset:96")
        for k in range(4):
            A(f"v_mov_b32 v6, s{96+k}\nglobal_store_dword v5, v6, s[{sWS}:{sWS+1}] offset:{64+4*k}")

    K = NAME + "_kernel"
    A(f"{K}:")
    stamp("start")
    A("s_load_dwordx16 s[4:19], s[0:1], 0")
    if cpf:
        A(f"s_getpc_b64 s[40:41]\nv_mul_u32_u24 v5, 20, v0\nglobal_load_dword v211, v5, s[40:41] offset:{cpf}")
    def karg2(): A("s_load_dwordx4 s[20:23], s[0:1], 64\ns_load_dwordx2 s[24:25], s[0:1], 80\ns_load_dwordx2 s[26:27], s[0:1], 96")
    A("v_lshrrev_b32 v1, 6, v0\nv_and_b32 v0, 63, v0")
    A(f"s_lshr_b32 s{sJ}, s2, 3\ns_and_b32 s{sXC}, s2, 7")
    if jx: A(f"s_xor_b32 s{sJ}, s{sJ}, {jx}")
    A(f"v_readfirstlane_b32 s{sWAVE}, v1")
    A(f"s_cmp_ge_u32 s{sJ}, 32\ns_cbranch_scc1 L_end")
    if swap: A(f"s_xor_b32 s{sWAVE}, s{sWAVE}, 4")
    A("v_and_b32 v1, 15, v0\nv_lshrrev_b32 v2, 4, v0")
    if diag:
        for k in range(1, 18): A(f"s_mov_b64 s[{64+2*k}:{65+2*k}], 0")
        A("s_mov_b64 s[60:61], 0\ns_mov_b64 s[62:63], 0")
    if coop:
        A(f"s_xor_b32 s40, s{sJ}, {jq}\ns_lshr_b32 s41, s40, 2\ns_and_b32 s40, s40, 3\ns_lshl_b32 s42, s{sXC}, 2\ns_add_u32 s40, s40, s42\ns_lshl_b32 s40, s40, 8")
        A(f"s_lshl_b32 s41, s41, 5\ns_add_u32 s41, s41, s{sWAVE}\ns_lshl_b32 s41, s41, 14\ns_add_u32 s40, s40, s41")
        A("v_lshlrev_b32 v8, 17, v2\nv_lshl_add_u32 v8, v1, 4, v8\nv_add_u32 v9, 7168, v8")
        A(f"s_lshl_b32 s41, s{sWAVE}, 11\ns_add_u32 m0, s41, {L_W}")
        A("v_bfe_u32 v3, v0, 3, 1\nv_and_b32 v4, 7, v0\nv_lshl_add_u32 v5, v2, 3, v4\nv_lshlrev_b32 v5, 5, v5\nv_lshl_add_u32 v5, v3, 10, v5")
        A(f"s_cmp_lt_u32 s{sWAVE}, 2\ns_waitcnt lgkmcnt(0)\ns_cbranch_scc0 L_nox")
        A(f"global_load_dwordx4 v[16:19], v5, s[{sX}:{sX+1}]\nglobal_load_dwordx4 v[20:23], v5, s[{sX}:{sX+1}] offset:16\nL_nox:")
        addbase(sWQ, "s40")
        if lite or echo: stamp("first")
        A(f"global_load_lds_dwordx4 v8, s[{sWQ}:{sWQ+1}] {nt}\nglobal_load_lds_dwordx4 v9, s[{sWQ}:{sWQ+1}] offset:1024 {nt}")
    A(f"s_cmp_lt_u32 s{sWAVE}, 4\ns_cbranch_scc1 L_C")
    entry = A.L; A.L = []
    A(".p2align 8\nL_C:")
    if not coop: A("v_bfe_u32 v3, v0, 3, 1\nv_and_b32 v4, 7, v0")
    A(f"s_cmp_ge_u32 s{sWAVE}, 2\ns_cbranch_scc1 L_Cnoffn")

    MASK = 10; vTG = 14
    XS, XR, F, XO, W, ACC = 16, 24, 32, 48, 112, 176
    B1R = 180
    XF = 184
    FIN = 200
    def masks():
        A("v_and_b32 v5, 3, v0\nv_lshlrev_b32 v5, 4, v5\nv_mov_b32 v6, 0xffff\nv_mov_b32 v7, 0\nv_lshlrev_b64 v[6:7], v5, v[6:7]")
        A("v_cmp_gt_u32 vcc, 4, v4")
        A(f"v_cndmask_b32 v{MASK}, 0, v6, vcc\nv_cndmask_b32 v{MASK+1}, 0, v7, vcc")
        A(f"v_cndmask_b32 v{MASK+2}, v6, 0, vcc\nv_cndmask_b32 v{MASK+3}, v7, 0, vcc")
    if jq: A(f"s_xor_b32 s{sJ}, s{sJ}, {jq}")
    A(f"s_sub_u32 s33, 2, s{sWAVE}\ns_lshr_b32 s40, s{sJ}, s33\ns_lshl_b32 s41, s40, s33\ns_sub_u32 s41, s{sJ}, s41\ns_lshl_b32 s42, s{sXC}, s33\ns_add_u32 s41, s41, s42")
    if jq: A(f"s_xor_b32 s{sJ}, s{sJ}, {jq}")
    A(f"s_movk_i32 s32, 8192\ns_cmp_eq_u32 s{sWAVE}, 1\ns_cmovk_i32 s32, 3584")
    if wpat == 1:
        A("s_add_u32 s34, s33, 4\ns_lshl_b32 s39, s32, s34\ns_mul_i32 s39, s40, s39\ns_lshl_b32 s35, s32, 3\ns_lshl_b32 s42, s41, 8\ns_add_u32 s39, s39, s42")
        A("v_lshl_add_u32 v5, v2, 3, v4\nv_lshlrev_b32 v5, 5, v5\nv_lshl_add_u32 v5, v3, 10, v5")
        A("s_add_u32 s34, s33, 5\ns_lshl_b32 s34, s40, s34\nv_lshl_add_u32 v6, v2, 4, s34\nv_lshl_add_u32 v6, v3, 10, v6")
        A("s_sub_u32 s36, s33, 1\ns_lshl_b32 s36, s36, 6\nv_add_u32 v7, s36, v6")
    else:
        A("s_add_u32 s34, s33, 2\ns_lshl_b32 s35, s32, s34\ns_mul_i32 s39, s40, s35\ns_lshl_b32 s39, s39, 2\ns_lshl_b32 s42, s41, 8\ns_add_u32 s39, s39, s42")
        A("v_lshl_add_u32 v5, v2, 3, v4\nv_lshlrev_b32 v5, 5, v5\nv_lshl_add_u32 v5, v3, 10, v5")
        A("v_lshl_add_u32 v6, s40, 2, v2\ns_add_u32 s34, s33, 3\nv_lshlrev_b32 v6, s34, v6\nv_lshl_add_u32 v6, v3, 10, v6")
        A("s_sub_u32 s36, s33, 1\ns_lshl_b32 s36, s36, 4\nv_add_u32 v7, s36, v6")
    A("v_mul_lo_u32 v8, v2, s35\nv_lshl_add_u32 v8, v1, 4, v8")
    A(f"s_mul_i32 s44, s{sXC}, s{sWAVE}\ns_cmp_eq_u32 s44, 7\ns_cbranch_scc1 L_Cnoffn")
    if coop:
        A(f"v_mov_b32 v{XF}, v5\nv_mov_b32 v{XF+1}, v6\nv_mov_b32 v{XF+2}, v7")
        A(f"s_cmp_eq_u32 s{sWAVE}, 0\ns_cbranch_scc1 L_Cwdone")
        addbase(sW1, "s39")
        for t in range(8):
            A(f"global_load_dwordx4 {v(W+4*t,4)}, v8, s[{sW1}:{sW1+1}] {nt}")
            if t != 7: addbase(sW1, "s32")
    else:
        A(f"s_cmp_eq_u32 s{sWAVE}, 1\ns_waitcnt lgkmcnt(0)")
        if not ackwait or lite or echo: stamp("first")
        pr(1)
        A(f"global_load_dwordx4 {v(XS,4)}, v5, s[{sX}:{sX+1}]\nglobal_load_dwordx4 {v(XS+4,4)}, v5, s[{sX}:{sX+1}] offset:16")
        A(f"s_cselect_b64 s[42:43], s[{sW1}:{sW1+1}], s[{sWQ}:{sWQ+1}]")
        A(f"global_load_dwordx4 {v(XR,4)}, v6, s[{sX}:{sX+1}]\nglobal_load_dwordx4 {v(XR+4,4)}, v7, s[{sX}:{sX+1}]")
        addbase(42, "s39")
        for t in range(16):
            if t == 8: A(f"s_cmp_eq_u32 s{sWAVE}, 1\ns_cbranch_scc1 L_Cwdone")
            A(f"global_load_dwordx4 {v(W+4*t,4)}, v8, s[42:43] {nt}")
            if t == 7 and wpat == 1: addbase(42, 25*8192)
            elif t != 15: addbase(42, "s32")
    A("L_Cwdone:")
    karg2()
    pr(0)
    A("s_barrier")
    stamp("issued")
    if not latetag: A(f"s_waitcnt lgkmcnt(0)\ns_load_dword s{sT}, s[{sWS}:{sWS+1}], 0")
    if prioC: A(f"s_setprio {prioC}")
    A(f"s_lshl_b32 s37, s41, 3\ns_add_u32 s37, s37, s40\ns_lshl_b32 s37, s37, 9\ns_add_u32 s37, s37, {QP}\ns_mov_b32 s38, {32*8*512}")
    A(f"s_cmp_eq_u32 s{sWAVE}, 0\ns_cbranch_scc1 L_Cpa")
    A(f"s_mul_i32 s37, s40, 7168\ns_lshl_b32 s42, s41, 9\ns_add_u32 s37, s37, s42\ns_add_u32 s37, s37, {HP}\ns_mov_b32 s38, {16*7168}")
    A("L_Cpa:")
    A("v_and_b32 v5, 1, v2\nv_lshl_add_u32 v9, v5, 4, s37\nv_lshl_add_u32 v9, v1, 5, v9\nv_lshrrev_b32 v5, 1, v2\nv_mad_u32_u24 v9, v5, s38, v9")
    if preQ: A(f"global_load_dwordx4 {v(XF,4)}, v9, s[{sWS}:{sWS+1}] sc1")
    A("L_Cmask:")
    masks()
    if not latetag:
        get_tag()
        A(f"v_mov_b32 v{vTG}, s{sT}\nv_mov_b32 v{vTG+1}, {TAGM}")
    if coop: A(f"s_cmp_eq_u32 s{sWAVE}, 1\ns_cbranch_scc1 L_Cw8\ns_waitcnt vmcnt(2)\nL_Cw8:\ns_waitcnt vmcnt(10)\nL_Cw:")
    if coop:
        A(f"ds_write_b128 v{XF}, {v(XS,4)} offset:{L_O}\nds_write_b128 v{XF}, {v(XS+4,4)} offset:{L_O+16}")
        A(f"ds_read_b128 {v(XR,4)}, v{XF+1} offset:{L_O}\nds_read_b128 {v(XR+4,4)}, v{XF+2} offset:{L_O}")
    if not coop: A(f"s_cmp_eq_u32 s{sWAVE}, 1\ns_cbranch_scc1 L_Cw8\ns_waitcnt vmcnt({16+preQ})\ns_branch L_Cw\nL_Cw8:\ns_waitcnt vmcnt({8+preQ})\nL_Cw:")
    unpack(F, XS, 8)
    A(f"v_add_f32 v5, v{F}, v{F+1}\nv_add_f32 v6, v{F+2}, v{F+3}")
    for i in range(4, 16, 2): A(f"v_add_f32 v5, v5, v{F+i}\nv_add_f32 v6, v6, v{F+i+1}")
    A("v_add_f32 v5, v5, v6")
    allred([5], "v_add_f32", [0, 1, 2, 4, 5], 6)
    A("v_mul_f32 v5, 0x3b000000, v5")
    for i in range(16): A(f"v_sub_f32 v{F+i}, v{F+i}, v5")
    A(f"v_mul_f32 v6, v{F}, v{F}\nv_mul_f32 v7, v{F+1}, v{F+1}")
    for i in range(2, 16, 2): A(f"v_fmac_f32 v6, v{F+i}, v{F+i}\nv_fmac_f32 v7, v{F+i+1}, v{F+i+1}")
    A("v_add_f32 v6, v6, v7")
    allred([6], "v_add_f32", [0, 1, 2, 4, 5], 7)
    A("v_mul_f32 v6, 0x3b000000, v6")
    bf16r(5, 5); bf16r(6, 6)
    A("v_add_f32 v6, 0x3727c5ac, v6"); bf16r(6, 6)
    A("v_sqrt_f32 v6, v6"); bf16r(6, 6)
    A("v_rcp_f32 v6, v6")
    if coop or latetag: A("s_waitcnt lgkmcnt(0)")
    if latetag: A(f"s_load_dword s{sT}, s[{sWS}:{sWS+1}], 0")
    unpack(F, XR, 8)
    for i in range(16): A(f"v_sub_f32 v{F+i}, v{F+i}, v5")
    for i in range(8): A(f"v_cvt_pk_bf16_f32 v{XR+i}, v{F+2*i}, v{F+2*i+1}")
    unpack(F, XR, 8)
    for i in range(16): A(f"v_mul_f32 v{F+i}, v{F+i}, v6")
    for t in range(16):
        if t == 8: A(f"s_cmp_eq_u32 s{sWAVE}, 1\ns_cbranch_scc1 L_Cd8")
        delta(XO + 4*t, F + t, MASK, 4, 5)
    A("L_Cd8:")
    if warmLN: A(f"s_cmp_ge_u32 s{sWAVE}, 2\ns_cbranch_scc1 L_C23b")
    stamp("LNdone")
    if latetag:
        get_tag()
        A(f"v_mov_b32 v{vTG}, s{sT}\nv_mov_b32 v{vTG+1}, {TAGM}")
    if coop:
        A(f"s_lshl_b32 s40, s{sWAVE}, 2\nv_mov_b32 v7, s40\nv_mov_b32 v8, 1\ns_waitcnt vmcnt(8)")
        A(f"s_cmp_eq_u32 s{sWAVE}, 1\ns_cbranch_scc0 L_Cl1\nds_write_b32 v7, v8 offset:{L_FW}\ns_branch L_Cl0")
        A(f"L_Cl1:\ns_waitcnt vmcnt(0)\nds_write_b32 v7, v8 offset:{L_FW}")
        waitflag("L_wfW0", L_FW, 4, F, 7); waitflag("L_wfW1", L_FW+16, 4, F, 7)
        A("v_lshlrev_b32 v7, 4, v0\nv_add_u32 v7, %d, v7" % L_W)
        for t in range(16): A(f"ds_read_b128 {v(W+4*t,4)}, v7 offset:{1024*t}")
        A("L_Cl0:\ns_waitcnt vmcnt(0)")
        for t in range(16):
            if t == 8: A(f"s_cmp_eq_u32 s{sWAVE}, 1\ns_cbranch_scc1 L_Cm8")
            if t % 4 == 0: A(f"s_waitcnt lgkmcnt({12 - t})")
            A(f"v_mfma_f32_16x16x32_bf16 {v(ACC,4)}, {v(XO+4*t,4)}, {v(W+4*t,4)}, {v(ACC,4) if t else 0}")
    else:
        A(f"s_cmp_eq_u32 s{sWAVE}, 1\ns_cbranch_scc0 L_Cl0\ns_waitcnt vmcnt({preQ})\nL_Cl0:")
        for t in range(16):
            if t == 8: A(f"s_cmp_eq_u32 s{sWAVE}, 1\ns_cbranch_scc1 L_Cm8")
            if t % 4 == 0: A(f"s_waitcnt vmcnt({12 - t + preQ})")
            A(f"v_mfma_f32_16x16x32_bf16 {v(ACC,4)}, {v(XO+4*t,4)}, {v(W+4*t,4)}, {v(ACC,4) if t else 0}")
    A("L_Cm8:\ns_nop 7")
    A("v_mov_b32 v5, 0xff")
    for i in range(4): A(f"v_add_u32 v{ACC+i}, 0x80, v{ACC+i}")
    for i in range(4): A(f"v_bfi_b32 v{ACC+i}, v5, v{vTG}, v{ACC+i}")
    store(9, ACC, 4, sWS, qst)
    A(f"v_mov_b32 v{B1R+2}, v9")
    stamp("pub1")
    if not trig:
        A(f"s_cmp_eq_u32 s{sWAVE}, 0\ns_cbranch_scc0 L_Cmid\nv_mov_b32 v5, 0\nv_mov_b32 v6, 1\nds_write_b32 v5, v6 offset:{L_FT}")
    A("s_branch L_Cmid")

    A(f"L_Cnoffn:\nv_mov_b32 v9, 0\nv_mov_b32 v{B1R+2}, 0")
    karg2()
    A(f"v_mov_b32 v5, 0\nv_and_b32 v6, 31, v0\nv_lshlrev_b32 v6, 2, v6\nds_write_b32 v6, v5 offset:{L_FT}")
    A("s_waitcnt lgkmcnt(0)"); pr(1); pr(0); A("s_barrier")
    A(f"s_load_dword s{sT}, s[{sWS}:{sWS+1}], 0")
    wsb()
    if warmLN:
        A(f"s_cmp_eq_u32 s{sWAVE}, 2\ns_cbranch_scc1 L_Cw\nL_C23b:")
    get_tag(False)
    A(f"v_mov_b32 v{vTG}, s{sT}\nv_mov_b32 v{vTG+1}, {TAGM}")
    if coop: A(f"s_lshl_b32 s40, s{sWAVE}, 2\nv_mov_b32 v7, s40\nv_mov_b32 v8, 1\ns_waitcnt vmcnt(0)\nds_write_b32 v7, v8 offset:{L_FW}")
    A(f"s_cmp_eq_u32 s{sWAVE}, 3\ns_cbranch_scc0 L_Cnoid")
    A(f"s_lshl_b32 s40, s{sXC}, 5\ns_add_u32 s40, s40, s{sJ}\ns_lshl_b32 s40, s40, 2\ns_add_u32 s40, s40, {IDS}")
    A(f"v_mov_b32 v5, s40\nv_mov_b32 v6, s{sID}\ns_mov_b64 exec, 1\nglobal_store_dword v5, v6, s[{sWS}:{sWS+1}] sc1\ns_mov_b64 exec, -1")
    if tlb:
        A(f"s_lshr_b32 s40, s2, 7\ns_lshl_b32 s40, s40, 3\ns_add_u32 s40, s40, s{sXC}\ns_lshl_b32 s40, s40, 23\ns_and_b32 s41, s{sJ}, 15\ns_lshl_b32 s41, s41, 14\ns_add_u32 s40, s40, s41\ns_add_u32 s40, s40, {28672*256}")
        A("v_lshlrev_b32 v5, 18, v0\nv_add_u32 v5, s40, v5\ns_mov_b64 exec, 15")
        A(f"global_load_dword v210, v5, s[{sV}:{sV+1}] nt")
        if tlb > 1: A(f"global_load_dword v210, v5, s[{sK}:{sK+1}] nt")
        A(f"s_mov_b64 exec, 1\ns_lshl_b32 s40, s{sXC}, 3\ns_lshr_b32 s41, s{sJ}, 2\ns_add_u32 s40, s40, s41\ns_lshl_b32 s41, s40, 16\nv_mov_b32 v5, s41")
        A(f"global_load_dword v210, v5, s[{sWO}:{sWO+1}] nt\ns_min_u32 s40, s40, 55\ns_lshl_b32 s41, s40, 15\nv_mov_b32 v5, s41\nglobal_load_dword v210, v5, s[{sW2}:{sW2+1}] nt")
        A(f"v_mov_b32 v5, {SPF + 0x4c000}\nglobal_load_dword v210, v5, s[{sWS}:{sWS+1}] nt\nv_mov_b32 v5, 0")
        A(f"global_load_dword v210, v5, s[{sB1}:{sB1+1}]\nglobal_load_dword v210, v5, s[{sOUT}:{sOUT+1}] nt\ns_mov_b64 exec, -1")
    if dirty:
        A("s_lshl_b32 s40, s2, 15\ns_add_u32 s40, s40, 0x1000000\nv_lshl_add_u32 v5, v0, 4, s40")
        for k in range(dirty): A(f"global_store_dwordx4 v5, v[16:19], s[{sWS}:{sWS+1}] {dfl}\nv_add_u32 v5, 1024, v5")
    A("L_Cnoid:")
    masks()

    A("L_Cmid:")
    QG, QF, SC, KA, MA, KF = XO, XO + 16, XO + 32, XO + 48, XO + 52, W
    A(f"s_cmp_lt_u32 s{sXC}, 7\ns_cselect_b32 s45, 2, 0\ns_cmp_lt_u32 s{sWAVE}, s45\ns_cselect_b32 s45, 1, 0")
    A(f"s_lshr_b32 s40, s{sJ}, 4\ns_lshl_b32 s40, s40, 5\ns_lshl_b32 s41, s{sXC}, 2\ns_add_u32 s40, s40, s41\ns_add_u32 s40, s40, s{sWAVE}")
    A(f"s_lshl_b32 s40, s40, 12\ns_add_u32 s40, s40, {QP}\nv_lshl_add_u32 v{MA}, v0, 4, s40")
    if not trig: A(f"s_add_u32 s58, s{sWS}, s40\ns_addc_u32 s59, s{sWS+1}, 0")
    A(f"s_mul_i32 s40, s{sWAVE}, {L_QSTR}\nv_and_b32 v5, 31, v0\nv_lshl_add_u32 v{MA+1}, v5, 3, s40\nv_lshrrev_b32 v6, 5, v0\nv_lshl_add_u32 v{MA+1}, v6, 2, v{MA+1}")
    A(f"s_lshl_b32 s40, s{sXC}, 7\ns_add_u32 s40, s40, {IDS}\nv_lshl_add_u32 v{MA+2}, v5, 2, s40")
    A(f"v_and_b32 v5, 3, v1\nv_lshlrev_b32 v5, 10, v5\nv_lshrrev_b32 v6, 2, v1\nv_lshl_add_u32 v5, v6, 8, v5\ns_lshl_b32 s40, s{sWAVE}, 14\ns_add_u32 s40, s40, {L_K}\nv_add_u32 v5, s40, v5")
    for u in range(4):
        A(f"v_add_u32 v7, {4*u}, v2\nv_xor_b32 v7, v7, v1\nv_lshl_add_u32 v{KA+u}, v7, 4, v5")
    A(f"v_mul_u32_u24 v{MA+3}, {L_QSTR}, v6\nv_lshl_add_u32 v{MA+3}, v2, 4, v{MA+3}")
    A(f"s_lshl_b32 s40, s{sWAVE}, 2\nv_lshl_add_u32 v{MA+4}, v6, 4, s40\nv_mov_b32 v{MA+7}, s40\nv_mov_b32 v{MA+6}, 0")
    A(f"s_lshl_b32 s40, s{sWAVE}, 10\nv_lshl_add_u32 v{MA+5}, v0, 4, s40")
    A("v_and_b32 v5, 1, v0\nv_cmp_ne_u32 s[54:55], 0, v5\nv_and_b32 v5, 2, v0\nv_cmp_ne_u32 s[56:57], 0, v5")
    A(f"s_lshl_b32 s40, s{sXC}, 3\ns_lshr_b32 s41, s{sJ}, 2\ns_add_u32 s40, s40, s41\ns_lshl_b32 s40, s40, 1\ns_add_u32 s40, s40, s{sWAVE}")
    A(f"s_lshl_b32 s41, s40, 6\ns_add_u32 s41, s41, {HP}\nv_mul_u32_u24 v6, 7168, v4\nv_lshl_add_u32 v6, v2, 4, v6\nv_add_u32 v6, s41, v6")
    A(f"v_mul_u32_u24 v8, {16*7168}, v3\nv_add_u32 v{MA+9}, v6, v8\nv_add_u32 v{MA+10}, {8*7168}, v{MA+9}")
    A(f"s_lshl_b32 s41, s40, 5\nv_lshl_add_u32 v{MA+8}, v2, 3, s41")
    A(f"s_lshl_b32 s40, s{sXC}, 5\ns_add_u32 s40, s40, s{sJ}")
    A("s_lshr_b32 s41, s40, 6\ns_lshl_b32 s41, s41, 7\ns_and_b32 s42, s40, 15\ns_lshl_b32 s42, s42, 3\ns_add_u32 s41, s41, s42")
    A("s_bfe_u32 s42, s40, 0x10004\ns_lshl_b32 s42, s42, 2\ns_add_u32 s41, s41, s42")
    A("s_bfe_u32 s42, s40, 0x10005\ns_lshl_b32 s42, s42, 9\ns_add_u32 s42, s42, s41")
    A(f"v_add_lshl_u32 v{FIN+2}, v2, s42, 1\nv_add_lshl_u32 v7, v2, s41, 1")
    A(f"global_load_ushort v{FIN}, v{FIN+2}, s[{sX}:{sX+1}]\nglobal_load_ushort v{FIN+1}, v7, s[{sB2}:{sB2+1}]")
    W2R, WOR, G = W, W + 16, W + 32
    A(f"s_and_b32 s40, s{sJ}, 3\ns_lshl_b32 s40, s40, 8\ns_lshr_b32 s41, s{sJ}, 2")
    A(f"s_lshl_b32 s42, s{sXC}, 3\ns_add_u32 s47, s42, s41")
    A(f"s_lshl_b32 s42, s47, 1\ns_add_u32 s42, s42, s{sWAVE}\ns_lshl_b32 s42, s42, 14\ns_add_u32 s42, s42, s40")
    addbase(sW2, "s42")
    A(f"s_lshl_b32 s42, s47, 2\ns_add_u32 s42, s42, s{sWAVE}\ns_lshl_b32 s43, s42, 14\ns_add_u32 s43, s43, s40")
    addbase(sWO, "s43")
    A(f"v_lshlrev_b32 v{FIN+5}, 12, v2\nv_lshl_add_u32 v{FIN+5}, v1, 4, v{FIN+5}")
    A(f"s_lshl_b32 s42, s42, 11\ns_add_u32 s42, s42, {OP}\nv_lshl_add_u32 v{XR}, v0, 4, s42")
    A(f"s_lshr_b32 s42, s47, 1\ns_lshl_b32 s42, s42, 9\ns_add_u32 s42, s42, {ML}\nv_lshl_add_u32 v{XR+2}, v1, 4, s42")
    A(f"s_lshl_b32 s42, s{sXC}, 16\ns_bfe_u32 s43, s{sJ}, 0x30002\ns_lshl_b32 s43, s43, 8\ns_add_u32 s42, s42, s43\ns_lshl_b32 s43, s{sWAVE}, 6\ns_add_u32 s42, s42, s43\ns_add_u32 s42, s42, {OP}")
    A(f"v_lshl_add_u32 v7, v3, 4, v4\nv_lshlrev_b32 v7, 11, v7\nv_lshl_add_u32 v7, v2, 4, v7\nv_add_u32 v{FIN+3}, s42, v7\nv_add_u32 v{FIN+4}, {8*2048}, v{FIN+3}")
    if merge:
        A(f"s_and_b32 s40, s{sJ}, 3\ns_lshl_b32 s40, s40, 6\ns_add_u32 s40, s40, s47\ns_mul_i32 s40, s40, {mstr}")
        A(f"s_lshl_b32 s41, s{sWAVE}, 10\ns_add_u32 s40, s40, s41\ns_add_u32 s40, s40, {SPS}\nv_lshl_add_u32 v{XR+3}, v0, 4, s40")
        A(f"s_lshl_b32 s40, s{sXC}, 5\ns_add_u32 s40, s40, s{sJ}\ns_lshr_b32 s41, s40, 6\ns_mul_i32 s41, s41, {64*mstr}\ns_and_b32 s40, s40, 63\ns_lshl_b32 s40, s40, 5")
        A(f"s_add_u32 s40, s40, s41\ns_add_u32 s40, s40, {SPS}\nv_mul_u32_u24 v{XR+4}, {mstr}, v0\nv_add_u32 v{XR+4}, s40, v{XR+4}\nv_add_u32 v{XR+5}, 16, v{XR+4}")
    else:
        A(f"s_and_b32 s40, s{sJ}, 3\ns_lshl_b32 s40, s40, 6\ns_add_u32 s40, s40, s47\ns_mul_i32 s40, s40, {SPSTR}")
        A(f"s_cmp_eq_u32 s{sWAVE}, 0\ns_cselect_b32 s41, 0, {SPF-SPS}\ns_add_u32 s40, s40, s41\ns_add_u32 s40, s40, {SPS}\nv_lshl_add_u32 v{XR+3}, v0, 4, s40")
        A(f"s_lshl_b32 s40, s{sXC}, 5\ns_add_u32 s40, s40, s{sJ}\ns_lshr_b32 s41, s40, 6\ns_mul_i32 s41, s41, {64*SPSTR}\ns_and_b32 s40, s40, 63\ns_lshl_b32 s40, s40, 4")
        A(f"s_add_u32 s40, s40, s41\ns_add_u32 s40, s40, {SPS}\nv_mul_u32_u24 v{XR+4}, {SPSTR}, v0\nv_add_u32 v{XR+4}, s40, v{XR+4}\nv_add_u32 v{XR+5}, {SPF-SPS}, v{XR+4}")
    if flag2:
        A(f"s_and_b32 s40, s{sJ}, 3\ns_lshl_b32 s40, s40, 6\ns_add_u32 s40, s40, s47\ns_lshl_b32 s40, s40, 7\ns_add_u32 s40, s40, {FLG}\nv_mov_b32 v{FIN+6}, s40")
        if fall: A(f"s_mov_b32 s40, {FLG}\nv_lshl_add_u32 v{FIN+7}, v0, 7, s40")
        else: A(f"s_lshr_b32 s40, s{sXC}, 1\ns_lshl_b32 s40, s40, 13\ns_add_u32 s40, s40, {FLG}\nv_lshl_add_u32 v{FIN+7}, v0, 7, s40")
        A(f"s_cmp_eq_u32 s{sWAVE}, 3\ns_cselect_b32 s62, 1, 0\ns_mov_b32 s63, 0")
    A(f"s_lshl_b32 s40, s{sWAVE}, 10\nv_lshl_add_u32 v{XR+6}, v0, 4, s40\nv_lshlrev_b32 v{XR+7}, 4, v0")
    if merge: A(f"s_lshl_b32 s40, s{sWAVE}, 9\nv_lshrrev_b32 v7, 1, v0\nv_lshl_add_u32 v{XR+7}, v7, 4, s40\nv_and_b32 v7, 1, v0\nv_lshl_add_u32 v{XR+7}, v7, 12, v{XR+7}")
    if trig: waitflag("L_wfT", L_FT, 4, F, MA+6)
    else:
        waitflag("L_wfT", L_FT, 1, F, MA+6)
        A(f"s_mov_b32 s{sCNT}, 0\nL_sq:")
        for k in range(8): A(f"s_load_dword s{32+k}, s[58:59], {512*k} glc")
        A(f"s_add_u32 s{sCNT}, s{sCNT}, 1\ns_waitcnt lgkmcnt(0)")
        A(f"s_xor_b32 s40, s32, s{sT8}")
        for k in range(1, 8): A(f"s_xor_b32 s41, s{32+k}, s{sT8}\ns_or_b32 s40, s40, s41")
        A(f"s_and_b32 s40, s40, 0xff\ns_cbranch_scc0 L_sq_x\ns_cmp_lt_u32 s{sCNT}, 64\ns_cbranch_scc1 L_sq\nL_sq_x:")
        if diag: A(f"s_mov_b32 s99, s{sCNT}")
    stamp("FT")
    if smtest:
        A(f"s_lshl_b32 s41, s2, 9\ns_add_u32 s41, s41, {QP}\ns_add_u32 s42, s{sWS}, s41\ns_addc_u32 s43, s{sWS+1}, 0")
        A("s_waitcnt lgkmcnt(0)\ns_memtime s[58:59]\ns_waitcnt lgkmcnt(0)\ns_load_dword s41, s[42:43], 0 glc\ns_waitcnt lgkmcnt(0)\ns_memtime s[100:101]\ns_waitcnt lgkmcnt(0)\ns_sub_u32 s99, s100, s58")
        A("s_memtime s[58:59]\ns_waitcnt lgkmcnt(0)\ns_load_dword s41, s[42:43], 0 glc\ns_waitcnt lgkmcnt(0)\ns_memtime s[100:101]\ns_waitcnt lgkmcnt(0)\ns_sub_u32 s41, s100, s58\ns_lshl_b32 s41, s41, 16\ns_or_b32 s99, s99, s41")
    QLD = [(QG + 4*k, 4, MA, 1024*k) for k in range(4)]
    HLD = [(XS, 4, MA+9, 0), (XS+4, 4, MA+10, 0)]
    A(f"global_load_dword v{MA+11}, v{MA+2}, s[{sWS}:{sWS+1}] sc1")
    if not noq: issue(QLD, sWS, qld)
    def hissue(lab):
        A(f"s_cmp_eq_u32 s45, 0\ns_cbranch_scc1 {lab}")
        if not noh: issue(HLD, sWS, qld)
        A(f"global_load_dwordx2 {v(B1R,2)}, v{MA+8}, s[{sB1}:{sB1+1}]")
        if hack == 2:
            for i in range(4): A(f"global_load_dwordx4 {v(XF+4*i,4)}, v{FIN+5}, s[{sW2}:{sW2+1}] offset:{1024*i} {nt}")
    if hlate: A("s_waitcnt vmcnt(0)")
    else:
        hissue("L_Cnoh")
        A("s_waitcnt vmcnt(3)\ns_branch L_Cnoh1\nL_Cnoh:\ns_waitcnt vmcnt(0)\nL_Cnoh1:")
    A(f"v_cmp_ne_u32 vcc, s{sID}, v{MA+11}\ns_mov_b32 s53, 1\ns_cbranch_vccz L_Cnob\ns_mov_b32 s53, 3")
    A(f"s_cmp_eq_u32 s{sWAVE}, 0\ns_cselect_b32 s40, 1, s45\ns_cmp_eq_u32 s40, 0\ns_cbranch_scc1 L_Cnob")
    store(B1R+2, ACC, 4, sWSB, "sc1")
    A("L_Cnob:")
    if not noq: poll("L_pollQ", QLD, 7, QLD, first=63, narrow=True)
    stamp("qgath")
    for i in range(4): A(f"v_add_f32 v{QG+i}, v{QG+i}, v{QG+4+i}\nv_add_f32 v{QG+8+i}, v{QG+8+i}, v{QG+12+i}")
    for i in range(4): A(f"v_add_f32 v{QG+i}, v{QG+i}, v{QG+8+i}")
    for i in range(2): A(f"v_permlane32_swap_b32 v{QG+i}, v{QG+2+i}")
    for i in range(2): A(f"v_add_f32 v{QG+i}, v{QG+i}, v{QG+2+i}")
    A(f"v_cvt_pk_bf16_f32 v5, v{QG}, v{QG+1}\nds_write_b32 v{MA+1}, v5 offset:{L_Q}\nv_mov_b32 v6, s53")
    A(f"s_waitcnt lgkmcnt(0)\nds_write_b32 v{MA+7}, v6 offset:{L_FQ}")
    for i in range(4): A(f"v_mov_b32 v{ACC+i}, 0")
    if hlate: hissue("L_Cnoh"); A("L_Cnoh:")
    if pretouch and ptpos == 2: issue([(208, 1, XR+2, 0), (208, 1, XR+2, 256), (208, 1, XR, 0), (208, 1, XR, 1024)], sWS, ptfl)
    if pretouch and ptpos == 3:
        A(f"s_and_b32 s40, s{sJ}, 3\ns_lshl_b32 s40, s40, 9\nv_lshlrev_b32 v5, 4, v0\nv_sub_u32 v5, v{XR}, v5\nv_lshl_add_u32 v5, v0, 7, v5\nv_add_u32 v5, s40, v5")
        A(f"s_mov_b64 exec, 15\nglobal_load_dword v208, v5, s[{sWS}:{sWS+1}] {ptfl}")
        A(f"v_lshlrev_b32 v5, 4, v1\nv_sub_u32 v5, v{XR+2}, v5\nv_lshl_add_u32 v5, v0, 7, v5\nglobal_load_dword v208, v5, s[{sWS}:{sWS+1}] {ptfl}\ns_mov_b64 exec, -1")
    waitflag("L_wfK", L_FK, 1, F, MA+7)
    stamp("FK")
    for T in range(4):
        for u in range(4): A(f"ds_read_b128 {v(KF+16*T+4*u,4)}, v{KA+u} offset:{4096*T}")
    waitflag("L_wfq", L_FQ, 4, F, MA+6)
    for u in range(4): A(f"ds_read_b128 {v(QF+4*u,4)}, v{MA+3} offset:{L_Q+64*u}")
    for u in range(4):
        A(f"s_waitcnt lgkmcnt({3-u})")
        for T in range(4):
            A(f"v_mfma_f32_16x16x32_bf16 {v(SC+4*T,4)}, {v(KF+16*T+4*u,4)}, {v(QF+4*u,4)}, {v(SC+4*T,4) if u else 0}")
    E = F
    for T in range(4):
        A(f"v_cndmask_b32 v{SC+4*T}, v{SC+4*T}, v{SC+4*T+1}, s[54:55]\nv_cndmask_b32 v{SC+4*T+2}, v{SC+4*T+2}, v{SC+4*T+3}, s[54:55]")
    for T in range(4): A(f"v_cndmask_b32 v{E+T}, v{SC+4*T}, v{SC+4*T+2}, s[56:57]")
    A(f"v_cvt_pk_bf16_f32 v8, v{E}, v{E+1}\nv_cvt_pk_bf16_f32 v9, v{E+2}, v{E+3}")
    unpack(E, 8, 2)
    for i in range(4): A(f"v_mul_f32 v{E+i}, {SCALE}, v{E+i}")
    A(f"v_cvt_pk_bf16_f32 v8, v{E}, v{E+1}\nv_cvt_pk_bf16_f32 v9, v{E+2}, v{E+3}")
    unpack(E, 8, 2)
    A(f"v_max3_f32 v8, v{E}, v{E+1}, v{E+2}\nv_max_f32 v8, v8, v{E+3}")
    allred([8], "v_max_f32", [0, 1, 4, 5], 9)
    A(f"ds_write_b32 v{MA+4}, v8 offset:{L_MX}")
    A(f"v_mul_f32 v9, {LOG2E ^ 0x80000000}, v8\ns_mov_b32 s40, {LOG2E}")
    for i in range(4): A(f"v_fma_f32 v{E+i}, v{E+i}, s40, v9")
    for i in range(4): A(f"v_exp_f32 v{E+i}, v{E+i}")
    for i in range(4): A(f"v_cvt_pk_bf16_f32 v{SC+i}, v{E+i}, v{E+i}")
    A(f"ds_write_b128 v{MA+5}, {v(SC,4)} offset:{L_P}")
    A(f"v_add_f32 v8, v{E}, v{E+1}\nv_add_f32 v9, v{E+2}, v{E+3}\nv_add_f32 v8, v8, v9")
    allred([8], "v_add_f32", [0, 1, 4, 5], 9)
    A(f"ds_write_b32 v{MA+4}, v8 offset:{L_LW}")
    A(f"s_waitcnt lgkmcnt(0)\nds_write_b32 v{MA+7}, v6 offset:{L_FP}")
    stamp("pready")
    waitflag("L_wfV", L_FV, 4, F, MA+6)
    stamp("FV")
    OLD = [(G+8, 4, XR+2, 0), (G+12, 4, XR+2, 256), (G, 4, XR, 0), (G+4, 4, XR, 1024)]
    if spre:
        A(f"s_cmp_ge_u32 s{sWAVE}, 2\ns_cbranch_scc1 L_nospre\nglobal_load_dwordx4 {v(F,4)}, v{XR+3}, s[{sWS}:{sWS+1}] {spre.replace('plain', '')}\nL_nospre:")
    if pretouch and ptpos == 0: issue(OLD, sWS, ptfl)
    def ldwo():
        for i in range(0 if hack == 3 else 2 if hack == 5 else 4): A(f"global_load_dwordx4 {v(WOR+4*i,4)}, v{FIN+5}, s[{sWO}:{sWO+1}] offset:{1024*i} {nt}")
    if wofirst: ldwo()
    A("s_cmp_eq_u32 s45, 0\ns_cbranch_scc1 L_Cnow2")
    if hack != 2:
        for i in range(4): A(f"global_load_dwordx4 {v(W2R+4*i,4)}, v{FIN+5}, s[{sW2}:{sW2+1}] offset:{1024*i} {nt}")
    A("L_Cnow2:")
    if not wofirst: ldwo()
    if pretouch and ptpos == 1: issue(OLD, sWS, ptfl)
    A("s_cmp_eq_u32 s45, 0\ns_cbranch_scc1 L_Cnoh2")
    if not noh: poll("L_pollH", HLD, 7, HLD, first=(4 if hack in (2, 3) else 6 if hack == 5 else 8) + 4*bool(pretouch and ptpos < 2), narrow=True)
    for i in range(4): A(f"v_add_f32 v{XS+i}, v{XS+i}, v{XS+4+i}")
    allred([XS, XS+1, XS+2, XS+3], "v_add_f32", [0, 1, 2], 7)
    A(f"v_cvt_pk_bf16_f32 v5, v{XS}, v{XS+1}\nv_cvt_pk_bf16_f32 v6, v{XS+2}, v{XS+3}")
    unpack(XS, 5, 2); unpack(XS+4, B1R, 2)
    for i in range(4): A(f"v_add_f32 v{XS+i}, v{XS+i}, v{XS+4+i}")
    A(f"v_cvt_pk_bf16_f32 v5, v{XS}, v{XS+1}\nv_cvt_pk_bf16_f32 v6, v{XS+2}, v{XS+3}")
    unpack(XS, 5, 2)
    for i in range(4): A(f"v_max_f32 v{XS+i}, 0, v{XS+i}")
    for i in range(4): A(f"v_mul_f32 v{XS+i}, v{XS+i}, v{XS+i}")
    for i in range(4): delta(XF + 4*i, XS + i, MASK, 4, 5)

    A("L_Cnoh2:")
    A("s_waitcnt lgkmcnt(0)\ns_barrier")
    stamp("barC")
    def raise2():
        A(f"s_cmp_eq_u32 s62, 0\ns_cbranch_scc1 L_nf2\ns_mov_b64 exec, 1\nglobal_store_dword v{FIN+6}, v{vTG}, s[{sWS}:{sWS+1}] sc1\ns_mov_b64 exec, -1\nL_nf2:")
    if flag2 == 3: raise2()
    A("s_cmp_eq_u32 s45, 0\ns_cbranch_scc1 L_Cnoffn2")
    A(f"s_waitcnt vmcnt({(0 if wofirst or hack == 3 else 2 if hack == 5 else 4) + 4*(ptpos == 1)})")
    for i in range(4): A(f"v_mfma_f32_16x16x32_bf16 {v(ACC,4)}, {v(XF+4*i,4)}, {v(W2R+4*i,4)}, {v(ACC,4)}")
    A("L_Cnoffn2:")
    if owait is not None: A(f"s_waitcnt vmcnt({0 if ptpos == 1 else owait + (flag2 == 3)})")
    if flag2 == 2: raise2()
    stamp("wohere")
    if pipeO: pollpipe("L_pollO", [(XR, 0), (XR, 1024), (XR+2, 0), (XR+2, 256)], [XO + 16*r for r in range(pipeO)], G, 7, stagO)
    else: poll("L_pollO", OLD[2:] if hack == 6 else OLD, 7, [(G+8, 4, XR+2, 0), (G+12, 4, XR+2, 256), (G, 4, FIN+3, 0), (G+4, 4, FIN+4, 0)], strip=not opt)
    if flag2 == 1: raise2()
    stamp("gathO")
    A(f"ds_write_b128 v{XR+6}, {v(ACC,4)} offset:{L_RED+4096}")
    m0, l0, m1, l1 = G+8, G+9, G+12, G+13
    if opt:
        X = (lambda r: "") if pipeO else (lambda r: f"v_xor_b32 v{r}, s{sT}, v{r}")
        D = lambda op, r, b: f"{op}_dpp v{r}, v{r}, v{r} {DPP[b]} row_mask:0xf bank_mask:0xf"
        if hack == 6: A("\n".join(X(G+i) for i in range(8)))
        else: A("\n".join([X(m0), X(m1), f"v_max_f32 v5, v{m0}, v{m1}", X(G), X(G+1), D("v_max_f32", 5, 0), X(G+2), X(G+3), D("v_max_f32", 5, 1),
                     X(G+4), X(G+5), D("v_max_f32", 5, 2), X(G+6), f"v_sub_f32 v{m0}, v{m0}, v5", f"v_sub_f32 v{m1}, v{m1}, v5",
                     f"v_mul_f32 v6, {LOG2E}, v{m0}", f"v_mul_f32 v8, {LOG2E}, v{m1}", "v_exp_f32 v6, v6", "v_exp_f32 v8, v8", X(G+7), X(l0), X(l1)]))
        if hack != 6: A(f"v_mul_f32 v{l0}, v{l0}, v6")
        for i in (0, 2): A(f"v_pk_mul_f32 {v(G+i,2)}, {v(G+i,2)}, v[6:7] op_sel_hi:[1,0]")
        if hack != 6: A(f"v_fmac_f32 v{l0}, v{l1}, v8")
        for i in (0, 2): A(f"v_pk_fma_f32 {v(G+i,2)}, {v(G+4+i,2)}, v[8:9], {v(G+i,2)} op_sel_hi:[1,0,1]")
        for b in (0, 1, 2):
            if hack != 6: A(D("v_add_f32", l0, b))
            if b == 2:
                A(D("v_add_f32", G, b))
                if hack != 6: A(f"v_rcp_f32 v6, v{l0}")
            for r in range(G + (b == 2), G + 4): A(D("v_add_f32", r, b))
        for i in (0, 2):
            if hack != 6: A(f"v_pk_mul_f32 {v(G+i,2)}, {v(G+i,2)}, v[6:7] op_sel_hi:[1,0]")
        M = lambda i: A(f"v_mfma_f32_16x16x32_bf16 {v(F,4)}, {v(XO+4*i,4)}, {v(WOR+4*i,4)}, {v(F,4) if i else 0}")
        if pipeO: XO = XO + 32
        delta(XO, G, MASK, 4, 5); delta(XO+4, G+1, MASK, 4, 8)
        M(0); delta(XO+8, G+2, MASK, 4, 5); M(1); delta(XO+12, G+3, MASK, 4, 8); M(2); M(3)
    else:
        A(f"v_max_f32 v5, v{m0}, v{m1}")
        allred([5], "v_max_f32", [0, 1, 2], 7)
        A(f"v_sub_f32 v{m0}, v{m0}, v5\nv_sub_f32 v{m1}, v{m1}, v5\nv_mul_f32 v{m0}, {LOG2E}, v{m0}\nv_mul_f32 v{m1}, {LOG2E}, v{m1}")
        A(f"v_exp_f32 v{m0}, v{m0}\nv_exp_f32 v{m1}, v{m1}")
        A(f"v_mul_f32 v{l0}, v{l0}, v{m0}")
        for i in range(4): A(f"v_mul_f32 v{G+i}, v{G+i}, v{m0}")
        A(f"v_fmac_f32 v{l0}, v{l1}, v{m1}")
        for i in range(4): A(f"v_fmac_f32 v{G+i}, v{G+4+i}, v{m1}")
        allred([l0, G, G+1, G+2, G+3], "v_add_f32", [0, 1, 2], 7)
        A(f"v_rcp_f32 v{l0}, v{l0}")
        for i in range(4): A(f"v_mul_f32 v{G+i}, v{G+i}, v{l0}")
        for i in range(4): delta(XO + 4*i, G + i, MASK, 4, 5 + (i & 1))
        for i in range(4): A(f"v_mfma_f32_16x16x32_bf16 {v(F,4)}, {v(XO+4*i,4)}, {v(WOR+4*i,4)}, {v(F,4) if i else 0}")
    if hack == 8:
        A(f"s_cmp_ge_u32 s{sWAVE}, 2\ns_cbranch_scc1 L_Cdone\ns_nop 5")
        for i in range(4): A(f"v_mov_b32 v{G+i}, v{F+i}")
        A("s_branch L_h8")
    A(f"ds_write_b128 v{XR+6}, {v(F,4)} offset:{L_RED}")
    A("s_waitcnt lgkmcnt(0)\ns_barrier")
    if ackwait: A(f"s_cmp_ge_u32 s{sWAVE}, 2\ns_cbranch_scc1 L_Cdone")
    else: A(f"s_cmp_eq_u32 s{sWAVE}, 2\ns_cbranch_scc1 L_Cfin\ns_cmp_eq_u32 s{sWAVE}, 3\ns_cbranch_scc1 L_Cdone")
    if not merge: A(f"s_cmp_eq_u32 s{sWAVE}, 1\ns_cbranch_scc1 {'L_Cdone' if hack in (1, 2) else 'L_Cpubf'}")
    if opt:
        PA = lambda a, b: A(f"v_pk_add_f32 {v(a,2)}, {v(a,2)}, {v(b,2)}\nv_pk_add_f32 {v(a+2,2)}, {v(a+2,2)}, {v(b+2,2)}")
        for i in range(4): A(f"ds_read_b128 {v(G+4*i,4)}, v{XR+7} offset:{L_RED+1024*i}")
        A("s_waitcnt lgkmcnt(2)"); PA(G, G+4)
        A("s_waitcnt lgkmcnt(1)"); PA(G, G+8)
        if not merge:
            A("s_branch L_Cpub\nL_Cpubf:")
            A(f"ds_read_b128 {v(G,4)}, v{XR+7} offset:{L_RED+4096}\nds_read_b128 {v(G+12,4)}, v{XR+7} offset:{L_RED+4096+1024}")
        A("L_Cpub:\ns_waitcnt lgkmcnt(0)"); PA(G, G+12)
    else:
        for i in range(4): A(f"ds_read_b128 {v(G+4*i,4)}, v{XR+7} offset:{L_RED+1024*i}")
        A("s_waitcnt lgkmcnt(0)")
        for i in range(4): A(f"v_add_f32 v{G+i}, v{G+i}, v{G+8+i}\nv_add_f32 v{G+4+i}, v{G+4+i}, v{G+12+i}")
        A("s_branch L_Cpub")
        A("L_Cpubf:")
        for i in range(2): A(f"ds_read_b128 {v(G+4*i,4)}, v{XR+7} offset:{L_RED+4096+1024*i}")
        A("s_waitcnt lgkmcnt(0)")
        A("L_Cpub:")
        for i in range(4): A(f"v_add_f32 v{G+i}, v{G+i}, v{G+4+i}")
    A("L_h8:")
    tag(G, 4, vTG)
    store(XR+3, G, 4, sWS, sst)
    stamp("pubS")
    if ackwait: A(f"s_cmp_eq_u32 s{sWAVE}, 1\ns_cbranch_scc1 L_Cdone\ns_waitcnt vmcnt(0)")
    else: A("s_branch L_Cdone")
    A("L_Cfin:")
    if fsleep: A(f"s_sleep {fsleep}")
    if flag2:
        nf = 4 if fall else 1
        for k in range(1, nf): A(f"v_add_u32 v{F+8+k}, {8192*k}, v{FIN+7}")
        A(f"s_mov_b32 s{sCNT}, 0\nL_pf:")
        for k in range(nf): A(f"global_load_dword v{F+k}, v{F+8+k if k else FIN+7}, s[{sWS}:{sWS+1}] sc1")
        A(f"s_add_u32 s{sCNT}, s{sCNT}, 1\ns_waitcnt vmcnt(0)")
        if fall: A(f"v_bitop3_b32 v5, v{F}, v{F+1}, s{sT} bitop3:0x7e\nv_bitop3_b32 v5, v5, v{F+2}, s{sT} bitop3:0xf6\nv_bitop3_b32 v5, v5, v{F+3}, s{sT} bitop3:0xf6\nv_cmp_ne_u32 vcc, 0, v5")
        else: A(f"v_cmp_ne_u32 vcc, s{sT}, v{F}")
        A(f"s_and_b64 exec, exec, vcc\ns_cbranch_scc0 L_pf_x\ns_cmp_lt_u32 s{sCNT}, 4096\ns_cbranch_scc1 L_pf\nL_pf_x:\ns_mov_b64 exec, -1")
        if fdelay: A(f"s_sleep {fdelay}")
    if pipeS: pollpipe("L_pollS", [(XR+4, 0), (XR+5, 0)], [160 + 8*r for r in range(pipeS)], G, 7, stagS)
    else: poll("L_pollS", [(G, 4, XR+4, 0), (G+4, 4, XR+5, 0)][:1 if hack in (1, 2) else 2], 7)
    stamp("gathS")
    if hack == 7: A("s_branch L_h7")
    for a in (G, G+1, G+4, G+5): A(f"v_permlane32_swap_b32 v{a}, v{a+2}")
    for a in (G, G+1, G+4, G+5): A(f"v_add_f32 v{a}, v{a}, v{a+2}")
    for a in (G, G+4): A(f"v_permlane16_swap_b32 v{a}, v{a+1}")
    for a in (G, G+4): A(f"v_add_f32 v{a}, v{a}, v{a+1}")
    allred([G, G+4], "v_add_f32", [0, 1, 2, 3], 7)
    A(f"v_cvt_pk_bf16_f32 v5, v{G}, v{G+4}\nv_lshlrev_b32 v{FIN}, 16, v{FIN}\nv_lshlrev_b32 v{FIN+1}, 16, v{FIN+1}")
    A(f"v_and_b32 v6, 0xffff0000, v5\nv_lshlrev_b32 v5, 16, v5\nv_add_f32 v6, v6, v{FIN+1}")
    bf16r(6, 6)
    A(f"v_mul_f32 v7, {LOG2E ^ 0x80000000}, v6\nv_exp_f32 v7, v7\nv_add_f32 v7, 1.0, v7\nv_rcp_f32 v7, v7\nv_mul_f32 v6, v6, v7")
    bf16r(6, 6)
    A("v_mul_f32 v5, v5, v6"); bf16r(5, 5)
    A(f"v_add_f32 v5, v5, v{FIN}\nv_cvt_pk_bf16_f32 v5, v5, v5")
    A("L_h7:")
    if hops: A("s_branch L_hop0\nL_hopback:")
    if echo:
        r = 64 + 2*CNAMES.index(lx)
        A(f"s_cmp_eq_u32 s2, 0\ns_cbranch_scc0 L_noecho\ns_memrealtime s[58:59]\ns_waitcnt lgkmcnt(0)\ns_sub_u32 s40, s{r}, s64\ns_mul_i32 s40, s40, {echo}\ns_min_u32 s40, s40, 20000")
        A("L_echo:\ns_memrealtime s[60:61]\ns_waitcnt lgkmcnt(0)\ns_sub_u32 s41, s60, s58\ns_cmp_lt_u32 s41, s40\ns_cbranch_scc1 L_echo\nL_noecho:")
    if chain:
        A("s_cmp_eq_u32 s2, 0\ns_cbranch_scc0 L_nochain\nv_mov_b32 v6, 0")
        for k in range(chain):
            A(f"global_load_dword v7, v6, s[{sK if k % 2 else sV}:{(sK if k % 2 else sV)+1}] nt\ns_waitcnt vmcnt(0)\nv_add_u32 v6, {(k % 2) << 23}, v6")
        A("L_nochain:")
    A("s_mov_b32 exec_lo, 0x00010001\ns_mov_b32 exec_hi, 0x00010001")
    A(f"global_store_short v{FIN+2}, v5, s[{sOUT}:{sOUT+1}] {outfl}")
    A("s_cmp_eq_u32 s2, 0\ns_cbranch_scc0 L_Cdone")
    A(f"s_mov_b64 exec, 1\nv_mov_b32 v5, 0\nglobal_store_dword v5, v{vTG}, s[{sWS}:{sWS+1}]")
    A("L_Cdone:")
    stamp("end")
    dump()
    A("s_endpgm")

    cpart = A.L; A.L = []
    role[0] = "S"
    KO, PM = 4, 12
    VV, KF, XP, A1, A2 = 32, 96, 112, 144, 148
    EA = 152
    sW = 33
    if jk: A(f"s_xor_b32 s{sJ}, s{sJ}, {jk}")
    A(f"s_lshr_b32 s34, s2, 7\ns_lshl_b32 s34, s34, 3\ns_add_u32 s34, s34, s{sXC}\ns_lshl_b32 s34, s34, 23\ns_and_b32 s35, s{sJ}, 15")
    if pat in (0, 2):
        A(f"s_lshl_b32 s35, s35, 2\ns_add_u32 s35, s35, s{sWAVE}\ns_lshl_b32 s35, s35, 12\ns_add_u32 s34, s34, s35\ns_add_u32 s34, s34, {28672*256 - 4*4096}")
    else:
        A(f"s_lshl_b32 s36, s{sWAVE}, 4\ns_add_u32 s35, s35, s36\ns_lshl_b32 s35, s35, 12\ns_add_u32 s34, s34, s35\ns_add_u32 s34, s34, {28672*256 - 64*4096}")
    A(f"v_lshlrev_b32 v14, 2, v2\nv_xor_b32 v14, v14, v1\nv_lshlrev_b32 v14, 4, v14\nv_lshl_add_u32 v{KO}, v2, 8, v14")
    for i in range(1, 4): A(f"v_xor_b32 v{KO+i}, {16*i}, v{KO}")
    A(f"s_lshl_b32 s36, s{sWAVE}, 14\ns_sub_u32 s36, s36, {4*16384 - L_K}")
    if not coop: A("s_waitcnt lgkmcnt(0)")
    pr(1)
    addbase(sK, "s34")
    def setup2():
        karg2()
        addbase(sV, "s34")
        A(f"s_sub_u32 s{sW}, s{sWAVE}, 4\nv_lshlrev_b32 v3, 4, v0\ns_lshl_b32 s37, s{sW}, 2\nv_mov_b32 v14, s37\nv_mov_b32 v15, 1")
        if boost: A(f"s_xor_b32 s38, s{sJ}, {jq ^ 1}\ns_and_b32 s38, s38, 3\ns_cselect_b64 vcc, 0, -1")
        pr(0)
        A("s_barrier")
    if not head: setup2()
    stamp("first")
    later = Asm()
    B = later
    B(f"v_and_b32 v26, 3, v0\nv_lshlrev_b32 v26, 4, v26\nv_mov_b32 v{PM}, 0xffff\nv_mov_b32 v{PM+1}, 0\nv_lshlrev_b64 v[{PM}:{PM+1}], v26, v[{PM}:{PM+1}]")
    B(f"s_lshl_b32 s38, s{sW}, 10\nv_lshl_add_u32 v{EA+1}, v0, 4, s38")
    B(f"s_lshl_b32 s38, s{sW}, 11\nv_lshl_add_u32 v{EA+2}, v0, 4, s38")
    B(f"v_and_b32 v24, 1, v0\nv_lshlrev_b32 v24, 10, v24\nv_bfe_u32 v25, v0, 1, 4\nv_lshl_add_u32 v24, v25, 4, v24\ns_lshl_b32 s38, s{sW}, 8\nv_add_u32 v{EA+3}, s38, v24")
    B(f"s_lshl_b32 s38, s{sXC}, 2\ns_add_u32 s38, s38, s{sW}\ns_lshr_b32 s39, s{sJ}, 4\ns_and_b32 s40, s{sJ}, 7\ns_bfe_u32 s41, s{sJ}, 0x10003")
    B(f"s_lshl_b32 s39, s39, 7\ns_lshl_b32 s40, s40, 4\ns_add_u32 s39, s39, s40")
    B(f"s_lshl_b32 s40, s38, 14\ns_lshl_b32 s42, s41, 10\ns_add_u32 s40, s40, s42\ns_add_u32 s40, s40, s39\ns_add_u32 s40, s40, {OP}")
    B(f"v_bfe_u32 v24, v0, 2, 3\nv_lshlrev_b32 v24, 11, v24\nv_and_b32 v25, 3, v0\nv_lshl_add_u32 v24, v25, 8, v24\nv_add_u32 v{EA+4}, s40, v24")
    B(f"s_lshl_b32 s38, s38, 9\ns_lshl_b32 s41, s41, 8\ns_add_u32 s38, s38, s41\ns_add_u32 s38, s38, s39\ns_add_u32 s38, s38, {ML}\nv_mov_b32 v25, s38")
    B(f"s_mov_b32 s42, -1\ns_mov_b32 s43, 0\ns_lshl_b32 s38, s{sXC}, 5\ns_add_u32 s38, s38, s{sJ}\nv_cndmask_b32 v{EA+4}, v25, v{EA+4}, s[42:43]")
    B(f"s_lshl_b32 s38, s38, 2\ns_add_u32 s38, s38, s{sW}\ns_lshl_b32 s38, s38, 9\ns_add_u32 s38, s38, {OP}\nv_lshl_add_u32 v{EA+9}, v0, 4, s38\nv_cndmask_b32 v{EA+9}, v25, v{EA+9}, s[42:43]")
    B(f"s_lshl_b32 s38, s{sW}, 4\nv_mov_b32 v{EA+6}, s38\nv_mov_b32 v{EA+8}, {TAGM}")
    chunks = [later.L[i::1] for i in (0,)][0]
    per = -(-len(chunks) // 8)
    def bump(r, T):
        if pat != 2: return addbase(r, 262144)
        A(f"s_and_b32 s44, s{sJ}, 3\ns_xor_b32 s45, s44, {T+1}\ns_xor_b32 s44, s44, {T}\ns_sub_u32 s44, s45, s44\ns_add_u32 s44, s44, 16\ns_lshl_b32 s44, s44, 14")
        addbase(r, "s44")
    cnt = [0]
    def after():
        cnt[0] += 1
        n = cnt[0]
        if n == head: setup2()
        if n == 13: A(f"s_waitcnt lgkmcnt(0)\ns_load_dword s{sT}, s[{sWS}:{sWS+1}], 0")
        if n == trig: A(f"ds_write_b32 v14, v15 offset:{L_FT}")
        if 4 <= n < 12:
            for line in chunks[(n-4)*per:(n-3)*per]: A(line)
        p = paceK if n <= 16 else (paceV if n - 16 <= paceVUntil else 0)
        if p and n + (2 if coop and n < p else 0) >= p and n < 32:
            if n <= boost: A(f"s_waitcnt vmcnt({p-1+bw})\ns_cbranch_vccnz L_b{n}\ns_waitcnt vmcnt({p-1})\nL_b{n}:")
            else: A(f"s_waitcnt vmcnt({p-1})")
        if coop and n == paceK - 1:
            assert n >= head
            A(f"ds_write_b32 v14, v15 offset:{L_FW+16}")
        if n == 16: stamp("Kiss")
    for T in range(4):
        A(f"s_mov_b32 m0, s36\ns_add_u32 s36, s36, 4096")
        for i in range(4):
            A(f"global_load_lds_dwordx4 v{KO+i}, s[{sK}:{sK+1}] offset:{1024*i} {nt}"); after()
        if T < 3: bump(sK, T)
    for n in range(16):
        A(f"global_load_dwordx4 {v(VV+4*n,4)}, v3, s[{sV}:{sV+1}] offset:{1024*(n&3)} {nt}"); after()
        if n == kpos: A(f"s_waitcnt vmcnt({n+1})\nds_write_b32 v14, v15 offset:{L_FK}")
        if n == fvpos and not woTrig: A(f"ds_write_b32 v14, v15 offset:{L_FV}")
        if n & 3 == 3 and n < 15: bump(sV, n >> 2)
    stamp("issued")
    get_tag()
    A(f"v_mov_b32 v{EA+7}, s{sT}\ns_mov_b32 s36, {LOG2E}")
    waitflag("L_wfP", L_FP, 1, 4, 14)
    A(f"s_mov_b32 s40, s52\nds_read_b128 v[4:7], v{EA+1} offset:{L_P}\ns_waitcnt lgkmcnt(0)")
    for T in range(4):
        for i in range(4):
            for j in range(2):
                A(f"v_and_b32_dpp v{XP+2*(4*T+i)+j}, v{4+T}, v{PM+j} quad_perm:[{i},{i},{i},{i}] row_mask:0xf bank_mask:0xf")
    stamp("pready")
    for n in range(16):
        if opt and n == wpos:
            A("v_mov_b32 v8, 0")
            waitflag("L_wfP4", L_FP, 4, 4, 8)
            A(f"ds_read_b128 v[16:19], v{EA+6} offset:{L_MX}\nds_read_b128 v[20:23], v{EA+6} offset:{L_LW}\ns_waitcnt lgkmcnt(1)")
            A(f"v_max3_f32 v24, v16, v17, v18\nv_max_f32 v24, v24, v19\nv_mul_f32 v25, {LOG2E ^ 0x80000000}, v24")
            for i in range(4): A(f"v_fma_f32 v{16+i}, v{16+i}, s36, v25")
            for i in range(4): A(f"v_exp_f32 v{8+2*i}, v{16+i}")
            A("s_waitcnt lgkmcnt(0)\nv_mul_f32 v25, v20, v8\nv_fmac_f32 v25, v21, v10\nv_fmac_f32 v25, v22, v12\nv_fmac_f32 v25, v23, v14")
        A(f"s_waitcnt vmcnt({15-n})")
        if woTrig == n + 1: A(f"ds_write_b32 v14, v15 offset:{L_FV}")
        A(f"v_mfma_f32_16x16x16_bf16 {v(A1,4)}, {v(XP+2*n,2)}, {v(VV+4*n,2)}, {v(A1,4) if n else 0}")
        A(f"v_mfma_f32_16x16x16_bf16 {v(A2,4)}, {v(XP+2*n,2)}, {v(VV+4*n+2,2)}, {v(A2,4) if n else 0}")
    stamp("PVdone")
    if hack == 4:
        for i in range(2): A(f"v_cndmask_b32 v{A1+i}, v{24+i}, v{A1+i}, s[42:43]")
        tag(A1, 4, EA+7)
        A("s_mov_b32 exec_hi, 1"); store(EA+4, A1, 4, sWS); A("s_barrier\ns_endpgm")
    A(f"ds_write_b128 v{EA+2}, {v(A1,4)} offset:{L_O}\nds_write_b128 v{EA+2}, {v(A2,4)} offset:{L_O+1024}")
    A("s_waitcnt lgkmcnt(0)\ns_barrier")
    stamp("barC")
    if opt:
        for i in range(4): A(f"ds_read_b128 {v(KF+4*i,4)}, v{EA+3} offset:{L_O+2048*i}")
        A("s_waitcnt lgkmcnt(3)")
        for i in (0, 2): A(f"v_pk_mul_f32 {v(KF+i,2)}, {v(KF+i,2)}, v[8:9] op_sel_hi:[1,0]")
        for k in range(1, 4):
            A(f"s_waitcnt lgkmcnt({3-k})")
            for i in (0, 2): A(f"v_pk_fma_f32 {v(KF+i,2)}, {v(KF+4*k+i,2)}, {v(8+2*k,2)}, {v(KF+i,2)} op_sel_hi:[1,0,1]")
    else:
        A(f"ds_read_b128 v[16:19], v{EA+6} offset:{L_MX}\nds_read_b128 v[20:23], v{EA+6} offset:{L_LW}")
        for i in range(4): A(f"ds_read_b128 {v(KF+4*i,4)}, v{EA+3} offset:{L_O+2048*i}")
        A("s_waitcnt lgkmcnt(5)")
        A(f"v_max3_f32 v24, v16, v17, v18\nv_max_f32 v24, v24, v19\nv_mul_f32 v25, {LOG2E ^ 0x80000000}, v24")
        for i in range(4): A(f"v_fma_f32 v{16+i}, v{16+i}, s36, v25")
        for i in range(4): A(f"v_exp_f32 v{16+i}, v{16+i}")
        A("s_waitcnt lgkmcnt(3)")
        A("v_mul_f32 v25, v20, v16")
        for i in range(4): A(f"v_mul_f32 v{KF+i}, v{KF+i}, v16")
        A("v_fmac_f32 v25, v21, v17\nv_fmac_f32 v25, v22, v18\nv_fmac_f32 v25, v23, v19")
        for k in range(1, 4):
            A(f"s_waitcnt lgkmcnt({3-k})")
            for i in range(4): A(f"v_fmac_f32 v{KF+i}, v{KF+4*k+i}, v{16+k}")
    for i in range(2): A(f"v_cndmask_b32 v{KF+i}, v{24+i}, v{KF+i}, s[42:43]")
    tag(KF, 4, EA+7)
    A("s_mov_b32 exec_hi, 1")
    store(EA+4, KF, 4, sWS, ost)
    stamp("pub")
    A("s_cmp_eq_u32 s40, 1\ns_cbranch_scc1 L_Snob")
    store(EA+9, KF, 4, sWSB, "sc1")
    A("L_Snob:")
    dump()
    A("L_end:\ns_endpgm")
    A.L = entry + A.L + cpart
    if cpf: A(".fill 640, 4, 0xbf800000")
    for h in range(hops):
        A(f".p2align 10\nL_hop{h}:\ns_branch {'L_hop%d' % (h+1) if h + 1 < hops else 'L_hopback'}")

    head = (hdr or "") + f"; @launch grid=(256,1,1) block=(512,1,1) lds={LDS_BYTES + (16384 if coop else 0)}\n"
    head += f'.amdgcn_target "amdgcn-amd-amdhsa--gfx950"\n.text\n.globl {K}\n.p2align 8\n.type {K},@function\n'
    tail = f""".section .rodata,"a"
.p2align 6
.amdhsa_kernel {K}
  .amdhsa_next_free_vgpr 216
  .amdhsa_next_free_sgpr 102
  .amdhsa_accum_offset 216
  .amdhsa_group_segment_fixed_size 0
  .amdhsa_kernarg_size 104
  .amdhsa_user_sgpr_count 2
  .amdhsa_user_sgpr_kernarg_segment_ptr 1
  .amdhsa_system_sgpr_workgroup_id_x 1
  .amdhsa_float_denorm_mode_32 3
.end_amdhsa_kernel
"""
    return head + A.finish() + tail

def header():
    ref = open(f"cdna_kernels/{NAME}.s.ref").read().split("\n")
    return "\n".join(l for l in ref if l.startswith(";") and "@launch" not in l and not l.startswith("; Override") and not l.startswith("; grid=")) + "\n"

if __name__ == "__main__":
    out = sys.argv[1] if len(sys.argv) > 1 else f"cdna_kernels/{NAME}.s"
    open(out, "w").write(gen(hdr=header()))
```

```python
import sys, os
sys.path.insert(0, os.path.dirname(os.path.abspath(__file__)))
from asmlib import Asm
NAME = "recurrent_scan__sliding_block_cached__dense_activation_squared_relu__decode"

FLG = 0x300000
IDS = 0x1000
QP, HP, OP, ML, SPS, SPF, STAMP = 0x10000, 0x50000, 0x100000, 0x180000, 0x200000, 0x250000, 0x400000
SPSTR = 1152
DELTA = 0x800000
L_K, L_Q, L_MX, L_LW, L_O, L_RED = 18432, 0, 1280, 1344, 1536, 9728
L_QSTR = 272
L_FT, L_FV, L_FQ, L_FK, L_FP = 1408, 1424, 1440, 1456, 1472
L_FW = 1488
L_W = 83968
L_W1 = L_W + 16384
L_XN = L_O + 2048
L_P = L_RED
LDS_BYTES = 83968
TAGM = 0x3ff
LOG2E = 0x3fb8aa3b
SCALE = 0x3db504f3

CNAMES = ["start", "issued", "LNdone", "pub1", "FT", "qgath", "FK", "pready", "FV", "first", "barC", "wohere", "gathO", "pubS", "gathS", "end"]
SNAMES = ["start", "first", "Kiss", "issued", "pready", "PVdone", "barC", "pub"]
def v(a, n=1): return f"v{a}" if n == 1 else f"v[{a}:{a+n-1}]"

def gen(diag=False, nt="nt", limit=200000, hdr=None, hops=0, trig=17, paceK=7, paceV=7, kpos=5, warmLN=False,
        wofirst=False, pretouch=True, fbmask=31, prioC=0, diagwo=True, woTrig=0, spin=1, pat=0, owait=2, ackwait=True, head=3, lite=False, paceVUntil=16, fvpos=15, dirty=0, fsleep=0, lx="first", cpf=244, sfirst=True, probe=False, smtest=False, qst="", qld="sc1", noq=False, noh=False, preQ=0, hlate=True, tlb=0, chain=0, echo=0, flag2=0, dfl="", ost="", hack=0, swap=False, opt=1, wpos=10, jx=0, jq=3, jk=0, wpat=0, boost=0, bw=1, pipeS=2, stagS=3, pipeO=0, stagO=1, spre="", sst="sc1", outfl="", ptpos=0, ptfl="sc1", fall=False, fdelay=0, merge=True, mstr=2304, coop=True, latetag=True, eskew=0, tr=True):
    A = Asm()
    sX, sK, sV, sWQ, sWO, sW1, sB1, sW2, sB2, sOUT, sWS = 4, 6, 8, 10, 12, 16, 18, 20, 22, 24, 26
    sT, sWAVE, sXC, sJ = 28, 29, 30, 31
    sCNT, sWSB, sID, sT8 = 46, 48, 50, 51
    role = ["C"]
    def stamp(k):
        names = SNAMES if role[0] == "S" else CNAMES
        if diag or ((lite or echo) and role[0] == "C" and k in ("start", "end", lx)): A(f"s_memrealtime s[{64+2*names.index(k)}:{65+2*names.index(k)}]")
    def addbase(r, off):
        A(f"s_add_u32 s{r}, s{r}, {off}\ns_addc_u32 s{r+1}, s{r+1}, 0")
    DPP = {0: "quad_perm:[1,0,3,2]", 1: "quad_perm:[2,3,0,1]", 2: "row_half_mirror", 3: "row_mirror"}
    def allred(regs, op, bits, tmp):
        for b in bits:
            for r in regs:
                if b < 4:
                    A(f"{op}_dpp v{r}, v{r}, v{r} {DPP[b]} row_mask:0xf bank_mask:0xf")
                else:
                    A(f"v_mov_b32 v{tmp}, v{r}")
                    A(f"v_permlane{16 if b == 4 else 32}_swap_b32 v{r}, v{tmp}")
                    A(f"{op} v{r}, v{r}, v{tmp}")
    def bf16r(dst, src):
        A(f"v_cvt_pk_bf16_f32 v{dst}, 0, v{src}")
    def unpack(dst, src, n):
        for i in range(n):
            A(f"v_lshlrev_b32 v{dst+2*i}, 16, v{src+i}\nv_and_b32 v{dst+2*i+1}, 0xffff0000, v{src+i}")
    def delta(dst, val, masks, n, tmp):
        A(f"v_cvt_pk_bf16_f32 v{tmp}, v{val}, v{val}")
        for j in range(n): A(f"v_and_b32 v{dst+j}, v{tmp}, v{masks+j}")
    def tag(r, n, vT):
        for i in range(n): A(f"v_bfi_b32 v{r+i}, v{vT+1}, v{vT}, v{r+i}")
    def issue(loads, base, fl="sc1"):
        for (d, n, a, off) in loads:
            A(f"global_load_dword{'x%d' % n if n > 1 else ''} {v(d, n)}, v{a}, s[{base}:{base+1}] offset:{off} {fl}")
    def poll(name, loads, tmp, loadsB=None, first=None, narrow=False, strip=True):
        A(f"s_mov_b32 s{sCNT}, 0")
        if first is not None: A(f"s_waitcnt vmcnt({first})\ns_branch {name}_f")
        A(f"{name}:")
        if diag and name[-1] in "OS": A("s_memtime s[58:59]")
        issue(loads, sWS)
        dws = [r for (d, n, a, off) in loads for r in range(d, d + n)]
        A(f"{name}_c:\ns_waitcnt vmcnt(0)")
        A(f"{name}_f:\ns_add_u32 s{sCNT}, s{sCNT}, 1")
        if diag and name[-1] in "OS":
            r = 60 if name[-1] == "O" else 62
            A(f"s_memtime s[100:101]\ns_waitcnt lgkmcnt(0)\ns_sub_u32 s{r+1}, s100, s58\ns_cmp_eq_u32 s{sCNT}, 2\ns_cselect_b32 s{r}, s{r+1}, s{r}")
        if strip:
            for d in dws: A(f"v_xor_b32 v{d}, s{sT8 if narrow else sT}, v{d}")
            A(f"v_or3_b32 v{tmp}, v{dws[0]}, v{dws[1]}, v{dws[2]}")
            for k in range(3, len(dws) - 1, 2): A(f"v_or3_b32 v{tmp}, v{tmp}, v{dws[k]}, v{dws[k+1]}")
            if len(dws) % 2 == 0: A(f"v_or_b32 v{tmp}, v{tmp}, v{dws[-1]}")
        else:
            A(f"v_bitop3_b32 v{tmp}, v{dws[0]}, v{dws[1]}, s{sT} bitop3:0x7e")
            for d in dws[2:]: A(f"v_bitop3_b32 v{tmp}, v{tmp}, v{d}, s{sT} bitop3:0xf6")
        A(f"v_and_b32 v{tmp}, {0xff if narrow else TAGM}, v{tmp}\nv_cmp_ne_u32 vcc, 0, v{tmp}")
        A(f"s_and_b64 exec, exec, vcc\ns_cbranch_scc0 {name}_x")
        A(f"s_cmp_gt_u32 s{sCNT}, {limit}\ns_cbranch_scc1 {name}_x")
        if loadsB:
            A(f"s_and_b32 s52, s{sCNT}, {fbmask}\ns_cbranch_scc1 {name}\ns_cmp_eq_u32 s53, 1\ns_cbranch_scc1 {name}")
            issue(loadsB, sWSB)
            A(f"s_branch {name}_c")
        else:
            A(f"s_branch {name}")
        A(f"{name}_x:\ns_mov_b64 exec, -1")
        if diag: A(f"s_mov_b32 s{ {'H':96,'Q':96,'O':97,'S':98}[name[-1]] }, s{sCNT}")
    def pollpipe(name, addrs, sets, final, tmp, stag, loadsB=None):
        nl = len(addrs); R = len(sets)
        def iss(r): issue([(sets[r] + 4*k, 4, a, off) for k, (a, off) in enumerate(addrs)], sWS)
        A(f"s_mov_b32 s{sCNT}, 0\ns_mov_b64 s[54:55], -1")
        for r in range(R):
            iss(r)
            if r < R - 1 and stag: A(f"s_sleep {stag}")
        A(f"{name}:")
        for r in range(R):
            dws = list(range(sets[r], sets[r] + 4*nl))
            A(f"s_waitcnt vmcnt({nl*(R-1)})")
            A(f"v_bitop3_b32 v{tmp}, v{dws[0]}, v{dws[1]}, s{sT} bitop3:0x7e")
            for d in dws[2:]: A(f"v_bitop3_b32 v{tmp}, v{tmp}, v{d}, s{sT} bitop3:0xf6")
            A(f"v_and_b32 v{tmp}, {TAGM}, v{tmp}\nv_cmp_ne_u32 vcc, 0, v{tmp}\ns_andn2_b64 exec, exec, vcc")
            for k, d in enumerate(dws): A(f"v_xor_b32 v{final+k}, s{sT}, v{d}")
            A(f"s_and_b64 exec, s[54:55], vcc\ns_cbranch_scc0 {name}_x\ns_mov_b64 s[54:55], exec")
            iss(r)
        A(f"s_add_u32 s{sCNT}, s{sCNT}, 1\ns_cmp_lt_u32 s{sCNT}, {limit}\ns_cbranch_scc1 {name}")
        A(f"{name}_x:\ns_mov_b64 exec, -1")
        if diag: A(f"s_mov_b32 s{ {'O':97,'S':98}[name[-1]] }, s{sCNT}")
    def store(addr, data, n, base, fl=""):
        A(f"global_store_dwordx{n} v{addr}, {v(data,n)}, s[{base}:{base+1}] {fl}")
    def waitflag(name, off, n, t, addr):
        A(f"{name}:\nds_read_b{32*n} {v(t,n)}, v{addr} offset:{off}\ns_waitcnt lgkmcnt(0)")
        if n == 4: A(f"v_and_b32 v{t}, v{t}, v{t+1}\nv_and_b32 v{t+2}, v{t+2}, v{t+3}\nv_and_b32 v{t}, v{t}, v{t+2}")
        A(f"v_readfirstlane_b32 s52, v{t}\ns_cmp_lg_u32 s52, 0\ns_cbranch_scc1 {name}_x\ns_sleep {spin}\ns_branch {name}\n{name}_x:")
    def wsb():
        A(f"s_add_u32 s{sWSB}, s{sWS}, {DELTA}\ns_addc_u32 s{sWSB+1}, s{sWS+1}, 0")
    def get_tag(b=True):
        if b: wsb()
        A(f"s_waitcnt lgkmcnt(0)\ns_add_u32 s{sT}, s{sT}, 1\ns_and_b32 s{sT}, s{sT}, {TAGM}\ns_and_b32 s{sT8}, s{sT}, 0xff")
        A(f"s_getreg_b32 s{sID}, hwreg(HW_REG_XCC_ID)\ns_lshl_b32 s{sID}, s{sID}, 10\ns_or_b32 s{sID}, s{sID}, s{sT}")
    def pr(k):
        if probe: A(f"s_memrealtime s[{96+2*k}:{97+2*k}]")
    def dump():
        if probe:
            A(f"s_waitcnt lgkmcnt(0)\ns_lshl_b32 s40, s2, 3\ns_add_u32 s40, s40, s{sWAVE}\ns_lshl_b32 s40, s40, 4\ns_add_u32 s40, s40, {STAMP+0x10000}")
            A(f"s_mov_b64 exec, 1\nv_mov_b32 v5, s40\nv_mov_b32 v6, s64\nv_mov_b32 v7, s96\nv_mov_b32 v8, s98\nglobal_store_dwordx3 v5, v[6:8], s[{sWS}:{sWS+1}]")
        if lite and role[0] == "C":
            A(f"s_waitcnt lgkmcnt(0)\ns_lshl_b32 s40, s2, 2\ns_add_u32 s40, s40, s{sWAVE}\ns_lshl_b32 s40, s40, 4\ns_add_u32 s40, s40, {STAMP}")
            A(f"s_mov_b64 exec, 1\nv_mov_b32 v5, s40\nv_mov_b32 v6, s64\nv_mov_b32 v7, s94\nv_mov_b32 v8, s{64+2*CNAMES.index(lx)}\nglobal_store_dwordx3 v5, v[6:8], s[{sWS}:{sWS+1}]")
        if not diag: return
        A("s_waitcnt lgkmcnt(0)")
        A(f"s_lshl_b32 s40, s2, 3\ns_add_u32 s40, s40, s{sWAVE}\ns_lshl_b32 s40, s40, 7\ns_add_u32 s40, s40, {STAMP}")
        A("s_mov_b64 exec, 1\nv_mov_b32 v5, s40")
        for k in range(16):
            A(f"v_mov_b32 v6, s{64+2*k}\nglobal_store_dword v5, v6, s[{sWS}:{sWS+1}] offset:{4*k}")
        for k in range(4):
            A(f"v_mov_b32 v6, s{60+k}\nglobal_store_dword v5, v6, s[{sWS}:{sWS+1}] offset:{80+4*k}")
        A(f"s_getreg_b32 s40, hwreg(HW_REG_HW_ID)\nv_mov_b32 v6, s40\nglobal_store_dword v5, v6, s[{sWS}:{sWS+1}] offset:96")
        for k in range(4):
            A(f"v_mov_b32 v6, s{96+k}\nglobal_store_dword v5, v6, s[{sWS}:{sWS+1}] offset:{64+4*k}")

    K = NAME + "_kernel"
    A(f"{K}:")
    stamp("start")
    A("s_load_dwordx16 s[4:19], s[0:1], 0")
    if cpf:
        A(f"s_getpc_b64 s[40:41]\nv_mul_u32_u24 v5, 20, v0\nglobal_load_dword v211, v5, s[40:41] offset:{cpf}")
    def karg2(): A("s_load_dwordx4 s[20:23], s[0:1], 64\ns_load_dwordx2 s[24:25], s[0:1], 80\ns_load_dwordx2 s[26:27], s[0:1], 96")
    A("v_lshrrev_b32 v1, 6, v0\nv_and_b32 v0, 63, v0")
    A(f"s_lshr_b32 s{sJ}, s2, 3\ns_and_b32 s{sXC}, s2, 7")
    if jx: A(f"s_xor_b32 s{sJ}, s{sJ}, {jx}")
    A(f"v_readfirstlane_b32 s{sWAVE}, v1")
    A(f"s_cmp_ge_u32 s{sJ}, 32\ns_cbranch_scc1 L_end")
    if swap: A(f"s_xor_b32 s{sWAVE}, s{sWAVE}, 4")
    A("v_and_b32 v1, 15, v0\nv_lshrrev_b32 v2, 4, v0")
    if diag:
        for k in range(1, 18): A(f"s_mov_b64 s[{64+2*k}:{65+2*k}], 0")
        A("s_mov_b64 s[60:61], 0\ns_mov_b64 s[62:63], 0")
    if coop:
        if tr:
            A(f"s_and_b32 s40, s{sJ}, 7\ns_lshl_b32 s41, s{sXC}, 3\ns_add_u32 s40, s40, s41\ns_lshl_b32 s40, s40, 7")
            A(f"s_and_b32 s41, s{sJ}, 24\ns_add_u32 s41, s41, s{sWAVE}\ns_lshl_b32 s41, s41, 17\ns_add_u32 s40, s40, s41")
            A("v_and_b32 v4, 7, v0\nv_lshrrev_b32 v6, 3, v0\nv_and_b32 v7, 2, v6\nv_xor_b32 v7, v7, v4\nv_lshlrev_b32 v7, 4, v7")
            A("v_lshl_add_u32 v8, v6, 13, v7\nv_xor_b32 v9, 64, v8\nv_add_u32 v9, 64512, v9")
            A(f"s_lshl_b32 s41, s{sWAVE}, 11\ns_add_u32 m0, s41, {L_W}")
            A("v_and_b32 v3, 1, v6\nv_lshl_add_u32 v5, v2, 3, v4\nv_lshlrev_b32 v5, 5, v5\nv_lshl_add_u32 v5, v3, 10, v5")
        else:
            A(f"s_xor_b32 s40, s{sJ}, {jq}\ns_lshr_b32 s41, s40, 2\ns_and_b32 s40, s40, 3\ns_lshl_b32 s42, s{sXC}, 2\ns_add_u32 s40, s40, s42\ns_lshl_b32 s40, s40, 8")
            A(f"s_lshl_b32 s41, s41, 5\ns_add_u32 s41, s41, s{sWAVE}\ns_lshl_b32 s41, s41, 14\ns_add_u32 s40, s40, s41")
            A("v_lshlrev_b32 v8, 17, v2\nv_lshl_add_u32 v8, v1, 4, v8\nv_add_u32 v9, 7168, v8")
            A(f"s_lshl_b32 s41, s{sWAVE}, 11\ns_add_u32 m0, s41, {L_W}")
            A("v_bfe_u32 v3, v0, 3, 1\nv_and_b32 v4, 7, v0\nv_lshl_add_u32 v5, v2, 3, v4\nv_lshlrev_b32 v5, 5, v5\nv_lshl_add_u32 v5, v3, 10, v5")
        A(f"s_cmp_lt_u32 s{sWAVE}, 2\ns_waitcnt lgkmcnt(0)\ns_cbranch_scc0 L_nox")
        A(f"global_load_dwordx4 v[16:19], v5, s[{sX}:{sX+1}]\nglobal_load_dwordx4 v[20:23], v5, s[{sX}:{sX+1}] offset:16\nL_nox:")
        addbase(sWQ, "s40")
        if lite or echo: stamp("first")
        A(f"global_load_lds_dwordx4 v8, s[{sWQ}:{sWQ+1}] {nt}\nglobal_load_lds_dwordx4 v9, s[{sWQ}:{sWQ+1}] offset:1024 {nt}")
    A(f"s_cmp_lt_u32 s{sWAVE}, 4\ns_cbranch_scc1 L_C")
    entry = A.L; A.L = []
    A(".p2align 8\nL_C:")
    if not coop: A("v_bfe_u32 v3, v0, 3, 1\nv_and_b32 v4, 7, v0")
    A(f"s_cmp_ge_u32 s{sWAVE}, 2\ns_cbranch_scc1 L_Cnoffn")

    MASK = 10; vTG = 14
    XS, XR, F, XO, W, ACC = 16, 24, 32, 48, 112, 176
    B1R = 180
    XF = 184
    FIN = 200
    def masks():
        A("v_and_b32 v5, 3, v0\nv_lshlrev_b32 v5, 4, v5\nv_mov_b32 v6, 0xffff\nv_mov_b32 v7, 0\nv_lshlrev_b64 v[6:7], v5, v[6:7]")
        A("v_cmp_gt_u32 vcc, 4, v4")
        A(f"v_cndmask_b32 v{MASK}, 0, v6, vcc\nv_cndmask_b32 v{MASK+1}, 0, v7, vcc")
        A(f"v_cndmask_b32 v{MASK+2}, v6, 0, vcc\nv_cndmask_b32 v{MASK+3}, v7, 0, vcc")
    if tr:
        A(f"s_cmp_eq_u32 s{sWAVE}, 0\ns_cbranch_scc1 L_Cwdone\ns_cmp_eq_u32 s{sXC}, 7\ns_cbranch_scc1 L_Cnoffn")
        A(f"s_lshr_b32 s40, s{sJ}, 2\ns_mul_i32 s39, s40, {64*3584}\ns_and_b32 s41, s{sJ}, 3\ns_lshl_b32 s42, s{sXC}, 2\ns_add_u32 s41, s41, s42\ns_lshl_b32 s42, s41, 7\ns_add_u32 s39, s39, s42")
        A(f"v_mul_u32_u24 v8, 3584, v6\nv_xor_b32 v9, 64, v7\nv_add_u32 v9, v9, v8\nv_add_u32 v9, {8*3584-1024}, v9\nv_add_u32 v8, v8, v7")
        addbase(sW1, "s39")
        for t in range(0, 8, 2):
            A(f"s_mov_b32 m0, {L_W1 + 1024*t}")
            if t: addbase(sW1, 16*3584)
            A(f"global_load_lds_dwordx4 v8, s[{sW1}:{sW1+1}] {nt}\nglobal_load_lds_dwordx4 v9, s[{sW1}:{sW1+1}] offset:1024 {nt}")
        A("L_Cwdone:")
        karg2()
        pr(0)
        A("s_barrier")
        stamp("issued")
        A(f"v_mov_b32 v{XF}, v5")
        A(f"s_cmp_eq_u32 s{sWAVE}, 1\ns_cbranch_scc1 L_Cp1")
        A(f"s_lshr_b32 s40, s{sJ}, 3\ns_lshl_b32 s34, s40, 8\ns_mov_b32 s35, {L_W}")
        A(f"s_bfe_u32 s41, s{sJ}, 0x20001\ns_lshl_b32 s42, s{sXC}, 2\ns_add_u32 s41, s41, s42\ns_lshl_b32 s41, s41, 2\ns_add_u32 s41, s41, s40\ns_lshl_b32 s41, s41, 1")
        A(f"s_and_b32 s42, s{sJ}, 1\ns_add_u32 s41, s41, s42\ns_lshl_b32 s37, s41, 8\ns_add_u32 s37, s37, {QP}\ns_mov_b32 s38, {32*4*512}\ns_branch L_Cpa")
        A(f"L_Cp1:\ns_lshl_b32 s34, s40, 7\ns_mov_b32 s35, {L_W1}\ns_mul_i32 s37, s40, 7168\ns_lshl_b32 s41, s41, 8\ns_add_u32 s37, s37, s41\ns_add_u32 s37, s37, {HP}\ns_mov_b32 s38, {8*7168}")
        A("L_Cpa:")
        A("v_bfe_u32 v5, v0, 1, 2\nv_lshl_add_u32 v5, v5, 2, v2\nv_lshl_add_u32 v9, v5, 4, s37\nv_and_b32 v5, 1, v0\nv_mad_u32_u24 v9, v5, s38, v9")
        A(f"v_lshl_add_u32 v6, v2, 3, v4\nv_lshlrev_b32 v6, 3, v6\nv_lshl_add_u32 v{XF+1}, v3, 10, v6\nv_add_u32 v{XF+1}, s34, v{XF+1}")
        A(f"s_lshl_b32 s40, s{sWAVE}, 9\nv_lshl_add_u32 v{XF+2}, v3, 8, v6\nv_add_u32 v{XF+2}, s40, v{XF+2}")
        A(f"v_lshlrev_b32 v{XF+3}, 8, v5\nv_lshl_add_u32 v{XF+3}, v2, 4, v{XF+3}\nv_add_u32 v{XF+3}, s40, v{XF+3}")
        A(f"v_bfe_u32 v5, v0, 2, 2\nv_and_b32 v6, 3, v0\nv_lshlrev_b32 v6, 3, v6\nv_lshl_add_u32 v6, v5, 7, v6\nv_lshl_add_u32 v6, v2, 10, v6")
        A(f"v_and_b32 v5, 2, v5\nv_lshl_add_u32 v6, v5, 4, v6\nv_and_b32 v5, 1, v2\nv_lshl_add_u32 v6, v5, 6, v6")
        for cg in range(4): A(f"v_xor_b32 v7, {32*cg}, v6\nv_add_u32 v{XF+4+cg}, s35, v7")
        A("v_and_b32 v5, 2, v0\nv_cmp_ne_u32 s[54:55], 0, v5\nv_and_b32 v5, 4, v0\nv_cmp_ne_u32 s[56:57], 0, v5")
        masks()
        A(f"s_cmp_eq_u32 s{sWAVE}, 1\ns_cbranch_scc1 L_Cw8\ns_waitcnt vmcnt(2)\nL_Cw8:\ns_waitcnt vmcnt(10)\nL_Cw:")
        A(f"ds_write_b128 v{XF}, {v(XS,4)} offset:{L_O}\nds_write_b128 v{XF}, {v(XS+4,4)} offset:{L_O+16}")
        A(f"ds_read_b64 {v(XR,2)}, v{XF+1} offset:{L_O}")
    else:
        if jq: A(f"s_xor_b32 s{sJ}, s{sJ}, {jq}")
        A(f"s_sub_u32 s33, 2, s{sWAVE}\ns_lshr_b32 s40, s{sJ}, s33\ns_lshl_b32 s41, s40, s33\ns_sub_u32 s41, s{sJ}, s41\ns_lshl_b32 s42, s{sXC}, s33\ns_add_u32 s41, s41, s42")
        if jq: A(f"s_xor_b32 s{sJ}, s{sJ}, {jq}")
        A(f"s_movk_i32 s32, 8192\ns_cmp_eq_u32 s{sWAVE}, 1\ns_cmovk_i32 s32, 3584")
        if wpat == 1:
            A("s_add_u32 s34, s33, 4\ns_lshl_b32 s39, s32, s34\ns_mul_i32 s39, s40, s39\ns_lshl_b32 s35, s32, 3\ns_lshl_b32 s42, s41, 8\ns_add_u32 s39, s39, s42")
            A("v_lshl_add_u32 v5, v2, 3, v4\nv_lshlrev_b32 v5, 5, v5\nv_lshl_add_u32 v5, v3, 10, v5")
            A("s_add_u32 s34, s33, 5\ns_lshl_b32 s34, s40, s34\nv_lshl_add_u32 v6, v2, 4, s34\nv_lshl_add_u32 v6, v3, 10, v6")
            A("s_sub_u32 s36, s33, 1\ns_lshl_b32 s36, s36, 6\nv_add_u32 v7, s36, v6")
        else:
            A("s_add_u32 s34, s33, 2\ns_lshl_b32 s35, s32, s34\ns_mul_i32 s39, s40, s35\ns_lshl_b32 s39, s39, 2\ns_lshl_b32 s42, s41, 8\ns_add_u32 s39, s39, s42")
            A("v_lshl_add_u32 v5, v2, 3, v4\nv_lshlrev_b32 v5, 5, v5\nv_lshl_add_u32 v5, v3, 10, v5")
            A("v_lshl_add_u32 v6, s40, 2, v2\ns_add_u32 s34, s33, 3\nv_lshlrev_b32 v6, s34, v6\nv_lshl_add_u32 v6, v3, 10, v6")
            A("s_sub_u32 s36, s33, 1\ns_lshl_b32 s36, s36, 4\nv_add_u32 v7, s36, v6")
        A("v_mul_lo_u32 v8, v2, s35\nv_lshl_add_u32 v8, v1, 4, v8")
        A(f"s_mul_i32 s44, s{sXC}, s{sWAVE}\ns_cmp_eq_u32 s44, 7\ns_cbranch_scc1 L_Cnoffn")
        if coop:
            A(f"v_mov_b32 v{XF}, v5\nv_mov_b32 v{XF+1}, v6\nv_mov_b32 v{XF+2}, v7")
            A(f"s_cmp_eq_u32 s{sWAVE}, 0\ns_cbranch_scc1 L_Cwdone")
            addbase(sW1, "s39")
            for t in range(8):
                A(f"global_load_dwordx4 {v(W+4*t,4)}, v8, s[{sW1}:{sW1+1}] {nt}")
                if t != 7: addbase(sW1, "s32")
        else:
            A(f"s_cmp_eq_u32 s{sWAVE}, 1\ns_waitcnt lgkmcnt(0)")
            if not ackwait or lite or echo: stamp("first")
            pr(1)
            A(f"global_load_dwordx4 {v(XS,4)}, v5, s[{sX}:{sX+1}]\nglobal_load_dwordx4 {v(XS+4,4)}, v5, s[{sX}:{sX+1}] offset:16")
            A(f"s_cselect_b64 s[42:43], s[{sW1}:{sW1+1}], s[{sWQ}:{sWQ+1}]")
            A(f"global_load_dwordx4 {v(XR,4)}, v6, s[{sX}:{sX+1}]\nglobal_load_dwordx4 {v(XR+4,4)}, v7, s[{sX}:{sX+1}]")
            addbase(42, "s39")
            for t in range(16):
                if t == 8: A(f"s_cmp_eq_u32 s{sWAVE}, 1\ns_cbranch_scc1 L_Cwdone")
                A(f"global_load_dwordx4 {v(W+4*t,4)}, v8, s[42:43] {nt}")
                if t == 7 and wpat == 1: addbase(42, 25*8192)
                elif t != 15: addbase(42, "s32")
        A("L_Cwdone:")
        karg2()
        pr(0)
        A("s_barrier")
        stamp("issued")
        if not latetag: A(f"s_waitcnt lgkmcnt(0)\ns_load_dword s{sT}, s[{sWS}:{sWS+1}], 0")
        if prioC: A(f"s_setprio {prioC}")
        A(f"s_lshl_b32 s37, s41, 3\ns_add_u32 s37, s37, s40\ns_lshl_b32 s37, s37, 9\ns_add_u32 s37, s37, {QP}\ns_mov_b32 s38, {32*8*512}")
        A(f"s_cmp_eq_u32 s{sWAVE}, 0\ns_cbranch_scc1 L_Cpa")
        A(f"s_mul_i32 s37, s40, 7168\ns_lshl_b32 s42, s41, 9\ns_add_u32 s37, s37, s42\ns_add_u32 s37, s37, {HP}\ns_mov_b32 s38, {16*7168}")
        A("L_Cpa:")
        A("v_and_b32 v5, 1, v2\nv_lshl_add_u32 v9, v5, 4, s37\nv_lshl_add_u32 v9, v1, 5, v9\nv_lshrrev_b32 v5, 1, v2\nv_mad_u32_u24 v9, v5, s38, v9")
        if preQ: A(f"global_load_dwordx4 {v(XF,4)}, v9, s[{sWS}:{sWS+1}] sc1")
        A("L_Cmask:")
        masks()
        if not latetag:
            get_tag()
            A(f"v_mov_b32 v{vTG}, s{sT}\nv_mov_b32 v{vTG+1}, {TAGM}")
        if coop: A(f"s_cmp_eq_u32 s{sWAVE}, 1\ns_cbranch_scc1 L_Cw8\ns_waitcnt vmcnt(2)\nL_Cw8:\ns_waitcnt vmcnt(10)\nL_Cw:")
        if coop:
            A(f"ds_write_b128 v{XF}, {v(XS,4)} offset:{L_O}\nds_write_b128 v{XF}, {v(XS+4,4)} offset:{L_O+16}")
            A(f"ds_read_b128 {v(XR,4)}, v{XF+1} offset:{L_O}\nds_read_b128 {v(XR+4,4)}, v{XF+2} offset:{L_O}")
        if not coop: A(f"s_cmp_eq_u32 s{sWAVE}, 1\ns_cbranch_scc1 L_Cw8\ns_waitcnt vmcnt({16+preQ})\ns_branch L_Cw\nL_Cw8:\ns_waitcnt vmcnt({8+preQ})\nL_Cw:")
    unpack(F, XS, 8)
    A(f"v_add_f32 v5, v{F}, v{F+1}\nv_add_f32 v6, v{F+2}, v{F+3}")
    for i in range(4, 16, 2): A(f"v_add_f32 v5, v5, v{F+i}\nv_add_f32 v6, v6, v{F+i+1}")
    A("v_add_f32 v5, v5, v6")
    allred([5], "v_add_f32", [0, 1, 2, 4, 5], 6)
    A("v_mul_f32 v5, 0x3b000000, v5")
    for i in range(16): A(f"v_sub_f32 v{F+i}, v{F+i}, v5")
    A(f"v_mul_f32 v6, v{F}, v{F}\nv_mul_f32 v7, v{F+1}, v{F+1}")
    for i in range(2, 16, 2): A(f"v_fmac_f32 v6, v{F+i}, v{F+i}\nv_fmac_f32 v7, v{F+i+1}, v{F+i+1}")
    A("v_add_f32 v6, v6, v7")
    allred([6], "v_add_f32", [0, 1, 2, 4, 5], 7)
    A("v_mul_f32 v6, 0x3b000000, v6")
    bf16r(5, 5); bf16r(6, 6)
    A("v_add_f32 v6, 0x3727c5ac, v6"); bf16r(6, 6)
    A("v_sqrt_f32 v6, v6"); bf16r(6, 6)
    A("v_rcp_f32 v6, v6")
    if coop or latetag: A("s_waitcnt lgkmcnt(0)")
    if latetag: A(f"s_load_dword s{sT}, s[{sWS}:{sWS+1}], 0")
    if tr:
        unpack(F, XR, 2)
        for i in range(4): A(f"v_sub_f32 v{F+i}, v{F+i}, v5")
        for i in range(4): bf16r(F+i, F+i)
        for i in range(4): A(f"v_mul_f32 v{F+i}, v{F+i}, v6")
        A(f"v_cvt_pk_bf16_f32 v{XR}, v{F}, v{F+1}\nv_cvt_pk_bf16_f32 v{XR+1}, v{F+2}, v{F+3}\nds_write_b64 v{XF+2}, {v(XR,2)} offset:{L_XN}")
        for k in range(4): A(f"ds_read_b128 {v(XO+4*k,4)}, v{XF+3} offset:{L_XN+64*k}")
        stamp("LNdone")
        get_tag()
        A(f"v_mov_b32 v{vTG}, s{sT}\nv_mov_b32 v{vTG+1}, {TAGM}")
        A(f"s_lshl_b32 s40, s{sWAVE}, 2\nv_mov_b32 v7, s40\nv_mov_b32 v8, 1\ns_waitcnt vmcnt(8)")
        A(f"s_cmp_eq_u32 s{sWAVE}, 1\ns_cbranch_scc0 L_Cl1\nds_write_b32 v7, v8 offset:{L_FW}\ns_waitcnt vmcnt(0)\ns_branch L_Cl0")
        A(f"L_Cl1:\ns_waitcnt vmcnt(0)\nds_write_b32 v7, v8 offset:{L_FW}")
        waitflag("L_wfW0", L_FW, 4, F, 7); waitflag("L_wfW1", L_FW+16, 4, F, 7)
        A("L_Cl0:")
        AC4 = XO + 16
        for k in range(4):
            if k == 2: A(f"s_cmp_eq_u32 s{sWAVE}, 1\ns_cbranch_scc1 L_Cm8")
            for cg in range(4):
                for h in range(2): A(f"ds_read_b64_tr_b16 {v(W+16*k+4*cg+2*h,2)}, v{XF+4+cg} offset:{4096*k+512*h}")
            for cg in range(4):
                A(f"s_waitcnt lgkmcnt({6-2*cg})")
                A(f"v_mfma_f32_16x16x32_bf16 {v(AC4+4*cg,4)}, {v(W+16*k+4*cg,4)}, {v(XO+4*k,4)}, {v(AC4+4*cg,4) if k else 0}")
        A("L_Cm8:\ns_nop 7")
        for i in range(4): A(f"v_cndmask_b32 v{AC4+i}, v{AC4+i}, v{AC4+4+i}, s[54:55]\nv_cndmask_b32 v{AC4+8+i}, v{AC4+8+i}, v{AC4+12+i}, s[54:55]")
        for i in range(4): A(f"v_cndmask_b32 v{ACC+i}, v{AC4+i}, v{AC4+8+i}, s[56:57]")
    else:
        unpack(F, XR, 8)
        for i in range(16): A(f"v_sub_f32 v{F+i}, v{F+i}, v5")
        for i in range(16): bf16r(F+i, F+i)
        for i in range(16): A(f"v_mul_f32 v{F+i}, v{F+i}, v6")
        for t in range(16):
            if t == 8: A(f"s_cmp_eq_u32 s{sWAVE}, 1\ns_cbranch_scc1 L_Cd8")
            delta(XO + 4*t, F + t, MASK, 4, 5)
        A("L_Cd8:")
        if warmLN: A(f"s_cmp_ge_u32 s{sWAVE}, 2\ns_cbranch_scc1 L_C23b")
        stamp("LNdone")
        if latetag:
            get_tag()
            A(f"v_mov_b32 v{vTG}, s{sT}\nv_mov_b32 v{vTG+1}, {TAGM}")
        if coop:
            A(f"s_lshl_b32 s40, s{sWAVE}, 2\nv_mov_b32 v7, s40\nv_mov_b32 v8, 1\ns_waitcnt vmcnt(8)")
            A(f"s_cmp_eq_u32 s{sWAVE}, 1\ns_cbranch_scc0 L_Cl1\nds_write_b32 v7, v8 offset:{L_FW}\ns_branch L_Cl0")
            A(f"L_Cl1:\ns_waitcnt vmcnt(0)\nds_write_b32 v7, v8 offset:{L_FW}")
            waitflag("L_wfW0", L_FW, 4, F, 7); waitflag("L_wfW1", L_FW+16, 4, F, 7)
            A("v_lshlrev_b32 v7, 4, v0\nv_add_u32 v7, %d, v7" % L_W)
            for t in range(16): A(f"ds_read_b128 {v(W+4*t,4)}, v7 offset:{1024*t}")
            A("L_Cl0:\ns_waitcnt vmcnt(0)")
            for t in range(16):
                if t == 8: A(f"s_cmp_eq_u32 s{sWAVE}, 1\ns_cbranch_scc1 L_Cm8")
                if t % 4 == 0: A(f"s_waitcnt lgkmcnt({12 - t})")
                A(f"v_mfma_f32_16x16x32_bf16 {v(ACC,4)}, {v(XO+4*t,4)}, {v(W+4*t,4)}, {v(ACC,4) if t else 0}")
        else:
            A(f"s_cmp_eq_u32 s{sWAVE}, 1\ns_cbranch_scc0 L_Cl0\ns_waitcnt vmcnt({preQ})\nL_Cl0:")
            for t in range(16):
                if t == 8: A(f"s_cmp_eq_u32 s{sWAVE}, 1\ns_cbranch_scc1 L_Cm8")
                if t % 4 == 0: A(f"s_waitcnt vmcnt({12 - t + preQ})")
                A(f"v_mfma_f32_16x16x32_bf16 {v(ACC,4)}, {v(XO+4*t,4)}, {v(W+4*t,4)}, {v(ACC,4) if t else 0}")
        A("L_Cm8:\ns_nop 7")
    A("v_mov_b32 v5, 0xff")
    for i in range(4): A(f"v_add_u32 v{ACC+i}, 0x80, v{ACC+i}")
    for i in range(4): A(f"v_bfi_b32 v{ACC+i}, v5, v{vTG}, v{ACC+i}")
    if tr: A("s_mov_b32 exec_lo, 0x00ff00ff\ns_mov_b32 exec_hi, 0x00ff00ff")
    store(9, ACC, 4, sWS, qst)
    if tr: A("s_mov_b64 exec, -1")
    A(f"v_mov_b32 v{B1R+2}, v9")
    stamp("pub1")
    if not trig:
        A(f"s_cmp_eq_u32 s{sWAVE}, 0\ns_cbranch_scc0 L_Cmid\nv_mov_b32 v5, 0\nv_mov_b32 v6, 1\nds_write_b32 v5, v6 offset:{L_FT}")
    A("s_branch L_Cmid")

    A(f"L_Cnoffn:\nv_mov_b32 v9, 0\nv_mov_b32 v{B1R+2}, 0")
    karg2()
    A(f"v_mov_b32 v5, 0\nv_and_b32 v6, 31, v0\nv_lshlrev_b32 v6, 2, v6\nds_write_b32 v6, v5 offset:{L_FT}")
    A("s_waitcnt lgkmcnt(0)"); pr(1); pr(0); A("s_barrier")
    A(f"s_load_dword s{sT}, s[{sWS}:{sWS+1}], 0")
    wsb()
    if warmLN:
        A(f"s_cmp_eq_u32 s{sWAVE}, 2\ns_cbranch_scc1 L_Cw\nL_C23b:")
    get_tag(False)
    A(f"v_mov_b32 v{vTG}, s{sT}\nv_mov_b32 v{vTG+1}, {TAGM}")
    if coop: A(f"s_lshl_b32 s40, s{sWAVE}, 2\nv_mov_b32 v7, s40\nv_mov_b32 v8, 1\ns_waitcnt vmcnt(0)\nds_write_b32 v7, v8 offset:{L_FW}")
    A(f"s_cmp_eq_u32 s{sWAVE}, 3\ns_cbranch_scc0 L_Cnoid")
    A(f"s_lshl_b32 s40, s{sXC}, 5\ns_add_u32 s40, s40, s{sJ}\ns_lshl_b32 s40, s40, 2\ns_add_u32 s40, s40, {IDS}")
    A(f"v_mov_b32 v5, s40\nv_mov_b32 v6, s{sID}\ns_mov_b64 exec, 1\nglobal_store_dword v5, v6, s[{sWS}:{sWS+1}] sc1\ns_mov_b64 exec, -1")
    if eskew:
        A(f"s_cmp_eq_u32 s{sJ}, 0\ns_cbranch_scc0 L_nosk\ns_lshl_b32 s40, s{sXC}, 2\ns_add_u32 s40, s40, 0x2000\nv_mov_b32 v5, s40\nv_mov_b32 v6, s64")
        A(f"s_mov_b64 exec, 1\nglobal_store_dword v5, v6, s[{sWS}:{sWS+1}] sc1\ns_mov_b64 exec, -1\nL_nosk:")
    if tlb:
        A(f"s_lshr_b32 s40, s2, 7\ns_lshl_b32 s40, s40, 3\ns_add_u32 s40, s40, s{sXC}\ns_lshl_b32 s40, s40, 23\ns_and_b32 s41, s{sJ}, 15\ns_lshl_b32 s41, s41, 14\ns_add_u32 s40, s40, s41\ns_add_u32 s40, s40, {28672*256}")
        A("v_lshlrev_b32 v5, 18, v0\nv_add_u32 v5, s40, v5\ns_mov_b64 exec, 15")
        A(f"global_load_dword v210, v5, s[{sV}:{sV+1}] nt")
        if tlb > 1: A(f"global_load_dword v210, v5, s[{sK}:{sK+1}] nt")
        A(f"s_mov_b64 exec, 1\ns_lshl_b32 s40, s{sXC}, 3\ns_lshr_b32 s41, s{sJ}, 2\ns_add_u32 s40, s40, s41\ns_lshl_b32 s41, s40, 16\nv_mov_b32 v5, s41")
        A(f"global_load_dword v210, v5, s[{sWO}:{sWO+1}] nt\ns_min_u32 s40, s40, 55\ns_lshl_b32 s41, s40, 15\nv_mov_b32 v5, s41\nglobal_load_dword v210, v5, s[{sW2}:{sW2+1}] nt")
        A(f"v_mov_b32 v5, {SPF + 0x4c000}\nglobal_load_dword v210, v5, s[{sWS}:{sWS+1}] nt\nv_mov_b32 v5, 0")
        A(f"global_load_dword v210, v5, s[{sB1}:{sB1+1}]\nglobal_load_dword v210, v5, s[{sOUT}:{sOUT+1}] nt\ns_mov_b64 exec, -1")
    if dirty:
        A("s_lshl_b32 s40, s2, 15\ns_add_u32 s40, s40, 0x1000000\nv_lshl_add_u32 v5, v0, 4, s40")
        for k in range(dirty): A(f"global_store_dwordx4 v5, v[16:19], s[{sWS}:{sWS+1}] {dfl}\nv_add_u32 v5, 1024, v5")
    A("L_Cnoid:")
    masks()

    A("L_Cmid:")
    QG, QF, SC, KA, MA, KF = XO, XO + 16, XO + 32, XO + 48, XO + 52, W
    A(f"s_cmp_lt_u32 s{sXC}, 7\ns_cselect_b32 s45, 2, 0\ns_cmp_lt_u32 s{sWAVE}, s45\ns_cselect_b32 s45, 1, 0")
    A(f"s_lshr_b32 s40, s{sJ}, 4\ns_lshl_b32 s40, s40, 5\ns_lshl_b32 s41, s{sXC}, 2\ns_add_u32 s40, s40, s41\ns_add_u32 s40, s40, s{sWAVE}")
    A(f"s_lshl_b32 s40, s40, {11 if tr else 12}\ns_add_u32 s40, s40, {QP}\nv_lshl_add_u32 v{MA}, v0, 4, s40")
    if not trig: A(f"s_add_u32 s58, s{sWS}, s40\ns_addc_u32 s59, s{sWS+1}, 0")
    A(f"s_mul_i32 s40, s{sWAVE}, {L_QSTR}\nv_and_b32 v5, 31, v0\nv_lshl_add_u32 v{MA+1}, v5, 3, s40\nv_lshrrev_b32 v6, 5, v0\nv_lshl_add_u32 v{MA+1}, v6, 2, v{MA+1}")
    A(f"s_lshl_b32 s40, s{sXC}, 7\ns_add_u32 s40, s40, {IDS}\nv_lshl_add_u32 v{MA+2}, v5, 2, s40")
    A(f"v_and_b32 v5, 3, v1\nv_lshlrev_b32 v5, 10, v5\nv_lshrrev_b32 v6, 2, v1\nv_lshl_add_u32 v5, v6, 8, v5\ns_lshl_b32 s40, s{sWAVE}, 14\ns_add_u32 s40, s40, {L_K}\nv_add_u32 v5, s40, v5")
    for u in range(4):
        A(f"v_add_u32 v7, {4*u}, v2\nv_xor_b32 v7, v7, v1\nv_lshl_add_u32 v{KA+u}, v7, 4, v5")
    A(f"v_mul_u32_u24 v{MA+3}, {L_QSTR}, v6\nv_lshl_add_u32 v{MA+3}, v2, 4, v{MA+3}")
    A(f"s_lshl_b32 s40, s{sWAVE}, 2\nv_lshl_add_u32 v{MA+4}, v6, 4, s40\nv_mov_b32 v{MA+7}, s40\nv_mov_b32 v{MA+6}, 0")
    A(f"s_lshl_b32 s40, s{sWAVE}, 10\nv_lshl_add_u32 v{MA+5}, v0, 4, s40")
    A("v_and_b32 v5, 1, v0\nv_cmp_ne_u32 s[54:55], 0, v5\nv_and_b32 v5, 2, v0\nv_cmp_ne_u32 s[56:57], 0, v5")
    A(f"s_lshl_b32 s40, s{sXC}, 3\ns_lshr_b32 s41, s{sJ}, 2\ns_add_u32 s40, s40, s41\ns_lshl_b32 s40, s40, 1\ns_add_u32 s40, s40, s{sWAVE}")
    A(f"s_lshl_b32 s41, s40, 6\ns_add_u32 s41, s41, {HP}\nv_mul_u32_u24 v6, 7168, v4\nv_lshl_add_u32 v6, v2, 4, v6\nv_add_u32 v6, s41, v6")
    A(f"v_mul_u32_u24 v8, {(8 if tr else 16)*7168}, v3\nv_add_u32 v{MA+9}, v6, v8\nv_add_u32 v{MA+10}, {8*7168}, v{MA+9}")
    A(f"s_lshl_b32 s41, s40, 5\nv_lshl_add_u32 v{MA+8}, v2, 3, s41")
    A(f"s_lshl_b32 s40, s{sXC}, 5\ns_add_u32 s40, s40, s{sJ}")
    A("s_lshr_b32 s41, s40, 6\ns_lshl_b32 s41, s41, 7\ns_and_b32 s42, s40, 15\ns_lshl_b32 s42, s42, 3\ns_add_u32 s41, s41, s42")
    A("s_bfe_u32 s42, s40, 0x10004\ns_lshl_b32 s42, s42, 2\ns_add_u32 s41, s41, s42")
    A("s_bfe_u32 s42, s40, 0x10005\ns_lshl_b32 s42, s42, 9\ns_add_u32 s42, s42, s41")
    A(f"v_add_lshl_u32 v{FIN+2}, v2, s42, 1\nv_add_lshl_u32 v7, v2, s41, 1")
    A(f"global_load_ushort v{FIN}, v{FIN+2}, s[{sX}:{sX+1}]\nglobal_load_ushort v{FIN+1}, v7, s[{sB2}:{sB2+1}]")
    W2R, WOR, G = W, W + 16, W + 32
    A(f"s_and_b32 s40, s{sJ}, 3\ns_lshl_b32 s40, s40, 8\ns_lshr_b32 s41, s{sJ}, 2")
    A(f"s_lshl_b32 s42, s{sXC}, 3\ns_add_u32 s47, s42, s41")
    A(f"s_lshl_b32 s42, s47, 1\ns_add_u32 s42, s42, s{sWAVE}\ns_lshl_b32 s42, s42, 14\ns_add_u32 s42, s42, s40")
    addbase(sW2, "s42")
    A(f"s_lshl_b32 s42, s47, 2\ns_add_u32 s42, s42, s{sWAVE}\ns_lshl_b32 s43, s42, 14\ns_add_u32 s43, s43, s40")
    addbase(sWO, "s43")
    A(f"v_lshlrev_b32 v{FIN+5}, 12, v2\nv_lshl_add_u32 v{FIN+5}, v1, 4, v{FIN+5}")
    A(f"s_lshl_b32 s42, s42, 11\ns_add_u32 s42, s42, {OP}\nv_lshl_add_u32 v{XR}, v0, 4, s42")
    A(f"s_lshr_b32 s42, s47, 1\ns_lshl_b32 s42, s42, 9\ns_add_u32 s42, s42, {ML}\nv_lshl_add_u32 v{XR+2}, v1, 4, s42")
    A(f"s_lshl_b32 s42, s{sXC}, 16\ns_bfe_u32 s43, s{sJ}, 0x30002\ns_lshl_b32 s43, s43, 8\ns_add_u32 s42, s42, s43\ns_lshl_b32 s43, s{sWAVE}, 6\ns_add_u32 s42, s42, s43\ns_add_u32 s42, s42, {OP}")
    A(f"v_lshl_add_u32 v7, v3, 4, v4\nv_lshlrev_b32 v7, 11, v7\nv_lshl_add_u32 v7, v2, 4, v7\nv_add_u32 v{FIN+3}, s42, v7\nv_add_u32 v{FIN+4}, {8*2048}, v{FIN+3}")
    if merge:
        A(f"s_and_b32 s40, s{sJ}, 3\ns_lshl_b32 s40, s40, 6\ns_add_u32 s40, s40, s47\ns_mul_i32 s40, s40, {mstr}")
        A(f"s_lshl_b32 s41, s{sWAVE}, 10\ns_add_u32 s40, s40, s41\ns_add_u32 s40, s40, {SPS}\nv_lshl_add_u32 v{XR+3}, v0, 4, s40")
        A(f"s_lshl_b32 s40, s{sXC}, 5\ns_add_u32 s40, s40, s{sJ}\ns_lshr_b32 s41, s40, 6\ns_mul_i32 s41, s41, {64*mstr}\ns_and_b32 s40, s40, 63\ns_lshl_b32 s40, s40, 5")
        A(f"s_add_u32 s40, s40, s41\ns_add_u32 s40, s40, {SPS}\nv_mul_u32_u24 v{XR+4}, {mstr}, v0\nv_add_u32 v{XR+4}, s40, v{XR+4}\nv_add_u32 v{XR+5}, 16, v{XR+4}")
    else:
        A(f"s_and_b32 s40, s{sJ}, 3\ns_lshl_b32 s40, s40, 6\ns_add_u32 s40, s40, s47\ns_mul_i32 s40, s40, {SPSTR}")
        A(f"s_cmp_eq_u32 s{sWAVE}, 0\ns_cselect_b32 s41, 0, {SPF-SPS}\ns_add_u32 s40, s40, s41\ns_add_u32 s40, s40, {SPS}\nv_lshl_add_u32 v{XR+3}, v0, 4, s40")
        A(f"s_lshl_b32 s40, s{sXC}, 5\ns_add_u32 s40, s40, s{sJ}\ns_lshr_b32 s41, s40, 6\ns_mul_i32 s41, s41, {64*SPSTR}\ns_and_b32 s40, s40, 63\ns_lshl_b32 s40, s40, 4")
        A(f"s_add_u32 s40, s40, s41\ns_add_u32 s40, s40, {SPS}\nv_mul_u32_u24 v{XR+4}, {SPSTR}, v0\nv_add_u32 v{XR+4}, s40, v{XR+4}\nv_add_u32 v{XR+5}, {SPF-SPS}, v{XR+4}")
    if flag2:
        A(f"s_and_b32 s40, s{sJ}, 3\ns_lshl_b32 s40, s40, 6\ns_add_u32 s40, s40, s47\ns_lshl_b32 s40, s40, 7\ns_add_u32 s40, s40, {FLG}\nv_mov_b32 v{FIN+6}, s40")
        if fall: A(f"s_mov_b32 s40, {FLG}\nv_lshl_add_u32 v{FIN+7}, v0, 7, s40")
        else: A(f"s_lshr_b32 s40, s{sXC}, 1\ns_lshl_b32 s40, s40, 13\ns_add_u32 s40, s40, {FLG}\nv_lshl_add_u32 v{FIN+7}, v0, 7, s40")
        A(f"s_cmp_eq_u32 s{sWAVE}, 3\ns_cselect_b32 s62, 1, 0\ns_mov_b32 s63, 0")
    A(f"s_lshl_b32 s40, s{sWAVE}, 10\nv_lshl_add_u32 v{XR+6}, v0, 4, s40\nv_lshlrev_b32 v{XR+7}, 4, v0")
    if merge: A(f"s_lshl_b32 s40, s{sWAVE}, 9\nv_lshrrev_b32 v7, 1, v0\nv_lshl_add_u32 v{XR+7}, v7, 4, s40\nv_and_b32 v7, 1, v0\nv_lshl_add_u32 v{XR+7}, v7, 12, v{XR+7}")
    if trig: waitflag("L_wfT", L_FT, 4, F, MA+6)
    else:
        waitflag("L_wfT", L_FT, 1, F, MA+6)
        A(f"s_mov_b32 s{sCNT}, 0\nL_sq:")
        for k in range(8): A(f"s_load_dword s{32+k}, s[58:59], {512*k} glc")
        A(f"s_add_u32 s{sCNT}, s{sCNT}, 1\ns_waitcnt lgkmcnt(0)")
        A(f"s_xor_b32 s40, s32, s{sT8}")
        for k in range(1, 8): A(f"s_xor_b32 s41, s{32+k}, s{sT8}\ns_or_b32 s40, s40, s41")
        A(f"s_and_b32 s40, s40, 0xff\ns_cbranch_scc0 L_sq_x\ns_cmp_lt_u32 s{sCNT}, 64\ns_cbranch_scc1 L_sq\nL_sq_x:")
        if diag: A(f"s_mov_b32 s99, s{sCNT}")
    stamp("FT")
    if smtest:
        A(f"s_lshl_b32 s41, s2, 9\ns_add_u32 s41, s41, {QP}\ns_add_u32 s42, s{sWS}, s41\ns_addc_u32 s43, s{sWS+1}, 0")
        A("s_waitcnt lgkmcnt(0)\ns_memtime s[58:59]\ns_waitcnt lgkmcnt(0)\ns_load_dword s41, s[42:43], 0 glc\ns_waitcnt lgkmcnt(0)\ns_memtime s[100:101]\ns_waitcnt lgkmcnt(0)\ns_sub_u32 s99, s100, s58")
        A("s_memtime s[58:59]\ns_waitcnt lgkmcnt(0)\ns_load_dword s41, s[42:43], 0 glc\ns_waitcnt lgkmcnt(0)\ns_memtime s[100:101]\ns_waitcnt lgkmcnt(0)\ns_sub_u32 s41, s100, s58\ns_lshl_b32 s41, s41, 16\ns_or_b32 s99, s99, s41")
    QLD = [(QG + 4*k, 4, MA, 1024*k) for k in range(2 if hack == 9 or tr else 4)]
    HLD = [(XS, 4, MA+9, 0), (XS+4, 4, MA+10, 0)][:1 if tr else 2]
    A(f"global_load_dword v{MA+11}, v{MA+2}, s[{sWS}:{sWS+1}] sc1")
    if not noq: issue(QLD, sWS, qld)
    def hissue(lab):
        A(f"s_cmp_eq_u32 s45, 0\ns_cbranch_scc1 {lab}")
        if not noh: issue(HLD, sWS, qld)
        A(f"global_load_dwordx2 {v(B1R,2)}, v{MA+8}, s[{sB1}:{sB1+1}]")
        if hack == 2:
            for i in range(4): A(f"global_load_dwordx4 {v(XF+4*i,4)}, v{FIN+5}, s[{sW2}:{sW2+1}] offset:{1024*i} {nt}")
    if hlate: A("s_waitcnt vmcnt(0)")
    else:
        hissue("L_Cnoh")
        A("s_waitcnt vmcnt(3)\ns_branch L_Cnoh1\nL_Cnoh:\ns_waitcnt vmcnt(0)\nL_Cnoh1:")
    A(f"v_cmp_ne_u32 vcc, s{sID}, v{MA+11}\ns_mov_b32 s53, 1\ns_cbranch_vccz L_Cnob\ns_mov_b32 s53, 3")
    A(f"s_cmp_eq_u32 s{sWAVE}, 0\ns_cselect_b32 s40, 1, s45\ns_cmp_eq_u32 s40, 0\ns_cbranch_scc1 L_Cnob")
    if tr: A("s_mov_b32 exec_lo, 0x00ff00ff\ns_mov_b32 exec_hi, 0x00ff00ff")
    store(B1R+2, ACC, 4, sWSB, "sc1")
    if tr: A("s_mov_b64 exec, -1")
    A("L_Cnob:")
    if not noq: poll("L_pollQ", QLD, 7, QLD, first=63, narrow=True)
    stamp("qgath")
    if tr:
        for i in range(4): A(f"v_add_f32 v{QG+i}, v{QG+i}, v{QG+4+i}")
    else:
        for i in range(4): A(f"v_add_f32 v{QG+i}, v{QG+i}, v{QG+4+i}\nv_add_f32 v{QG+8+i}, v{QG+8+i}, v{QG+12+i}")
        for i in range(4): A(f"v_add_f32 v{QG+i}, v{QG+i}, v{QG+8+i}")
    for i in range(2): A(f"v_permlane32_swap_b32 v{QG+i}, v{QG+2+i}")
    for i in range(2): A(f"v_add_f32 v{QG+i}, v{QG+i}, v{QG+2+i}")
    A(f"v_cvt_pk_bf16_f32 v5, v{QG}, v{QG+1}\nds_write_b32 v{MA+1}, v5 offset:{L_Q}\nv_mov_b32 v6, s53")
    A(f"s_waitcnt lgkmcnt(0)\nds_write_b32 v{MA+7}, v6 offset:{L_FQ}")
    for i in range(4): A(f"v_mov_b32 v{ACC+i}, 0")
    if hlate: hissue("L_Cnoh"); A("L_Cnoh:")
    if pretouch and ptpos == 2: issue([(208, 1, XR+2, 0), (208, 1, XR+2, 256), (208, 1, XR, 0), (208, 1, XR, 1024)], sWS, ptfl)
    if pretouch and ptpos == 3:
        A(f"s_and_b32 s40, s{sJ}, 3\ns_lshl_b32 s40, s40, 9\nv_lshlrev_b32 v5, 4, v0\nv_sub_u32 v5, v{XR}, v5\nv_lshl_add_u32 v5, v0, 7, v5\nv_add_u32 v5, s40, v5")
        A(f"s_mov_b64 exec, 15\nglobal_load_dword v208, v5, s[{sWS}:{sWS+1}] {ptfl}")
        A(f"v_lshlrev_b32 v5, 4, v1\nv_sub_u32 v5, v{XR+2}, v5\nv_lshl_add_u32 v5, v0, 7, v5\nglobal_load_dword v208, v5, s[{sWS}:{sWS+1}] {ptfl}\ns_mov_b64 exec, -1")
    waitflag("L_wfK", L_FK, 1, F, MA+7)
    stamp("FK")
    for T in range(4):
        for u in range(4): A(f"ds_read_b128 {v(KF+16*T+4*u,4)}, v{KA+u} offset:{4096*T}")
    waitflag("L_wfq", L_FQ, 4, F, MA+6)
    for u in range(4): A(f"ds_read_b128 {v(QF+4*u,4)}, v{MA+3} offset:{L_Q+64*u}")
    for u in range(4):
        A(f"s_waitcnt lgkmcnt({3-u})")
        for T in range(4):
            A(f"v_mfma_f32_16x16x32_bf16 {v(SC+4*T,4)}, {v(KF+16*T+4*u,4)}, {v(QF+4*u,4)}, {v(SC+4*T,4) if u else 0}")
    E = F
    for T in range(4):
        A(f"v_cndmask_b32 v{SC+4*T}, v{SC+4*T}, v{SC+4*T+1}, s[54:55]\nv_cndmask_b32 v{SC+4*T+2}, v{SC+4*T+2}, v{SC+4*T+3}, s[54:55]")
    for T in range(4): A(f"v_cndmask_b32 v{E+T}, v{SC+4*T}, v{SC+4*T+2}, s[56:57]")
    for i in range(4): bf16r(E+i, E+i)
    for i in range(4): A(f"v_mul_f32 v{E+i}, {SCALE}, v{E+i}")
    for i in range(4): bf16r(E+i, E+i)
    A(f"v_max3_f32 v8, v{E}, v{E+1}, v{E+2}\nv_max_f32 v8, v8, v{E+3}")
    allred([8], "v_max_f32", [0, 1, 4, 5], 9)
    A(f"ds_write_b32 v{MA+4}, v8 offset:{L_MX}")
    A(f"v_mul_f32 v9, {LOG2E ^ 0x80000000}, v8\ns_mov_b32 s40, {LOG2E}")
    for i in range(4): A(f"v_fma_f32 v{E+i}, v{E+i}, s40, v9")
    for i in range(4): A(f"v_exp_f32 v{E+i}, v{E+i}")
    for i in range(4): A(f"v_cvt_pk_bf16_f32 v{SC+i}, v{E+i}, v{E+i}")
    A(f"ds_write_b128 v{MA+5}, {v(SC,4)} offset:{L_P}")
    A(f"v_add_f32 v8, v{E}, v{E+1}\nv_add_f32 v9, v{E+2}, v{E+3}\nv_add_f32 v8, v8, v9")
    allred([8], "v_add_f32", [0, 1, 4, 5], 9)
    A(f"ds_write_b32 v{MA+4}, v8 offset:{L_LW}")
    A(f"s_waitcnt lgkmcnt(0)\nds_write_b32 v{MA+7}, v6 offset:{L_FP}")
    stamp("pready")
    A(f"v_lshlrev_b32 v{FIN}, 16, v{FIN}\nv_lshlrev_b32 v{FIN+1}, 16, v{FIN+1}")
    waitflag("L_wfV", L_FV, 4, F, MA+6)
    stamp("FV")
    OLD = [(G+8, 4, XR+2, 0), (G+12, 4, XR+2, 256), (G, 4, XR, 0), (G+4, 4, XR, 1024)]
    if spre:
        A(f"s_cmp_ge_u32 s{sWAVE}, 2\ns_cbranch_scc1 L_nospre\nglobal_load_dwordx4 {v(F,4)}, v{XR+3}, s[{sWS}:{sWS+1}] {spre.replace('plain', '')}\nL_nospre:")
    if pretouch and ptpos == 0: issue(OLD, sWS, ptfl)
    def ldwo():
        for i in range(0 if hack == 3 else 2 if hack == 5 else 4): A(f"global_load_dwordx4 {v(WOR+4*i,4)}, v{FIN+5}, s[{sWO}:{sWO+1}] offset:{1024*i} {nt}")
    if wofirst: ldwo()
    A("s_cmp_eq_u32 s45, 0\ns_cbranch_scc1 L_Cnow2")
    if hack != 2:
        for i in range(4): A(f"global_load_dwordx4 {v(W2R+4*i,4)}, v{FIN+5}, s[{sW2}:{sW2+1}] offset:{1024*i} {nt}")
    A("L_Cnow2:")
    if not wofirst: ldwo()
    if pretouch and ptpos == 1: issue(OLD, sWS, ptfl)
    A("s_cmp_eq_u32 s45, 0\ns_cbranch_scc1 L_Cnoh2")
    if not noh: poll("L_pollH", HLD, 7, HLD, first=(4 if hack in (2, 3) else 6 if hack == 5 else 8) + 4*bool(pretouch and ptpos < 2), narrow=True)
    if not tr:
        for i in range(4): A(f"v_add_f32 v{XS+i}, v{XS+i}, v{XS+4+i}")
    allred([XS, XS+1, XS+2, XS+3], "v_add_f32", [0, 1, 2], 7)
    for i in range(4): bf16r(XS+i, XS+i)
    unpack(XS+4, B1R, 2)
    for i in range(4): A(f"v_add_f32 v{XS+i}, v{XS+i}, v{XS+4+i}")
    for i in range(4): bf16r(XS+i, XS+i)
    for i in range(4): A(f"v_max_f32 v{XS+i}, 0, v{XS+i}")
    for i in range(4): A(f"v_mul_f32 v{XS+i}, v{XS+i}, v{XS+i}")
    for i in range(4): delta(XF + 4*i, XS + i, MASK, 4, 5)

    A("L_Cnoh2:")
    A("s_waitcnt lgkmcnt(0)\ns_barrier")
    stamp("barC")
    def raise2():
        A(f"s_cmp_eq_u32 s62, 0\ns_cbranch_scc1 L_nf2\ns_mov_b64 exec, 1\nglobal_store_dword v{FIN+6}, v{vTG}, s[{sWS}:{sWS+1}] sc1\ns_mov_b64 exec, -1\nL_nf2:")
    if flag2 == 3: raise2()
    A("s_cmp_eq_u32 s45, 0\ns_cbranch_scc1 L_Cnoffn2")
    A(f"s_waitcnt vmcnt({(0 if wofirst or hack == 3 else 2 if hack == 5 else 4) + 4*(ptpos == 1)})")
    for i in range(4): A(f"v_mfma_f32_16x16x32_bf16 {v(ACC,4)}, {v(XF+4*i,4)}, {v(W2R+4*i,4)}, {v(ACC,4)}")
    A("L_Cnoffn2:")
    if owait is not None: A(f"s_waitcnt vmcnt({0 if ptpos == 1 else owait + (flag2 == 3)})")
    if flag2 == 2: raise2()
    stamp("wohere")
    if pipeO: pollpipe("L_pollO", [(XR, 0), (XR, 1024), (XR+2, 0), (XR+2, 256)], [XO + 16*r for r in range(pipeO)], G, 7, stagO)
    else: poll("L_pollO", OLD[2:] if hack == 6 else OLD, 7, [(G+8, 4, XR+2, 0), (G+12, 4, XR+2, 256), (G, 4, FIN+3, 0), (G+4, 4, FIN+4, 0)], strip=not opt)
    if flag2 == 1: raise2()
    stamp("gathO")
    A(f"ds_write_b128 v{XR+6}, {v(ACC,4)} offset:{L_RED+4096}")
    m0, l0, m1, l1 = G+8, G+9, G+12, G+13
    if opt:
        X = (lambda r: "") if pipeO else (lambda r: f"v_xor_b32 v{r}, s{sT}, v{r}")
        D = lambda op, r, b: f"{op}_dpp v{r}, v{r}, v{r} {DPP[b]} row_mask:0xf bank_mask:0xf"
        if hack == 6: A("\n".join(X(G+i) for i in range(8)))
        else: A("\n".join([X(m0), X(m1), f"v_max_f32 v5, v{m0}, v{m1}", X(G), X(G+1), D("v_max_f32", 5, 0), X(G+2), X(G+3), D("v_max_f32", 5, 1),
                     X(G+4), X(G+5), D("v_max_f32", 5, 2), X(G+6), f"v_sub_f32 v{m0}, v{m0}, v5", f"v_sub_f32 v{m1}, v{m1}, v5",
                     f"v_mul_f32 v6, {LOG2E}, v{m0}", f"v_mul_f32 v8, {LOG2E}, v{m1}", "v_exp_f32 v6, v6", "v_exp_f32 v8, v8", X(G+7), X(l0), X(l1)]))
        if hack != 6: A(f"v_mul_f32 v{l0}, v{l0}, v6")
        for i in (0, 2): A(f"v_pk_mul_f32 {v(G+i,2)}, {v(G+i,2)}, v[6:7] op_sel_hi:[1,0]")
        if hack != 6: A(f"v_fmac_f32 v{l0}, v{l1}, v8")
        for i in (0, 2): A(f"v_pk_fma_f32 {v(G+i,2)}, {v(G+4+i,2)}, v[8:9], {v(G+i,2)} op_sel_hi:[1,0,1]")
        for b in (0, 1, 2):
            if hack != 6: A(D("v_add_f32", l0, b))
            if b == 2:
                A(D("v_add_f32", G, b))
                if hack != 6: A(f"v_rcp_f32 v6, v{l0}")
            for r in range(G + (b == 2), G + 4): A(D("v_add_f32", r, b))
        for i in (0, 2):
            if hack != 6: A(f"v_pk_mul_f32 {v(G+i,2)}, {v(G+i,2)}, v[6:7] op_sel_hi:[1,0]")
        M = lambda i: A(f"v_mfma_f32_16x16x32_bf16 {v(F,4)}, {v(XO+4*i,4)}, {v(WOR+4*i,4)}, {v(F,4) if i else 0}")
        if pipeO: XO = XO + 32
        delta(XO, G, MASK, 4, 5); delta(XO+4, G+1, MASK, 4, 8)
        M(0); delta(XO+8, G+2, MASK, 4, 5); M(1); delta(XO+12, G+3, MASK, 4, 8); M(2); M(3)
    else:
        A(f"v_max_f32 v5, v{m0}, v{m1}")
        allred([5], "v_max_f32", [0, 1, 2], 7)
        A(f"v_sub_f32 v{m0}, v{m0}, v5\nv_sub_f32 v{m1}, v{m1}, v5\nv_mul_f32 v{m0}, {LOG2E}, v{m0}\nv_mul_f32 v{m1}, {LOG2E}, v{m1}")
        A(f"v_exp_f32 v{m0}, v{m0}\nv_exp_f32 v{m1}, v{m1}")
        A(f"v_mul_f32 v{l0}, v{l0}, v{m0}")
        for i in range(4): A(f"v_mul_f32 v{G+i}, v{G+i}, v{m0}")
        A(f"v_fmac_f32 v{l0}, v{l1}, v{m1}")
        for i in range(4): A(f"v_fmac_f32 v{G+i}, v{G+4+i}, v{m1}")
        allred([l0, G, G+1, G+2, G+3], "v_add_f32", [0, 1, 2], 7)
        A(f"v_rcp_f32 v{l0}, v{l0}")
        for i in range(4): A(f"v_mul_f32 v{G+i}, v{G+i}, v{l0}")
        for i in range(4): delta(XO + 4*i, G + i, MASK, 4, 5 + (i & 1))
        for i in range(4): A(f"v_mfma_f32_16x16x32_bf16 {v(F,4)}, {v(XO+4*i,4)}, {v(WOR+4*i,4)}, {v(F,4) if i else 0}")
    if hack == 8:
        A(f"s_cmp_ge_u32 s{sWAVE}, 2\ns_cbranch_scc1 L_Cdone\ns_nop 5")
        for i in range(4): A(f"v_mov_b32 v{G+i}, v{F+i}")
        A("s_branch L_h8")
    A(f"ds_write_b128 v{XR+6}, {v(F,4)} offset:{L_RED}")
    A("s_waitcnt lgkmcnt(0)\ns_barrier")
    if ackwait: A(f"s_cmp_ge_u32 s{sWAVE}, 2\ns_cbranch_scc1 L_Cdone")
    else: A(f"s_cmp_eq_u32 s{sWAVE}, 2\ns_cbranch_scc1 L_Cfin\ns_cmp_eq_u32 s{sWAVE}, 3\ns_cbranch_scc1 L_Cdone")
    if not merge: A(f"s_cmp_eq_u32 s{sWAVE}, 1\ns_cbranch_scc1 {'L_Cdone' if hack in (1, 2) else 'L_Cpubf'}")
    if opt:
        PA = lambda a, b: A(f"v_pk_add_f32 {v(a,2)}, {v(a,2)}, {v(b,2)}\nv_pk_add_f32 {v(a+2,2)}, {v(a+2,2)}, {v(b+2,2)}")
        for i in range(4): A(f"ds_read_b128 {v(G+4*i,4)}, v{XR+7} offset:{L_RED+1024*i}")
        A("s_waitcnt lgkmcnt(2)"); PA(G, G+4)
        A("s_waitcnt lgkmcnt(1)"); PA(G, G+8)
        if not merge:
            A("s_branch L_Cpub\nL_Cpubf:")
            A(f"ds_read_b128 {v(G,4)}, v{XR+7} offset:{L_RED+4096}\nds_read_b128 {v(G+12,4)}, v{XR+7} offset:{L_RED+4096+1024}")
        A("L_Cpub:\ns_waitcnt lgkmcnt(0)"); PA(G, G+12)
    else:
        for i in range(4): A(f"ds_read_b128 {v(G+4*i,4)}, v{XR+7} offset:{L_RED+1024*i}")
        A("s_waitcnt lgkmcnt(0)")
        for i in range(4): A(f"v_add_f32 v{G+i}, v{G+i}, v{G+8+i}\nv_add_f32 v{G+4+i}, v{G+4+i}, v{G+12+i}")
        A("s_branch L_Cpub")
        A("L_Cpubf:")
        for i in range(2): A(f"ds_read_b128 {v(G+4*i,4)}, v{XR+7} offset:{L_RED+4096+1024*i}")
        A("s_waitcnt lgkmcnt(0)")
        A("L_Cpub:")
        for i in range(4): A(f"v_add_f32 v{G+i}, v{G+i}, v{G+4+i}")
    A("L_h8:")
    tag(G, 4, vTG)
    store(XR+3, G, 4, sWS, sst)
    stamp("pubS")
    if ackwait: A(f"s_cmp_eq_u32 s{sWAVE}, 1\ns_cbranch_scc1 L_Cdone\ns_waitcnt vmcnt(0)")
    else: A("s_branch L_Cdone")
    A("L_Cfin:")
    if fsleep: A(f"s_sleep {fsleep}")
    if flag2:
        nf = 4 if fall else 1
        for k in range(1, nf): A(f"v_add_u32 v{F+8+k}, {8192*k}, v{FIN+7}")
        A(f"s_mov_b32 s{sCNT}, 0\nL_pf:")
        for k in range(nf): A(f"global_load_dword v{F+k}, v{F+8+k if k else FIN+7}, s[{sWS}:{sWS+1}] sc1")
        A(f"s_add_u32 s{sCNT}, s{sCNT}, 1\ns_waitcnt vmcnt(0)")
        if fall: A(f"v_bitop3_b32 v5, v{F}, v{F+1}, s{sT} bitop3:0x7e\nv_bitop3_b32 v5, v5, v{F+2}, s{sT} bitop3:0xf6\nv_bitop3_b32 v5, v5, v{F+3}, s{sT} bitop3:0xf6\nv_cmp_ne_u32 vcc, 0, v5")
        else: A(f"v_cmp_ne_u32 vcc, s{sT}, v{F}")
        A(f"s_and_b64 exec, exec, vcc\ns_cbranch_scc0 L_pf_x\ns_cmp_lt_u32 s{sCNT}, 4096\ns_cbranch_scc1 L_pf\nL_pf_x:\ns_mov_b64 exec, -1")
        if fdelay: A(f"s_sleep {fdelay}")
    if pipeS: pollpipe("L_pollS", [(XR+4, 0), (XR+5, 0)], [160 + 8*r for r in range(pipeS)], G, 7, stagS)
    else: poll("L_pollS", [(G, 4, XR+4, 0), (G+4, 4, XR+5, 0)][:1 if hack in (1, 2) else 2], 7)
    stamp("gathS")
    if hack == 7: A("s_branch L_h7")
    D2 = lambda r, b: f"v_add_f32_dpp v{r}, v{r}, v{r} {DPP[b]} row_mask:0xf bank_mask:0xf"
    f_, s_ = G + 4, G
    for a in (f_, f_+1, s_, s_+1): A(f"v_permlane32_swap_b32 v{a}, v{a+2}")
    for a in (f_, s_): A(f"v_pk_add_f32 {v(a,2)}, {v(a,2)}, {v(a+2,2)}")
    for a in (f_, s_): A(f"v_permlane16_swap_b32 v{a}, v{a+1}")
    for a in (f_, s_): A(f"v_add_f32 v{a}, v{a}, v{a+1}")
    for b in range(4): A(D2(f_, b) + ("\n" + D2(s_, b) if b < 3 else ""))
    bf16r(6, f_)
    A(f"v_add_f32 v6, v6, v{FIN+1}"); bf16r(6, 6)
    A(f"v_mul_f32 v7, {LOG2E ^ 0x80000000}, v6\nv_exp_f32 v7, v7\n{D2(s_, 3)}\nv_add_f32 v7, 1.0, v7\nv_rcp_f32 v7, v7")
    bf16r(5, s_)
    A("v_mul_f32 v6, v6, v7"); bf16r(6, 6)
    A("v_mul_f32 v5, v5, v6"); bf16r(5, 5)
    A(f"v_add_f32 v5, v5, v{FIN}\nv_cvt_pk_bf16_f32 v5, v5, v5")
    A("L_h7:")
    if hops: A("s_branch L_hop0\nL_hopback:")
    if echo:
        r = 64 + 2*CNAMES.index(lx)
        A(f"s_cmp_eq_u32 s2, 0\ns_cbranch_scc0 L_noecho\ns_memrealtime s[58:59]\ns_waitcnt lgkmcnt(0)\ns_sub_u32 s40, s{r}, s64")
        if eskew:
            A(f"s_load_dwordx8 s[32:39], s[{sWS}:{sWS+1}], 0x2000 glc\ns_waitcnt lgkmcnt(0)")
            if eskew == 1:
                A("s_mov_b32 s40, s32\ns_mov_b32 s41, s32")
                for k in range(1, 8): A(f"s_max_u32 s40, s40, s{32+k}\ns_min_u32 s41, s41, s{32+k}")
                A("s_sub_u32 s40, s40, s41")
            elif eskew == 2:
                A("s_add_u32 s40, s36, s37\ns_add_u32 s40, s40, s38\ns_add_u32 s40, s40, s39\ns_sub_u32 s40, s40, s32\ns_sub_u32 s40, s40, s33\ns_sub_u32 s40, s40, s34\ns_sub_u32 s40, s40, s35\ns_add_u32 s40, s40, 600\ns_lshr_b32 s40, s40, 2")
            else:
                A("s_mov_b32 s41, s32")
                for k in range(1, 8): A(f"s_min_u32 s41, s41, s{32+k}")
                A(f"s_sub_u32 s40, s{32+eskew-10}, s41")
        A(f"s_mul_i32 s40, s40, {echo}\ns_min_u32 s40, s40, 20000")
        A("L_echo:\ns_memrealtime s[60:61]\ns_waitcnt lgkmcnt(0)\ns_sub_u32 s41, s60, s58\ns_cmp_lt_u32 s41, s40\ns_cbranch_scc1 L_echo\nL_noecho:")
    if chain:
        A("s_cmp_eq_u32 s2, 0\ns_cbranch_scc0 L_nochain\nv_mov_b32 v6, 0")
        for k in range(chain):
            A(f"global_load_dword v7, v6, s[{sK if k % 2 else sV}:{(sK if k % 2 else sV)+1}] nt\ns_waitcnt vmcnt(0)\nv_add_u32 v6, {(k % 2) << 23}, v6")
        A("L_nochain:")
    A("s_mov_b32 exec_lo, 0x00010001\ns_mov_b32 exec_hi, 0x00010001")
    A(f"global_store_short v{FIN+2}, v5, s[{sOUT}:{sOUT+1}] {outfl}")
    A("s_cmp_eq_u32 s2, 0\ns_cbranch_scc0 L_Cdone")
    A(f"s_mov_b64 exec, 1\nv_mov_b32 v5, 0\nglobal_store_dword v5, v{vTG}, s[{sWS}:{sWS+1}]")
    A("L_Cdone:")
    stamp("end")
    dump()
    A("s_endpgm")

    cpart = A.L; A.L = []
    role[0] = "S"
    KO, PM = 4, 12
    VV, KF, XP, A1, A2 = 32, 96, 112, 144, 148
    EA = 152
    sW = 33
    if jk: A(f"s_xor_b32 s{sJ}, s{sJ}, {jk}")
    A(f"s_lshr_b32 s34, s2, 7\ns_lshl_b32 s34, s34, 3\ns_add_u32 s34, s34, s{sXC}\ns_lshl_b32 s34, s34, 23\ns_and_b32 s35, s{sJ}, 15")
    if pat in (0, 2):
        A(f"s_lshl_b32 s35, s35, 2\ns_add_u32 s35, s35, s{sWAVE}\ns_lshl_b32 s35, s35, 12\ns_add_u32 s34, s34, s35\ns_add_u32 s34, s34, {28672*256 - 4*4096}")
    else:
        A(f"s_lshl_b32 s36, s{sWAVE}, 4\ns_add_u32 s35, s35, s36\ns_lshl_b32 s35, s35, 12\ns_add_u32 s34, s34, s35\ns_add_u32 s34, s34, {28672*256 - 64*4096}")
    A(f"v_lshlrev_b32 v14, 2, v2\nv_xor_b32 v14, v14, v1\nv_lshlrev_b32 v14, 4, v14\nv_lshl_add_u32 v{KO}, v2, 8, v14")
    for i in range(1, 4): A(f"v_xor_b32 v{KO+i}, {16*i}, v{KO}")
    A(f"s_lshl_b32 s36, s{sWAVE}, 14\ns_sub_u32 s36, s36, {4*16384 - L_K}")
    if not coop: A("s_waitcnt lgkmcnt(0)")
    pr(1)
    addbase(sK, "s34")
    def setup2():
        karg2()
        addbase(sV, "s34")
        A(f"s_sub_u32 s{sW}, s{sWAVE}, 4\nv_lshlrev_b32 v3, 4, v0\ns_lshl_b32 s37, s{sW}, 2\nv_mov_b32 v14, s37\nv_mov_b32 v15, 1")
        if boost: A(f"s_xor_b32 s38, s{sJ}, {jq ^ 1}\ns_and_b32 s38, s38, 3\ns_cselect_b64 vcc, 0, -1")
        pr(0)
        A("s_barrier")
    if not head: setup2()
    stamp("first")
    later = Asm()
    B = later
    B(f"v_and_b32 v26, 3, v0\nv_lshlrev_b32 v26, 4, v26\nv_mov_b32 v{PM}, 0xffff\nv_mov_b32 v{PM+1}, 0\nv_lshlrev_b64 v[{PM}:{PM+1}], v26, v[{PM}:{PM+1}]")
    B(f"s_lshl_b32 s38, s{sW}, 10\nv_lshl_add_u32 v{EA+1}, v0, 4, s38")
    B(f"s_lshl_b32 s38, s{sW}, 11\nv_lshl_add_u32 v{EA+2}, v0, 4, s38")
    B(f"v_and_b32 v24, 1, v0\nv_lshlrev_b32 v24, 10, v24\nv_bfe_u32 v25, v0, 1, 4\nv_lshl_add_u32 v24, v25, 4, v24\ns_lshl_b32 s38, s{sW}, 8\nv_add_u32 v{EA+3}, s38, v24")
    B(f"s_lshl_b32 s38, s{sXC}, 2\ns_add_u32 s38, s38, s{sW}\ns_lshr_b32 s39, s{sJ}, 4\ns_and_b32 s40, s{sJ}, 7\ns_bfe_u32 s41, s{sJ}, 0x10003")
    B(f"s_lshl_b32 s39, s39, 7\ns_lshl_b32 s40, s40, 4\ns_add_u32 s39, s39, s40")
    B(f"s_lshl_b32 s40, s38, 14\ns_lshl_b32 s42, s41, 10\ns_add_u32 s40, s40, s42\ns_add_u32 s40, s40, s39\ns_add_u32 s40, s40, {OP}")
    B(f"v_bfe_u32 v24, v0, 2, 3\nv_lshlrev_b32 v24, 11, v24\nv_and_b32 v25, 3, v0\nv_lshl_add_u32 v24, v25, 8, v24\nv_add_u32 v{EA+4}, s40, v24")
    B(f"s_lshl_b32 s38, s38, 9\ns_lshl_b32 s41, s41, 8\ns_add_u32 s38, s38, s41\ns_add_u32 s38, s38, s39\ns_add_u32 s38, s38, {ML}\nv_mov_b32 v25, s38")
    B(f"s_mov_b32 s42, -1\ns_mov_b32 s43, 0\ns_lshl_b32 s38, s{sXC}, 5\ns_add_u32 s38, s38, s{sJ}\nv_cndmask_b32 v{EA+4}, v25, v{EA+4}, s[42:43]")
    B(f"s_lshl_b32 s38, s38, 2\ns_add_u32 s38, s38, s{sW}\ns_lshl_b32 s38, s38, 9\ns_add_u32 s38, s38, {OP}\nv_lshl_add_u32 v{EA+9}, v0, 4, s38\nv_cndmask_b32 v{EA+9}, v25, v{EA+9}, s[42:43]")
    B(f"s_lshl_b32 s38, s{sW}, 4\nv_mov_b32 v{EA+6}, s38\nv_mov_b32 v{EA+8}, {TAGM}")
    chunks = [later.L[i::1] for i in (0,)][0]
    per = -(-len(chunks) // 8)
    def bump(r, T):
        if pat != 2: return addbase(r, 262144)
        A(f"s_and_b32 s44, s{sJ}, 3\ns_xor_b32 s45, s44, {T+1}\ns_xor_b32 s44, s44, {T}\ns_sub_u32 s44, s45, s44\ns_add_u32 s44, s44, 16\ns_lshl_b32 s44, s44, 14")
        addbase(r, "s44")
    cnt = [0]
    def after():
        cnt[0] += 1
        n = cnt[0]
        if n == head: setup2()
        if n == 13: A(f"s_waitcnt lgkmcnt(0)\ns_load_dword s{sT}, s[{sWS}:{sWS+1}], 0")
        if n == trig: A(f"ds_write_b32 v14, v15 offset:{L_FT}")
        if 4 <= n < 12:
            for line in chunks[(n-4)*per:(n-3)*per]: A(line)
        p = paceK if n <= 16 else (paceV if n - 16 <= paceVUntil else 0)
        if p and n + (2 if coop and n < p else 0) >= p and n < 32:
            if n <= boost: A(f"s_waitcnt vmcnt({p-1+bw})\ns_cbranch_vccnz L_b{n}\ns_waitcnt vmcnt({p-1})\nL_b{n}:")
            else: A(f"s_waitcnt vmcnt({p-1})")
        if coop and n == paceK - 1:
            assert n >= head
            A(f"ds_write_b32 v14, v15 offset:{L_FW+16}")
        if n == 16: stamp("Kiss")
    for T in range(4):
        A(f"s_mov_b32 m0, s36\ns_add_u32 s36, s36, 4096")
        for i in range(4):
            A(f"global_load_lds_dwordx4 v{KO+i}, s[{sK}:{sK+1}] offset:{1024*i} {nt}"); after()
        if T < 3: bump(sK, T)
    for n in range(16):
        A(f"global_load_dwordx4 {v(VV+4*n,4)}, v3, s[{sV}:{sV+1}] offset:{1024*(n&3)} {nt}"); after()
        if n == kpos: A(f"s_waitcnt vmcnt({n+1})\nds_write_b32 v14, v15 offset:{L_FK}")
        if n == fvpos and not woTrig: A(f"ds_write_b32 v14, v15 offset:{L_FV}")
        if n & 3 == 3 and n < 15: bump(sV, n >> 2)
    stamp("issued")
    get_tag()
    A(f"v_mov_b32 v{EA+7}, s{sT}\ns_mov_b32 s36, {LOG2E}")
    waitflag("L_wfP", L_FP, 1, 4, 14)
    A(f"s_mov_b32 s40, s52\nds_read_b128 v[4:7], v{EA+1} offset:{L_P}\ns_waitcnt lgkmcnt(0)")
    for T in range(4):
        for i in range(4):
            for j in range(2):
                A(f"v_and_b32_dpp v{XP+2*(4*T+i)+j}, v{4+T}, v{PM+j} quad_perm:[{i},{i},{i},{i}] row_mask:0xf bank_mask:0xf")
    stamp("pready")
    for n in range(16):
        if opt and n == wpos:
            A("v_mov_b32 v8, 0")
            waitflag("L_wfP4", L_FP, 4, 4, 8)
            A(f"ds_read_b128 v[16:19], v{EA+6} offset:{L_MX}\nds_read_b128 v[20:23], v{EA+6} offset:{L_LW}\ns_waitcnt lgkmcnt(1)")
            A(f"v_max3_f32 v24, v16, v17, v18\nv_max_f32 v24, v24, v19\nv_mul_f32 v25, {LOG2E ^ 0x80000000}, v24")
            for i in range(4): A(f"v_fma_f32 v{16+i}, v{16+i}, s36, v25")
            for i in range(4): A(f"v_exp_f32 v{8+2*i}, v{16+i}")
            A("s_waitcnt lgkmcnt(0)\nv_mul_f32 v25, v20, v8\nv_fmac_f32 v25, v21, v10\nv_fmac_f32 v25, v22, v12\nv_fmac_f32 v25, v23, v14")
        A(f"s_waitcnt vmcnt({15-n})")
        if woTrig == n + 1: A(f"ds_write_b32 v14, v15 offset:{L_FV}")
        A(f"v_mfma_f32_16x16x16_bf16 {v(A1,4)}, {v(XP+2*n,2)}, {v(VV+4*n,2)}, {v(A1,4) if n else 0}")
        A(f"v_mfma_f32_16x16x16_bf16 {v(A2,4)}, {v(XP+2*n,2)}, {v(VV+4*n+2,2)}, {v(A2,4) if n else 0}")
    stamp("PVdone")
    if hack == 4:
        for i in range(2): A(f"v_cndmask_b32 v{A1+i}, v{24+i}, v{A1+i}, s[42:43]")
        tag(A1, 4, EA+7)
        A("s_mov_b32 exec_hi, 1"); store(EA+4, A1, 4, sWS); A("s_barrier\ns_endpgm")
    A(f"ds_write_b128 v{EA+2}, {v(A1,4)} offset:{L_O}\nds_write_b128 v{EA+2}, {v(A2,4)} offset:{L_O+1024}")
    A("s_waitcnt lgkmcnt(0)\ns_barrier")
    stamp("barC")
    if opt:
        for i in range(4): A(f"ds_read_b128 {v(KF+4*i,4)}, v{EA+3} offset:{L_O+2048*i}")
        A("s_waitcnt lgkmcnt(3)")
        for i in (0, 2): A(f"v_pk_mul_f32 {v(KF+i,2)}, {v(KF+i,2)}, v[8:9] op_sel_hi:[1,0]")
        for k in range(1, 4):
            A(f"s_waitcnt lgkmcnt({3-k})")
            for i in (0, 2): A(f"v_pk_fma_f32 {v(KF+i,2)}, {v(KF+4*k+i,2)}, {v(8+2*k,2)}, {v(KF+i,2)} op_sel_hi:[1,0,1]")
    else:
        A(f"ds_read_b128 v[16:19], v{EA+6} offset:{L_MX}\nds_read_b128 v[20:23], v{EA+6} offset:{L_LW}")
        for i in range(4): A(f"ds_read_b128 {v(KF+4*i,4)}, v{EA+3} offset:{L_O+2048*i}")
        A("s_waitcnt lgkmcnt(5)")
        A(f"v_max3_f32 v24, v16, v17, v18\nv_max_f32 v24, v24, v19\nv_mul_f32 v25, {LOG2E ^ 0x80000000}, v24")
        for i in range(4): A(f"v_fma_f32 v{16+i}, v{16+i}, s36, v25")
        for i in range(4): A(f"v_exp_f32 v{16+i}, v{16+i}")
        A("s_waitcnt lgkmcnt(3)")
        A("v_mul_f32 v25, v20, v16")
        for i in range(4): A(f"v_mul_f32 v{KF+i}, v{KF+i}, v16")
        A("v_fmac_f32 v25, v21, v17\nv_fmac_f32 v25, v22, v18\nv_fmac_f32 v25, v23, v19")
        for k in range(1, 4):
            A(f"s_waitcnt lgkmcnt({3-k})")
            for i in range(4): A(f"v_fmac_f32 v{KF+i}, v{KF+4*k+i}, v{16+k}")
    for i in range(2): A(f"v_cndmask_b32 v{KF+i}, v{24+i}, v{KF+i}, s[42:43]")
    tag(KF, 4, EA+7)
    A("s_mov_b32 exec_hi, 1")
    store(EA+4, KF, 4, sWS, ost)
    stamp("pub")
    A("s_cmp_eq_u32 s40, 1\ns_cbranch_scc1 L_Snob")
    store(EA+9, KF, 4, sWSB, "sc1")
    A("L_Snob:")
    dump()
    A("L_end:\ns_endpgm")
    A.L = entry + A.L + cpart
    if cpf: A(".fill 640, 4, 0xbf800000")
    for h in range(hops):
        A(f".p2align 10\nL_hop{h}:\ns_branch {'L_hop%d' % (h+1) if h + 1 < hops else 'L_hopback'}")

    head = (hdr or "") + f"; @launch grid=(256,1,1) block=(512,1,1) lds={LDS_BYTES + (16384 if coop else 0) + (8192 if tr else 0)}\n"
    head += f'.amdgcn_target "amdgcn-amd-amdhsa--gfx950"\n.text\n.globl {K}\n.p2align 8\n.type {K},@function\n'
    tail = f""".section .rodata,"a"
.p2align 6
.amdhsa_kernel {K}
  .amdhsa_next_free_vgpr 216
  .amdhsa_next_free_sgpr 102
  .amdhsa_accum_offset 216
  .amdhsa_group_segment_fixed_size 0
  .amdhsa_kernarg_size 104
  .amdhsa_user_sgpr_count 2
  .amdhsa_user_sgpr_kernarg_segment_ptr 1
  .amdhsa_system_sgpr_workgroup_id_x 1
  .amdhsa_float_denorm_mode_32 3
.end_amdhsa_kernel
"""
    return head + A.finish() + tail

def header():
    ref = open(f"cdna_kernels/{NAME}.s.ref").read().split("\n")
    return "\n".join(l for l in ref if l.startswith(";") and "@launch" not in l and not l.startswith("; Override") and not l.startswith("; grid=")) + "\n"

if __name__ == "__main__":
    out = sys.argv[1] if len(sys.argv) > 1 else f"cdna_kernels/{NAME}.s"
    open(out, "w").write(gen(hdr=header()))
```

```python
import sys, os
sys.path.insert(0, os.path.dirname(os.path.abspath(__file__)))
from asmlib import Asm
NAME = "recurrent_scan__sliding_block_cached__dense_activation_squared_relu__decode"

FLG = 0x300000
IDS = 0x1000
QP, HP, OP, ML, SPS, SPF, STAMP = 0x10000, 0x50000, 0x100000, 0x180000, 0x200000, 0x250000, 0x400000
SPSTR = 1152
DELTA = 0x800000
L_K, L_Q, L_MX, L_LW, L_O, L_RED = 18432, 0, 1280, 1344, 1536, 9728
L_QSTR = 272
L_FT, L_FV, L_FQ, L_FK, L_FP = 1408, 1424, 1440, 1456, 1472
L_FW = 1488
L_W = 83968
L_W1 = L_W + 16384
L_XN = L_O + 2048
L_P = L_RED
LDS_BYTES = 83968
TAGM = 0x3ff
LOG2E = 0x3fb8aa3b
SCALE = 0x3db504f3

CNAMES = ["start", "issued", "LNdone", "pub1", "FT", "qgath", "FK", "pready", "FV", "first", "barC", "wohere", "gathO", "pubS", "gathS", "end"]
SNAMES = ["start", "first", "Kiss", "issued", "pready", "PVdone", "barC", "pub"]
DOC = """; One launch, 256 workgroups of 8 waves, one per CU.  Hand-offs between workgroups go through d_ws: every 32-bit word
; carries a per-launch tag in its low bits (tag = word 0 of d_ws at entry + 1, stored back at the end), readers spin until
; plain stores (visible through the die's L2) and, unless all 32 members have reported the same die id, a second time
"""
def v(a, n=1): return f"v{a}" if n == 1 else f"v[{a}:{a+n-1}]"

def gen(diag=False, nt="nt", limit=200000, hdr=None, hops=0, trig=17, paceK=7, paceV=7, kpos=5, warmLN=False,
        wofirst=False, pretouch=True, fbmask=31, prioC=0, diagwo=True, woTrig=0, spin=1, pat=0, owait=2, ackwait=True, head=3, lite=False, paceVUntil=16, fvpos=15, dirty=0, fsleep=0, lx="first", cpf=244, sfirst=True, probe=False, smtest=False, qst="", qld="sc1", noq=False, noh=False, preQ=0, hlate=True, tlb=0, chain=0, echo=0, flag2=0, dfl="", ost="", hack=0, swap=False, opt=1, wpos=10, jx=0, jq=3, jk=0, wpat=0, boost=0, bw=1, pipeS=2, stagS=3, pipeO=0, stagO=1, spre="", sst="sc1", outfl="", ptpos=0, ptfl="sc1", fall=False, fdelay=0, merge=True, mstr=2304, coop=True, latetag=True, eskew=0, tr=True):
    A = Asm()
    sX, sK, sV, sWQ, sWO, sW1, sB1, sW2, sB2, sOUT, sWS = 4, 6, 8, 10, 12, 16, 18, 20, 22, 24, 26
    sT, sWAVE, sXC, sJ = 28, 29, 30, 31
    sCNT, sWSB, sID, sT8 = 46, 48, 50, 51
    role = ["C"]
    def stamp(k):
        names = SNAMES if role[0] == "S" else CNAMES
        if diag or ((lite or echo) and role[0] == "C" and k in ("start", "end", lx)): A(f"s_memrealtime s[{64+2*names.index(k)}:{65+2*names.index(k)}]")
    def addbase(r, off):
        A(f"s_add_u32 s{r}, s{r}, {off}\ns_addc_u32 s{r+1}, s{r+1}, 0")
    DPP = {0: "quad_perm:[1,0,3,2]", 1: "quad_perm:[2,3,0,1]", 2: "row_half_mirror", 3: "row_mirror"}
    def allred(regs, op, bits, tmp):
        for b in bits:
            for r in regs:
                if b < 4:
                    A(f"{op}_dpp v{r}, v{r}, v{r} {DPP[b]} row_mask:0xf bank_mask:0xf")
                else:
                    A(f"v_mov_b32 v{tmp}, v{r}")
                    A(f"v_permlane{16 if b == 4 else 32}_swap_b32 v{r}, v{tmp}")
                    A(f"{op} v{r}, v{r}, v{tmp}")
    def bf16r(dst, src):
        A(f"v_cvt_pk_bf16_f32 v{dst}, 0, v{src}")
    def unpack(dst, src, n):
        for i in range(n):
            A(f"v_lshlrev_b32 v{dst+2*i}, 16, v{src+i}\nv_and_b32 v{dst+2*i+1}, 0xffff0000, v{src+i}")
    def delta(dst, val, masks, n, tmp):
        A(f"v_cvt_pk_bf16_f32 v{tmp}, v{val}, v{val}")
        for j in range(n): A(f"v_and_b32 v{dst+j}, v{tmp}, v{masks+j}")
    def tag(r, n, vT):
        for i in range(n): A(f"v_bfi_b32 v{r+i}, v{vT+1}, v{vT}, v{r+i}")
    def issue(loads, base, fl="sc1"):
        for (d, n, a, off) in loads:
            A(f"global_load_dword{'x%d' % n if n > 1 else ''} {v(d, n)}, v{a}, s[{base}:{base+1}] offset:{off} {fl}")
    def poll(name, loads, tmp, loadsB=None, first=None, narrow=False, strip=True):
        A(f"s_mov_b32 s{sCNT}, 0")
        if first == 0: A(f"s_branch {name}_c")
        elif first is not None: A(f"s_waitcnt vmcnt({first})\ns_branch {name}_f")
        A(f"{name}:")
        if diag and name[-1] in "OS": A("s_memtime s[58:59]")
        issue(loads, sWS)
        dws = [r for (d, n, a, off) in loads for r in range(d, d + n)]
        A(f"{name}_c:\ns_waitcnt vmcnt(0)")
        A(f"{name}_f:\ns_add_u32 s{sCNT}, s{sCNT}, 1")
        if diag and name[-1] in "OS":
            r = 60 if name[-1] == "O" else 62
            A(f"s_memtime s[100:101]\ns_waitcnt lgkmcnt(0)\ns_sub_u32 s{r+1}, s100, s58\ns_cmp_eq_u32 s{sCNT}, 2\ns_cselect_b32 s{r}, s{r+1}, s{r}")
        if strip:
            for d in dws: A(f"v_xor_b32 v{d}, s{sT8 if narrow else sT}, v{d}")
            A(f"v_or3_b32 v{tmp}, v{dws[0]}, v{dws[1]}, v{dws[2]}")
            for k in range(3, len(dws) - 1, 2): A(f"v_or3_b32 v{tmp}, v{tmp}, v{dws[k]}, v{dws[k+1]}")
            if len(dws) % 2 == 0: A(f"v_or_b32 v{tmp}, v{tmp}, v{dws[-1]}")
        else:
            A(f"v_bitop3_b32 v{tmp}, v{dws[0]}, v{dws[1]}, s{sT} bitop3:0x7e")
            for d in dws[2:]: A(f"v_bitop3_b32 v{tmp}, v{tmp}, v{d}, s{sT} bitop3:0xf6")
        A(f"v_and_b32 v{tmp}, {0xff if narrow else TAGM}, v{tmp}\nv_cmp_ne_u32 vcc, 0, v{tmp}")
        A(f"s_and_b64 exec, exec, vcc\ns_cbranch_scc0 {name}_x")
        A(f"s_cmp_gt_u32 s{sCNT}, {limit}\ns_cbranch_scc1 {name}_x")
        if loadsB:
            A(f"s_cmp_eq_u32 s53, 1\ns_cbranch_scc1 {name}\ns_and_b32 s52, s{sCNT}, 1\ns_cbranch_scc0 {name}")
            issue(loadsB, sWSB)
            A(f"s_branch {name}_c")
        else:
            A(f"s_branch {name}")
        A(f"{name}_x:\ns_mov_b64 exec, -1")
        if diag: A(f"s_mov_b32 s{ {'H':96,'Q':96,'O':97,'S':98}[name[-1]] }, s{sCNT}")
    def pollpipe(name, addrs, sets, final, tmp, stag, loadsB=None):
        nl = len(addrs); R = len(sets)
        def iss(r): issue([(sets[r] + 4*k, 4, a, off) for k, (a, off) in enumerate(addrs)], sWS)
        A(f"s_mov_b32 s{sCNT}, 0\ns_mov_b64 s[54:55], -1")
        for r in range(R):
            iss(r)
            if r < R - 1 and stag: A(f"s_sleep {stag}")
        A(f"{name}:")
        for r in range(R):
            dws = list(range(sets[r], sets[r] + 4*nl))
            A(f"s_waitcnt vmcnt({nl*(R-1)})")
            A(f"v_bitop3_b32 v{tmp}, v{dws[0]}, v{dws[1]}, s{sT} bitop3:0x7e")
            for d in dws[2:]: A(f"v_bitop3_b32 v{tmp}, v{tmp}, v{d}, s{sT} bitop3:0xf6")
            A(f"v_and_b32 v{tmp}, {TAGM}, v{tmp}\nv_cmp_ne_u32 vcc, 0, v{tmp}\ns_andn2_b64 exec, exec, vcc")
            for k, d in enumerate(dws): A(f"v_xor_b32 v{final+k}, s{sT}, v{d}")
            A(f"s_and_b64 exec, s[54:55], vcc\ns_cbranch_scc0 {name}_x\ns_mov_b64 s[54:55], exec")
            iss(r)
        A(f"s_add_u32 s{sCNT}, s{sCNT}, 1\ns_cmp_lt_u32 s{sCNT}, {limit}\ns_cbranch_scc1 {name}")
        A(f"{name}_x:\ns_mov_b64 exec, -1")
        if diag: A(f"s_mov_b32 s{ {'O':97,'S':98}[name[-1]] }, s{sCNT}")
    def store(addr, data, n, base, fl=""):
        A(f"global_store_dwordx{n} v{addr}, {v(data,n)}, s[{base}:{base+1}] {fl}")
    def waitflag(name, off, n, t, addr):
        A(f"{name}:\nds_read_b{32*n} {v(t,n)}, v{addr} offset:{off}\ns_waitcnt lgkmcnt(0)")
        if n == 4: A(f"v_and_b32 v{t}, v{t}, v{t+1}\nv_and_b32 v{t+2}, v{t+2}, v{t+3}\nv_and_b32 v{t}, v{t}, v{t+2}")
        A(f"v_readfirstlane_b32 s52, v{t}\ns_cmp_lg_u32 s52, 0\ns_cbranch_scc1 {name}_x\ns_sleep {spin}\ns_branch {name}\n{name}_x:")
    def wsb():
        A(f"s_add_u32 s{sWSB}, s{sWS}, {DELTA}\ns_addc_u32 s{sWSB+1}, s{sWS+1}, 0")
    def get_tag(b=True):
        if b: wsb()
        A(f"s_waitcnt lgkmcnt(0)\ns_add_u32 s{sT}, s{sT}, 1\ns_and_b32 s{sT}, s{sT}, {TAGM}\ns_and_b32 s{sT8}, s{sT}, 0xff")
        A(f"s_getreg_b32 s{sID}, hwreg(HW_REG_XCC_ID)\ns_lshl_b32 s{sID}, s{sID}, 10\ns_or_b32 s{sID}, s{sID}, s{sT}")
    def pr(k):
        if probe: A(f"s_memrealtime s[{96+2*k}:{97+2*k}]")
    def dump():
        if probe:
            A(f"s_waitcnt lgkmcnt(0)\ns_lshl_b32 s40, s2, 3\ns_add_u32 s40, s40, s{sWAVE}\ns_lshl_b32 s40, s40, 4\ns_add_u32 s40, s40, {STAMP+0x10000}")
            A(f"s_mov_b64 exec, 1\nv_mov_b32 v5, s40\nv_mov_b32 v6, s64\nv_mov_b32 v7, s96\nv_mov_b32 v8, s98\nglobal_store_dwordx3 v5, v[6:8], s[{sWS}:{sWS+1}]")
        if lite and role[0] == "C":
            A(f"s_waitcnt lgkmcnt(0)\ns_lshl_b32 s40, s2, 2\ns_add_u32 s40, s40, s{sWAVE}\ns_lshl_b32 s40, s40, 4\ns_add_u32 s40, s40, {STAMP}")
            A(f"s_mov_b64 exec, 1\nv_mov_b32 v5, s40\nv_mov_b32 v6, s64\nv_mov_b32 v7, s94\nv_mov_b32 v8, s{64+2*CNAMES.index(lx)}\nglobal_store_dwordx3 v5, v[6:8], s[{sWS}:{sWS+1}]")
        if not diag: return
        A("s_waitcnt lgkmcnt(0)")
        A(f"s_lshl_b32 s40, s2, 3\ns_add_u32 s40, s40, s{sWAVE}\ns_lshl_b32 s40, s40, 7\ns_add_u32 s40, s40, {STAMP}")
        A("s_mov_b64 exec, 1\nv_mov_b32 v5, s40")
        for k in range(16):
            A(f"v_mov_b32 v6, s{64+2*k}\nglobal_store_dword v5, v6, s[{sWS}:{sWS+1}] offset:{4*k}")
        for k in range(4):
            A(f"v_mov_b32 v6, s{60+k}\nglobal_store_dword v5, v6, s[{sWS}:{sWS+1}] offset:{80+4*k}")
        A(f"s_getreg_b32 s40, hwreg(HW_REG_HW_ID)\nv_mov_b32 v6, s40\nglobal_store_dword v5, v6, s[{sWS}:{sWS+1}] offset:96")
        for k in range(4):
            A(f"v_mov_b32 v6, s{96+k}\nglobal_store_dword v5, v6, s[{sWS}:{sWS+1}] offset:{64+4*k}")

    K = NAME + "_kernel"
    A(f"{K}:")
    stamp("start")
    A("s_load_dwordx16 s[4:19], s[0:1], 0")
    if cpf:
        A(f"s_getpc_b64 s[40:41]\nv_mul_u32_u24 v5, 20, v0\nglobal_load_dword v211, v5, s[40:41] offset:{cpf}")
    def karg2(): A("s_load_dwordx4 s[20:23], s[0:1], 64\ns_load_dwordx2 s[24:25], s[0:1], 80\ns_load_dwordx2 s[26:27], s[0:1], 96")
    A("v_lshrrev_b32 v1, 6, v0\nv_and_b32 v0, 63, v0")
    A(f"s_lshr_b32 s{sJ}, s2, 3\ns_and_b32 s{sXC}, s2, 7")
    if jx: A(f"s_xor_b32 s{sJ}, s{sJ}, {jx}")
    A(f"v_readfirstlane_b32 s{sWAVE}, v1")
    A(f"s_cmp_ge_u32 s{sJ}, 32\ns_cbranch_scc1 L_end")
    if swap: A(f"s_xor_b32 s{sWAVE}, s{sWAVE}, 4")
    A("v_and_b32 v1, 15, v0\nv_lshrrev_b32 v2, 4, v0")
    if diag:
        for k in range(1, 18): A(f"s_mov_b64 s[{64+2*k}:{65+2*k}], 0")
        A("s_mov_b64 s[60:61], 0\ns_mov_b64 s[62:63], 0")
    if coop:
        if tr:
            A(f"s_and_b32 s40, s{sJ}, 7\ns_lshl_b32 s41, s{sXC}, 3\ns_add_u32 s40, s40, s41\ns_lshl_b32 s40, s40, 7")
            A(f"s_and_b32 s41, s{sJ}, 24\ns_add_u32 s41, s41, s{sWAVE}\ns_lshl_b32 s41, s41, 17\ns_add_u32 s40, s40, s41")
            A("v_and_b32 v4, 7, v0\nv_lshrrev_b32 v6, 3, v0\nv_and_b32 v7, 2, v6\nv_xor_b32 v7, v7, v4\nv_lshlrev_b32 v7, 4, v7")
            A("v_lshl_add_u32 v8, v6, 13, v7\nv_xor_b32 v9, 64, v8\nv_add_u32 v9, 64512, v9")
            A(f"s_lshl_b32 s41, s{sWAVE}, 11\ns_add_u32 m0, s41, {L_W}")
            A("v_and_b32 v3, 1, v6\nv_lshl_add_u32 v5, v2, 3, v4\nv_lshlrev_b32 v5, 5, v5\nv_lshl_add_u32 v5, v3, 10, v5")
        else:
            A(f"s_xor_b32 s40, s{sJ}, {jq}\ns_lshr_b32 s41, s40, 2\ns_and_b32 s40, s40, 3\ns_lshl_b32 s42, s{sXC}, 2\ns_add_u32 s40, s40, s42\ns_lshl_b32 s40, s40, 8")
            A(f"s_lshl_b32 s41, s41, 5\ns_add_u32 s41, s41, s{sWAVE}\ns_lshl_b32 s41, s41, 14\ns_add_u32 s40, s40, s41")
            A("v_lshlrev_b32 v8, 17, v2\nv_lshl_add_u32 v8, v1, 4, v8\nv_add_u32 v9, 7168, v8")
            A(f"s_lshl_b32 s41, s{sWAVE}, 11\ns_add_u32 m0, s41, {L_W}")
            A("v_bfe_u32 v3, v0, 3, 1\nv_and_b32 v4, 7, v0\nv_lshl_add_u32 v5, v2, 3, v4\nv_lshlrev_b32 v5, 5, v5\nv_lshl_add_u32 v5, v3, 10, v5")
        A(f"s_cmp_lt_u32 s{sWAVE}, 2\ns_waitcnt lgkmcnt(0)\ns_cbranch_scc0 L_nox")
        A(f"global_load_dwordx4 v[16:19], v5, s[{sX}:{sX+1}]\nglobal_load_dwordx4 v[20:23], v5, s[{sX}:{sX+1}] offset:16\nL_nox:")
        addbase(sWQ, "s40")
        if lite or echo: stamp("first")
        A(f"global_load_lds_dwordx4 v8, s[{sWQ}:{sWQ+1}] {nt}\nglobal_load_lds_dwordx4 v9, s[{sWQ}:{sWQ+1}] offset:1024 {nt}")
    A(f"s_cmp_lt_u32 s{sWAVE}, 4\ns_cbranch_scc1 L_C")
    entry = A.L; A.L = []
    A(".p2align 8\nL_C:")
    if not coop: A("v_bfe_u32 v3, v0, 3, 1\nv_and_b32 v4, 7, v0")
    A(f"s_cmp_ge_u32 s{sWAVE}, 2\ns_cbranch_scc1 L_Cnoffn")

    MASK = 10; vTG = 14
    XS, XR, F, XO, W, ACC = 16, 24, 32, 48, 112, 176
    B1R = 180
    XF = 184
    FIN = 200
    def masks():
        A("v_and_b32 v5, 3, v0\nv_lshlrev_b32 v5, 4, v5\nv_mov_b32 v6, 0xffff\nv_mov_b32 v7, 0\nv_lshlrev_b64 v[6:7], v5, v[6:7]")
        A("v_cmp_gt_u32 vcc, 4, v4")
        A(f"v_cndmask_b32 v{MASK}, 0, v6, vcc\nv_cndmask_b32 v{MASK+1}, 0, v7, vcc")
        A(f"v_cndmask_b32 v{MASK+2}, v6, 0, vcc\nv_cndmask_b32 v{MASK+3}, v7, 0, vcc")
    if tr:
        A(f"s_cmp_eq_u32 s{sWAVE}, 0\ns_cbranch_scc1 L_Cwdone\ns_cmp_eq_u32 s{sXC}, 7\ns_cbranch_scc1 L_Cnoffn")
        A(f"s_lshr_b32 s40, s{sJ}, 2\ns_mul_i32 s39, s40, {64*3584}\ns_and_b32 s41, s{sJ}, 3\ns_lshl_b32 s42, s{sXC}, 2\ns_add_u32 s41, s41, s42\ns_lshl_b32 s42, s41, 7\ns_add_u32 s39, s39, s42")
        A(f"v_mul_u32_u24 v8, 3584, v6\nv_xor_b32 v9, 64, v7\nv_add_u32 v9, v9, v8\nv_add_u32 v9, {8*3584-1024}, v9\nv_add_u32 v8, v8, v7")
        addbase(sW1, "s39")
        for t in range(0, 8, 2):
            A(f"s_mov_b32 m0, {L_W1 + 1024*t}")
            if t: addbase(sW1, 16*3584)
            A(f"global_load_lds_dwordx4 v8, s[{sW1}:{sW1+1}] {nt}\nglobal_load_lds_dwordx4 v9, s[{sW1}:{sW1+1}] offset:1024 {nt}")
        A("L_Cwdone:")
        karg2()
        pr(0)
        A("s_barrier")
        stamp("issued")
        A(f"v_mov_b32 v{XF}, v5")
        A(f"s_cmp_eq_u32 s{sWAVE}, 1\ns_cbranch_scc1 L_Cp1")
        A(f"s_lshr_b32 s40, s{sJ}, 3\ns_lshl_b32 s34, s40, 8\ns_mov_b32 s35, {L_W}")
        A(f"s_bfe_u32 s41, s{sJ}, 0x20001\ns_lshl_b32 s42, s{sXC}, 2\ns_add_u32 s41, s41, s42\ns_lshl_b32 s41, s41, 2\ns_add_u32 s41, s41, s40\ns_lshl_b32 s41, s41, 1")
        A(f"s_and_b32 s42, s{sJ}, 1\ns_add_u32 s41, s41, s42\ns_lshl_b32 s37, s41, 8\ns_add_u32 s37, s37, {QP}\ns_mov_b32 s38, {32*4*512}\ns_branch L_Cpa")
        A(f"L_Cp1:\ns_lshl_b32 s34, s40, 7\ns_mov_b32 s35, {L_W1}\ns_mul_i32 s37, s40, 7168\ns_lshl_b32 s41, s41, 8\ns_add_u32 s37, s37, s41\ns_add_u32 s37, s37, {HP}\ns_mov_b32 s38, {8*7168}")
        A("L_Cpa:")
        A("v_bfe_u32 v5, v0, 1, 2\nv_lshl_add_u32 v5, v5, 2, v2\nv_lshl_add_u32 v9, v5, 4, s37\nv_and_b32 v5, 1, v0\nv_mad_u32_u24 v9, v5, s38, v9")
        A(f"v_lshl_add_u32 v6, v2, 3, v4\nv_lshlrev_b32 v6, 3, v6\nv_lshl_add_u32 v{XF+1}, v3, 10, v6\nv_add_u32 v{XF+1}, s34, v{XF+1}")
        A(f"s_lshl_b32 s40, s{sWAVE}, 9\nv_lshl_add_u32 v{XF+2}, v3, 8, v6\nv_add_u32 v{XF+2}, s40, v{XF+2}")
        A(f"v_lshlrev_b32 v{XF+3}, 8, v5\nv_lshl_add_u32 v{XF+3}, v2, 4, v{XF+3}\nv_add_u32 v{XF+3}, s40, v{XF+3}")
        A(f"v_bfe_u32 v5, v0, 2, 2\nv_and_b32 v6, 3, v0\nv_lshlrev_b32 v6, 3, v6\nv_lshl_add_u32 v6, v5, 7, v6\nv_lshl_add_u32 v6, v2, 10, v6")
        A(f"v_and_b32 v5, 2, v5\nv_lshl_add_u32 v6, v5, 4, v6\nv_and_b32 v5, 1, v2\nv_lshl_add_u32 v6, v5, 6, v6")
        for cg in range(4): A(f"v_xor_b32 v7, {32*cg}, v6\nv_add_u32 v{XF+4+cg}, s35, v7")
        A("v_and_b32 v5, 2, v0\nv_cmp_ne_u32 s[54:55], 0, v5\nv_and_b32 v5, 4, v0\nv_cmp_ne_u32 s[56:57], 0, v5")
        masks()
        A(f"s_cmp_eq_u32 s{sWAVE}, 1\ns_cbranch_scc1 L_Cw8\ns_waitcnt vmcnt(2)\nL_Cw8:\ns_waitcnt vmcnt(10)\nL_Cw:")
        A(f"ds_write_b128 v{XF}, {v(XS,4)} offset:{L_O}\nds_write_b128 v{XF}, {v(XS+4,4)} offset:{L_O+16}")
        A(f"ds_read_b64 {v(XR,2)}, v{XF+1} offset:{L_O}")
    else:
        if jq: A(f"s_xor_b32 s{sJ}, s{sJ}, {jq}")
        A(f"s_sub_u32 s33, 2, s{sWAVE}\ns_lshr_b32 s40, s{sJ}, s33\ns_lshl_b32 s41, s40, s33\ns_sub_u32 s41, s{sJ}, s41\ns_lshl_b32 s42, s{sXC}, s33\ns_add_u32 s41, s41, s42")
        if jq: A(f"s_xor_b32 s{sJ}, s{sJ}, {jq}")
        A(f"s_movk_i32 s32, 8192\ns_cmp_eq_u32 s{sWAVE}, 1\ns_cmovk_i32 s32, 3584")
        if wpat == 1:
            A("s_add_u32 s34, s33, 4\ns_lshl_b32 s39, s32, s34\ns_mul_i32 s39, s40, s39\ns_lshl_b32 s35, s32, 3\ns_lshl_b32 s42, s41, 8\ns_add_u32 s39, s39, s42")
            A("v_lshl_add_u32 v5, v2, 3, v4\nv_lshlrev_b32 v5, 5, v5\nv_lshl_add_u32 v5, v3, 10, v5")
            A("s_add_u32 s34, s33, 5\ns_lshl_b32 s34, s40, s34\nv_lshl_add_u32 v6, v2, 4, s34\nv_lshl_add_u32 v6, v3, 10, v6")
            A("s_sub_u32 s36, s33, 1\ns_lshl_b32 s36, s36, 6\nv_add_u32 v7, s36, v6")
        else:
            A("s_add_u32 s34, s33, 2\ns_lshl_b32 s35, s32, s34\ns_mul_i32 s39, s40, s35\ns_lshl_b32 s39, s39, 2\ns_lshl_b32 s42, s41, 8\ns_add_u32 s39, s39, s42")
            A("v_lshl_add_u32 v5, v2, 3, v4\nv_lshlrev_b32 v5, 5, v5\nv_lshl_add_u32 v5, v3, 10, v5")
            A("v_lshl_add_u32 v6, s40, 2, v2\ns_add_u32 s34, s33, 3\nv_lshlrev_b32 v6, s34, v6\nv_lshl_add_u32 v6, v3, 10, v6")
            A("s_sub_u32 s36, s33, 1\ns_lshl_b32 s36, s36, 4\nv_add_u32 v7, s36, v6")
        A("v_mul_lo_u32 v8, v2, s35\nv_lshl_add_u32 v8, v1, 4, v8")
        A(f"s_mul_i32 s44, s{sXC}, s{sWAVE}\ns_cmp_eq_u32 s44, 7\ns_cbranch_scc1 L_Cnoffn")
        if coop:
            A(f"v_mov_b32 v{XF}, v5\nv_mov_b32 v{XF+1}, v6\nv_mov_b32 v{XF+2}, v7")
            A(f"s_cmp_eq_u32 s{sWAVE}, 0\ns_cbranch_scc1 L_Cwdone")
            addbase(sW1, "s39")
            for t in range(8):
                A(f"global_load_dwordx4 {v(W+4*t,4)}, v8, s[{sW1}:{sW1+1}] {nt}")
                if t != 7: addbase(sW1, "s32")
        else:
            A(f"s_cmp_eq_u32 s{sWAVE}, 1\ns_waitcnt lgkmcnt(0)")
            if not ackwait or lite or echo: stamp("first")
            pr(1)
            A(f"global_load_dwordx4 {v(XS,4)}, v5, s[{sX}:{sX+1}]\nglobal_load_dwordx4 {v(XS+4,4)}, v5, s[{sX}:{sX+1}] offset:16")
            A(f"s_cselect_b64 s[42:43], s[{sW1}:{sW1+1}], s[{sWQ}:{sWQ+1}]")
            A(f"global_load_dwordx4 {v(XR,4)}, v6, s[{sX}:{sX+1}]\nglobal_load_dwordx4 {v(XR+4,4)}, v7, s[{sX}:{sX+1}]")
            addbase(42, "s39")
            for t in range(16):
                if t == 8: A(f"s_cmp_eq_u32 s{sWAVE}, 1\ns_cbranch_scc1 L_Cwdone")
                A(f"global_load_dwordx4 {v(W+4*t,4)}, v8, s[42:43] {nt}")
                if t == 7 and wpat == 1: addbase(42, 25*8192)
                elif t != 15: addbase(42, "s32")
        A("L_Cwdone:")
        karg2()
        pr(0)
        A("s_barrier")
        stamp("issued")
        if not latetag: A(f"s_waitcnt lgkmcnt(0)\ns_load_dword s{sT}, s[{sWS}:{sWS+1}], 0")
        if prioC: A(f"s_setprio {prioC}")
        A(f"s_lshl_b32 s37, s41, 3\ns_add_u32 s37, s37, s40\ns_lshl_b32 s37, s37, 9\ns_add_u32 s37, s37, {QP}\ns_mov_b32 s38, {32*8*512}")
        A(f"s_cmp_eq_u32 s{sWAVE}, 0\ns_cbranch_scc1 L_Cpa")
        A(f"s_mul_i32 s37, s40, 7168\ns_lshl_b32 s42, s41, 9\ns_add_u32 s37, s37, s42\ns_add_u32 s37, s37, {HP}\ns_mov_b32 s38, {16*7168}")
        A("L_Cpa:")
        A("v_and_b32 v5, 1, v2\nv_lshl_add_u32 v9, v5, 4, s37\nv_lshl_add_u32 v9, v1, 5, v9\nv_lshrrev_b32 v5, 1, v2\nv_mad_u32_u24 v9, v5, s38, v9")
        if preQ: A(f"global_load_dwordx4 {v(XF,4)}, v9, s[{sWS}:{sWS+1}] sc1")
        A("L_Cmask:")
        masks()
        if not latetag:
            get_tag()
            A(f"v_mov_b32 v{vTG}, s{sT}\nv_mov_b32 v{vTG+1}, {TAGM}")
        if coop: A(f"s_cmp_eq_u32 s{sWAVE}, 1\ns_cbranch_scc1 L_Cw8\ns_waitcnt vmcnt(2)\nL_Cw8:\ns_waitcnt vmcnt(10)\nL_Cw:")
        if coop:
            A(f"ds_write_b128 v{XF}, {v(XS,4)} offset:{L_O}\nds_write_b128 v{XF}, {v(XS+4,4)} offset:{L_O+16}")
            A(f"ds_read_b128 {v(XR,4)}, v{XF+1} offset:{L_O}\nds_read_b128 {v(XR+4,4)}, v{XF+2} offset:{L_O}")
        if not coop: A(f"s_cmp_eq_u32 s{sWAVE}, 1\ns_cbranch_scc1 L_Cw8\ns_waitcnt vmcnt({16+preQ})\ns_branch L_Cw\nL_Cw8:\ns_waitcnt vmcnt({8+preQ})\nL_Cw:")
    unpack(F, XS, 8)
    A(f"v_add_f32 v5, v{F}, v{F+1}\nv_add_f32 v6, v{F+2}, v{F+3}")
    for i in range(4, 16, 2): A(f"v_add_f32 v5, v5, v{F+i}\nv_add_f32 v6, v6, v{F+i+1}")
    A("v_add_f32 v5, v5, v6")
    allred([5], "v_add_f32", [0, 1, 2, 4, 5], 6)
    A("v_mul_f32 v5, 0x3b000000, v5")
    for i in range(16): A(f"v_sub_f32 v{F+i}, v{F+i}, v5")
    A(f"v_mul_f32 v6, v{F}, v{F}\nv_mul_f32 v7, v{F+1}, v{F+1}")
    for i in range(2, 16, 2): A(f"v_fmac_f32 v6, v{F+i}, v{F+i}\nv_fmac_f32 v7, v{F+i+1}, v{F+i+1}")
    A("v_add_f32 v6, v6, v7")
    allred([6], "v_add_f32", [0, 1, 2, 4, 5], 7)
    A("v_mul_f32 v6, 0x3b000000, v6")
    bf16r(5, 5); bf16r(6, 6)
    A("v_add_f32 v6, 0x3727c5ac, v6"); bf16r(6, 6)
    A("v_sqrt_f32 v6, v6"); bf16r(6, 6)
    A("v_rcp_f32 v6, v6")
    if coop or latetag: A("s_waitcnt lgkmcnt(0)")
    if latetag: A(f"s_load_dword s{sT}, s[{sWS}:{sWS+1}], 0")
    if tr:
        unpack(F, XR, 2)
        for i in range(4): A(f"v_sub_f32 v{F+i}, v{F+i}, v5")
        for i in range(4): bf16r(F+i, F+i)
        for i in range(4): A(f"v_mul_f32 v{F+i}, v{F+i}, v6")
        A(f"v_cvt_pk_bf16_f32 v{XR}, v{F}, v{F+1}\nv_cvt_pk_bf16_f32 v{XR+1}, v{F+2}, v{F+3}\nds_write_b64 v{XF+2}, {v(XR,2)} offset:{L_XN}")
        for k in range(4): A(f"ds_read_b128 {v(XO+4*k,4)}, v{XF+3} offset:{L_XN+64*k}")
        stamp("LNdone")
        get_tag()
        A(f"v_mov_b32 v{vTG}, s{sT}\nv_mov_b32 v{vTG+1}, {TAGM}")
        A(f"s_lshl_b32 s40, s{sWAVE}, 2\nv_mov_b32 v7, s40\nv_mov_b32 v8, 1\ns_waitcnt vmcnt(8)")
        A(f"s_cmp_eq_u32 s{sWAVE}, 1\ns_cbranch_scc0 L_Cl1\nds_write_b32 v7, v8 offset:{L_FW}\ns_waitcnt vmcnt(0)\ns_branch L_Cl0")
        A(f"L_Cl1:\ns_waitcnt vmcnt(0)\nds_write_b32 v7, v8 offset:{L_FW}")
        waitflag("L_wfW0", L_FW, 4, F, 7); waitflag("L_wfW1", L_FW+16, 4, F, 7)
        A("L_Cl0:")
        AC4 = XO + 16
        for k in range(4):
            if k == 2: A(f"s_cmp_eq_u32 s{sWAVE}, 1\ns_cbranch_scc1 L_Cm8")
            for cg in range(4):
                for h in range(2): A(f"ds_read_b64_tr_b16 {v(W+16*k+4*cg+2*h,2)}, v{XF+4+cg} offset:{4096*k+512*h}")
            for cg in range(4):
                A(f"s_waitcnt lgkmcnt({6-2*cg})")
                A(f"v_mfma_f32_16x16x32_bf16 {v(AC4+4*cg,4)}, {v(W+16*k+4*cg,4)}, {v(XO+4*k,4)}, {v(AC4+4*cg,4) if k else 0}")
        A("L_Cm8:\ns_nop 7")
        for i in range(4): A(f"v_cndmask_b32 v{AC4+i}, v{AC4+i}, v{AC4+4+i}, s[54:55]\nv_cndmask_b32 v{AC4+8+i}, v{AC4+8+i}, v{AC4+12+i}, s[54:55]")
        for i in range(4): A(f"v_cndmask_b32 v{ACC+i}, v{AC4+i}, v{AC4+8+i}, s[56:57]")
    else:
        unpack(F, XR, 8)
        for i in range(16): A(f"v_sub_f32 v{F+i}, v{F+i}, v5")
        for i in range(16): bf16r(F+i, F+i)
        for i in range(16): A(f"v_mul_f32 v{F+i}, v{F+i}, v6")
        for t in range(16):
            if t == 8: A(f"s_cmp_eq_u32 s{sWAVE}, 1\ns_cbranch_scc1 L_Cd8")
            delta(XO + 4*t, F + t, MASK, 4, 5)
        A("L_Cd8:")
        if warmLN: A(f"s_cmp_ge_u32 s{sWAVE}, 2\ns_cbranch_scc1 L_C23b")
        stamp("LNdone")
        if latetag:
            get_tag()
            A(f"v_mov_b32 v{vTG}, s{sT}\nv_mov_b32 v{vTG+1}, {TAGM}")
        if coop:
            A(f"s_lshl_b32 s40, s{sWAVE}, 2\nv_mov_b32 v7, s40\nv_mov_b32 v8, 1\ns_waitcnt vmcnt(8)")
            A(f"s_cmp_eq_u32 s{sWAVE}, 1\ns_cbranch_scc0 L_Cl1\nds_write_b32 v7, v8 offset:{L_FW}\ns_branch L_Cl0")
            A(f"L_Cl1:\ns_waitcnt vmcnt(0)\nds_write_b32 v7, v8 offset:{L_FW}")
            waitflag("L_wfW0", L_FW, 4, F, 7); waitflag("L_wfW1", L_FW+16, 4, F, 7)
            A("v_lshlrev_b32 v7, 4, v0\nv_add_u32 v7, %d, v7" % L_W)
            for t in range(16): A(f"ds_read_b128 {v(W+4*t,4)}, v7 offset:{1024*t}")
            A("L_Cl0:\ns_waitcnt vmcnt(0)")
            for t in range(16):
                if t == 8: A(f"s_cmp_eq_u32 s{sWAVE}, 1\ns_cbranch_scc1 L_Cm8")
                if t % 4 == 0: A(f"s_waitcnt lgkmcnt({12 - t})")
                A(f"v_mfma_f32_16x16x32_bf16 {v(ACC,4)}, {v(XO+4*t,4)}, {v(W+4*t,4)}, {v(ACC,4) if t else 0}")
        else:
            A(f"s_cmp_eq_u32 s{sWAVE}, 1\ns_cbranch_scc0 L_Cl0\ns_waitcnt vmcnt({preQ})\nL_Cl0:")
            for t in range(16):
                if t == 8: A(f"s_cmp_eq_u32 s{sWAVE}, 1\ns_cbranch_scc1 L_Cm8")
                if t % 4 == 0: A(f"s_waitcnt vmcnt({12 - t + preQ})")
                A(f"v_mfma_f32_16x16x32_bf16 {v(ACC,4)}, {v(XO+4*t,4)}, {v(W+4*t,4)}, {v(ACC,4) if t else 0}")
        A("L_Cm8:\ns_nop 7")
    A("v_mov_b32 v5, 0xff")
    for i in range(4): A(f"v_add_u32 v{ACC+i}, 0x80, v{ACC+i}")
    for i in range(4): A(f"v_bfi_b32 v{ACC+i}, v5, v{vTG}, v{ACC+i}")
    if tr: A("s_mov_b32 exec_lo, 0x00ff00ff\ns_mov_b32 exec_hi, 0x00ff00ff")
    store(9, ACC, 4, sWS, qst)
    if tr: A("s_mov_b64 exec, -1")
    A(f"v_mov_b32 v{B1R+2}, v9")
    stamp("pub1")
    if not trig:
        A(f"s_cmp_eq_u32 s{sWAVE}, 0\ns_cbranch_scc0 L_Cmid\nv_mov_b32 v5, 0\nv_mov_b32 v6, 1\nds_write_b32 v5, v6 offset:{L_FT}")
    A("s_branch L_Cmid")

    A(f"L_Cnoffn:\nv_mov_b32 v9, 0\nv_mov_b32 v{B1R+2}, 0")
    karg2()
    A(f"v_mov_b32 v5, 0\nv_and_b32 v6, 31, v0\nv_lshlrev_b32 v6, 2, v6\nds_write_b32 v6, v5 offset:{L_FT}")
    A("s_waitcnt lgkmcnt(0)"); pr(1); pr(0); A("s_barrier")
    A(f"s_load_dword s{sT}, s[{sWS}:{sWS+1}], 0")
    wsb()
    if warmLN:
        A(f"s_cmp_eq_u32 s{sWAVE}, 2\ns_cbranch_scc1 L_Cw\nL_C23b:")
    get_tag(False)
    A(f"v_mov_b32 v{vTG}, s{sT}\nv_mov_b32 v{vTG+1}, {TAGM}")
    if coop: A(f"s_lshl_b32 s40, s{sWAVE}, 2\nv_mov_b32 v7, s40\nv_mov_b32 v8, 1\ns_waitcnt vmcnt(0)\nds_write_b32 v7, v8 offset:{L_FW}")
    A(f"s_cmp_eq_u32 s{sWAVE}, 3\ns_cbranch_scc0 L_Cnoid")
    A(f"s_lshl_b32 s40, s{sXC}, 5\ns_add_u32 s40, s40, s{sJ}\ns_lshl_b32 s40, s40, 2\ns_add_u32 s40, s40, {IDS}")
    A(f"v_mov_b32 v5, s40\nv_mov_b32 v6, s{sID}\ns_mov_b64 exec, 1\nglobal_store_dword v5, v6, s[{sWS}:{sWS+1}] sc1\ns_mov_b64 exec, -1")
    if eskew:
        A(f"s_cmp_eq_u32 s{sJ}, 0\ns_cbranch_scc0 L_nosk\ns_lshl_b32 s40, s{sXC}, 2\ns_add_u32 s40, s40, 0x2000\nv_mov_b32 v5, s40\nv_mov_b32 v6, s64")
        A(f"s_mov_b64 exec, 1\nglobal_store_dword v5, v6, s[{sWS}:{sWS+1}] sc1\ns_mov_b64 exec, -1\nL_nosk:")
    if tlb:
        A(f"s_lshr_b32 s40, s2, 7\ns_lshl_b32 s40, s40, 3\ns_add_u32 s40, s40, s{sXC}\ns_lshl_b32 s40, s40, 23\ns_and_b32 s41, s{sJ}, 15\ns_lshl_b32 s41, s41, 14\ns_add_u32 s40, s40, s41\ns_add_u32 s40, s40, {28672*256}")
        A("v_lshlrev_b32 v5, 18, v0\nv_add_u32 v5, s40, v5\ns_mov_b64 exec, 15")
        A(f"global_load_dword v210, v5, s[{sV}:{sV+1}] nt")
        if tlb > 1: A(f"global_load_dword v210, v5, s[{sK}:{sK+1}] nt")
        A(f"s_mov_b64 exec, 1\ns_lshl_b32 s40, s{sXC}, 3\ns_lshr_b32 s41, s{sJ}, 2\ns_add_u32 s40, s40, s41\ns_lshl_b32 s41, s40, 16\nv_mov_b32 v5, s41")
        A(f"global_load_dword v210, v5, s[{sWO}:{sWO+1}] nt\ns_min_u32 s40, s40, 55\ns_lshl_b32 s41, s40, 15\nv_mov_b32 v5, s41\nglobal_load_dword v210, v5, s[{sW2}:{sW2+1}] nt")
        A(f"v_mov_b32 v5, {SPF + 0x4c000}\nglobal_load_dword v210, v5, s[{sWS}:{sWS+1}] nt\nv_mov_b32 v5, 0")
        A(f"global_load_dword v210, v5, s[{sB1}:{sB1+1}]\nglobal_load_dword v210, v5, s[{sOUT}:{sOUT+1}] nt\ns_mov_b64 exec, -1")
    if dirty:
        A("s_lshl_b32 s40, s2, 15\ns_add_u32 s40, s40, 0x1000000\nv_lshl_add_u32 v5, v0, 4, s40")
        for k in range(dirty): A(f"global_store_dwordx4 v5, v[16:19], s[{sWS}:{sWS+1}] {dfl}\nv_add_u32 v5, 1024, v5")
    A("L_Cnoid:")
    masks()

    A("L_Cmid:")
    QG, QF, SC, KA, MA, KF = XO, XO + 16, XO + 32, XO + 48, XO + 52, W
    A(f"s_cmp_lt_u32 s{sXC}, 7\ns_cselect_b32 s45, 2, 0\ns_cmp_lt_u32 s{sWAVE}, s45\ns_cselect_b32 s45, 1, 0")
    A(f"s_lshr_b32 s40, s{sJ}, 4\ns_lshl_b32 s40, s40, 5\ns_lshl_b32 s41, s{sXC}, 2\ns_add_u32 s40, s40, s41\ns_add_u32 s40, s40, s{sWAVE}")
    A(f"s_lshl_b32 s40, s40, {11 if tr else 12}\ns_add_u32 s40, s40, {QP}\nv_lshl_add_u32 v{MA}, v0, 4, s40")
    if not trig: A(f"s_add_u32 s58, s{sWS}, s40\ns_addc_u32 s59, s{sWS+1}, 0")
    A(f"s_mul_i32 s40, s{sWAVE}, {L_QSTR}\nv_and_b32 v5, 31, v0\nv_lshl_add_u32 v{MA+1}, v5, 3, s40\nv_lshrrev_b32 v6, 5, v0\nv_lshl_add_u32 v{MA+1}, v6, 2, v{MA+1}")
    A(f"s_lshl_b32 s40, s{sXC}, 7\ns_add_u32 s40, s40, {IDS}\nv_lshl_add_u32 v{MA+2}, v5, 2, s40")
    A(f"v_and_b32 v5, 3, v1\nv_lshlrev_b32 v5, 10, v5\nv_lshrrev_b32 v6, 2, v1\nv_lshl_add_u32 v5, v6, 8, v5\ns_lshl_b32 s40, s{sWAVE}, 14\ns_add_u32 s40, s40, {L_K}\nv_add_u32 v5, s40, v5")
    for u in range(4):
        A(f"v_add_u32 v7, {4*u}, v2\nv_xor_b32 v7, v7, v1\nv_lshl_add_u32 v{KA+u}, v7, 4, v5")
    A(f"v_mul_u32_u24 v{MA+3}, {L_QSTR}, v6\nv_lshl_add_u32 v{MA+3}, v2, 4, v{MA+3}")
    A(f"s_lshl_b32 s40, s{sWAVE}, 2\nv_lshl_add_u32 v{MA+4}, v6, 4, s40\nv_mov_b32 v{MA+7}, s40\nv_mov_b32 v{MA+6}, 0")
    A(f"s_lshl_b32 s40, s{sWAVE}, 10\nv_lshl_add_u32 v{MA+5}, v0, 4, s40")
    A("v_and_b32 v5, 1, v0\nv_cmp_ne_u32 s[54:55], 0, v5\nv_and_b32 v5, 2, v0\nv_cmp_ne_u32 s[56:57], 0, v5")
    A(f"s_lshl_b32 s40, s{sXC}, 3\ns_lshr_b32 s41, s{sJ}, 2\ns_add_u32 s40, s40, s41\ns_lshl_b32 s40, s40, 1\ns_add_u32 s40, s40, s{sWAVE}")
    A(f"s_lshl_b32 s41, s40, 6\ns_add_u32 s41, s41, {HP}\nv_mul_u32_u24 v6, 7168, v4\nv_lshl_add_u32 v6, v2, 4, v6\nv_add_u32 v6, s41, v6")
    A(f"v_mul_u32_u24 v8, {(8 if tr else 16)*7168}, v3\nv_add_u32 v{MA+9}, v6, v8\nv_add_u32 v{MA+10}, {8*7168}, v{MA+9}")
    A(f"s_lshl_b32 s41, s40, 5\nv_lshl_add_u32 v{MA+8}, v2, 3, s41")
    A(f"s_lshl_b32 s40, s{sXC}, 5\ns_add_u32 s40, s40, s{sJ}")
    A("s_lshr_b32 s41, s40, 6\ns_lshl_b32 s41, s41, 7\ns_and_b32 s42, s40, 15\ns_lshl_b32 s42, s42, 3\ns_add_u32 s41, s41, s42")
    A("s_bfe_u32 s42, s40, 0x10004\ns_lshl_b32 s42, s42, 2\ns_add_u32 s41, s41, s42")
    A("s_bfe_u32 s42, s40, 0x10005\ns_lshl_b32 s42, s42, 9\ns_add_u32 s42, s42, s41")
    A(f"v_add_lshl_u32 v{FIN+2}, v2, s42, 1\nv_add_lshl_u32 v7, v2, s41, 1")
    A(f"global_load_ushort v{FIN}, v{FIN+2}, s[{sX}:{sX+1}]\nglobal_load_ushort v{FIN+1}, v7, s[{sB2}:{sB2+1}]")
    W2R, WOR, G = W, W + 16, W + 32
    A(f"s_and_b32 s40, s{sJ}, 3\ns_lshl_b32 s40, s40, 8\ns_lshr_b32 s41, s{sJ}, 2")
    A(f"s_lshl_b32 s42, s{sXC}, 3\ns_add_u32 s47, s42, s41")
    A(f"s_lshl_b32 s42, s47, 1\ns_add_u32 s42, s42, s{sWAVE}\ns_lshl_b32 s42, s42, 14\ns_add_u32 s42, s42, s40")
    addbase(sW2, "s42")
    A(f"s_lshl_b32 s42, s47, 2\ns_add_u32 s42, s42, s{sWAVE}\ns_lshl_b32 s43, s42, 14\ns_add_u32 s43, s43, s40")
    addbase(sWO, "s43")
    A(f"v_lshlrev_b32 v{FIN+5}, 12, v2\nv_lshl_add_u32 v{FIN+5}, v1, 4, v{FIN+5}")
    A(f"s_lshl_b32 s42, s42, 11\ns_add_u32 s42, s42, {OP}\nv_lshl_add_u32 v{XR}, v0, 4, s42")
    A(f"s_lshr_b32 s42, s47, 1\ns_lshl_b32 s42, s42, 9\ns_add_u32 s42, s42, {ML}\nv_lshl_add_u32 v{XR+2}, v1, 4, s42")
    A(f"s_lshl_b32 s42, s{sXC}, 16\ns_bfe_u32 s43, s{sJ}, 0x30002\ns_lshl_b32 s43, s43, 8\ns_add_u32 s42, s42, s43\ns_lshl_b32 s43, s{sWAVE}, 6\ns_add_u32 s42, s42, s43\ns_add_u32 s42, s42, {OP}")
    A(f"v_lshl_add_u32 v7, v3, 4, v4\nv_lshlrev_b32 v7, 11, v7\nv_lshl_add_u32 v7, v2, 4, v7\nv_add_u32 v{FIN+3}, s42, v7\nv_add_u32 v{FIN+4}, {8*2048}, v{FIN+3}")
    if merge:
        A(f"s_and_b32 s40, s{sJ}, 3\ns_lshl_b32 s40, s40, 6\ns_add_u32 s40, s40, s47\ns_mul_i32 s40, s40, {mstr}")
        A(f"s_lshl_b32 s41, s{sWAVE}, 10\ns_add_u32 s40, s40, s41\ns_add_u32 s40, s40, {SPS}\nv_lshl_add_u32 v{XR+3}, v0, 4, s40")
        A(f"s_lshl_b32 s40, s{sXC}, 5\ns_add_u32 s40, s40, s{sJ}\ns_lshr_b32 s41, s40, 6\ns_mul_i32 s41, s41, {64*mstr}\ns_and_b32 s40, s40, 63\ns_lshl_b32 s40, s40, 5")
        A(f"s_add_u32 s40, s40, s41\ns_add_u32 s40, s40, {SPS}\nv_mul_u32_u24 v{XR+4}, {mstr}, v0\nv_add_u32 v{XR+4}, s40, v{XR+4}\nv_add_u32 v{XR+5}, 16, v{XR+4}")
    else:
        A(f"s_and_b32 s40, s{sJ}, 3\ns_lshl_b32 s40, s40, 6\ns_add_u32 s40, s40, s47\ns_mul_i32 s40, s40, {SPSTR}")
        A(f"s_cmp_eq_u32 s{sWAVE}, 0\ns_cselect_b32 s41, 0, {SPF-SPS}\ns_add_u32 s40, s40, s41\ns_add_u32 s40, s40, {SPS}\nv_lshl_add_u32 v{XR+3}, v0, 4, s40")
        A(f"s_lshl_b32 s40, s{sXC}, 5\ns_add_u32 s40, s40, s{sJ}\ns_lshr_b32 s41, s40, 6\ns_mul_i32 s41, s41, {64*SPSTR}\ns_and_b32 s40, s40, 63\ns_lshl_b32 s40, s40, 4")
        A(f"s_add_u32 s40, s40, s41\ns_add_u32 s40, s40, {SPS}\nv_mul_u32_u24 v{XR+4}, {SPSTR}, v0\nv_add_u32 v{XR+4}, s40, v{XR+4}\nv_add_u32 v{XR+5}, {SPF-SPS}, v{XR+4}")
    if flag2:
        A(f"s_and_b32 s40, s{sJ}, 3\ns_lshl_b32 s40, s40, 6\ns_add_u32 s40, s40, s47\ns_lshl_b32 s40, s40, 7\ns_add_u32 s40, s40, {FLG}\nv_mov_b32 v{FIN+6}, s40")
        if fall: A(f"s_mov_b32 s40, {FLG}\nv_lshl_add_u32 v{FIN+7}, v0, 7, s40")
        else: A(f"s_lshr_b32 s40, s{sXC}, 1\ns_lshl_b32 s40, s40, 13\ns_add_u32 s40, s40, {FLG}\nv_lshl_add_u32 v{FIN+7}, v0, 7, s40")
        A(f"s_cmp_eq_u32 s{sWAVE}, 3\ns_cselect_b32 s62, 1, 0\ns_mov_b32 s63, 0")
    A(f"s_lshl_b32 s40, s{sWAVE}, 10\nv_lshl_add_u32 v{XR+6}, v0, 4, s40\nv_lshlrev_b32 v{XR+7}, 4, v0")
    if merge: A(f"s_lshl_b32 s40, s{sWAVE}, 9\nv_lshrrev_b32 v7, 1, v0\nv_lshl_add_u32 v{XR+7}, v7, 4, s40\nv_and_b32 v7, 1, v0\nv_lshl_add_u32 v{XR+7}, v7, 12, v{XR+7}")
    if trig: waitflag("L_wfT", L_FT, 4, F, MA+6)
    else:
        waitflag("L_wfT", L_FT, 1, F, MA+6)
        A(f"s_mov_b32 s{sCNT}, 0\nL_sq:")
        for k in range(8): A(f"s_load_dword s{32+k}, s[58:59], {512*k} glc")
        A(f"s_add_u32 s{sCNT}, s{sCNT}, 1\ns_waitcnt lgkmcnt(0)")
        A(f"s_xor_b32 s40, s32, s{sT8}")
        for k in range(1, 8): A(f"s_xor_b32 s41, s{32+k}, s{sT8}\ns_or_b32 s40, s40, s41")
        A(f"s_and_b32 s40, s40, 0xff\ns_cbranch_scc0 L_sq_x\ns_cmp_lt_u32 s{sCNT}, 64\ns_cbranch_scc1 L_sq\nL_sq_x:")
        if diag: A(f"s_mov_b32 s99, s{sCNT}")
    stamp("FT")
    if smtest:
        A(f"s_lshl_b32 s41, s2, 9\ns_add_u32 s41, s41, {QP}\ns_add_u32 s42, s{sWS}, s41\ns_addc_u32 s43, s{sWS+1}, 0")
        A("s_waitcnt lgkmcnt(0)\ns_memtime s[58:59]\ns_waitcnt lgkmcnt(0)\ns_load_dword s41, s[42:43], 0 glc\ns_waitcnt lgkmcnt(0)\ns_memtime s[100:101]\ns_waitcnt lgkmcnt(0)\ns_sub_u32 s99, s100, s58")
        A("s_memtime s[58:59]\ns_waitcnt lgkmcnt(0)\ns_load_dword s41, s[42:43], 0 glc\ns_waitcnt lgkmcnt(0)\ns_memtime s[100:101]\ns_waitcnt lgkmcnt(0)\ns_sub_u32 s41, s100, s58\ns_lshl_b32 s41, s41, 16\ns_or_b32 s99, s99, s41")
    QLD = [(QG + 4*k, 4, MA, 1024*k) for k in range(2 if hack == 9 or tr else 4)]
    HLD = [(XS, 4, MA+9, 0), (XS+4, 4, MA+10, 0)][:1 if tr else 2]
    A(f"global_load_dword v{MA+11}, v{MA+2}, s[{sWS}:{sWS+1}] sc1")
    if not noq: issue(QLD, sWS, qld)
    def hissue(lab):
        A(f"s_cmp_eq_u32 s45, 0\ns_cbranch_scc1 {lab}")
        if not noh: issue(HLD, sWS, qld)
        A(f"global_load_dwordx2 {v(B1R,2)}, v{MA+8}, s[{sB1}:{sB1+1}]")
        if hack == 2:
            for i in range(4): A(f"global_load_dwordx4 {v(XF+4*i,4)}, v{FIN+5}, s[{sW2}:{sW2+1}] offset:{1024*i} {nt}")
    if hlate: A("s_waitcnt vmcnt(0)")
    else:
        hissue("L_Cnoh")
        A("s_waitcnt vmcnt(3)\ns_branch L_Cnoh1\nL_Cnoh:\ns_waitcnt vmcnt(0)\nL_Cnoh1:")
    A(f"v_cmp_ne_u32 vcc, s{sID}, v{MA+11}\ns_mov_b32 s53, 1\ns_cbranch_vccz L_Cnob\ns_mov_b32 s53, 3")
    A(f"s_cmp_eq_u32 s{sWAVE}, 0\ns_cselect_b32 s40, 1, s45\ns_cmp_eq_u32 s40, 0\ns_cbranch_scc1 L_Cnob")
    if tr: A("s_mov_b32 exec_lo, 0x00ff00ff\ns_mov_b32 exec_hi, 0x00ff00ff")
    store(B1R+2, ACC, 4, sWSB, "sc1")
    if tr: A("s_mov_b64 exec, -1")
    A("L_Cnob:")
    if not noq: poll("L_pollQ", QLD, 7, QLD, first=63, narrow=True)
    stamp("qgath")
    if tr:
        for i in range(4): A(f"v_add_f32 v{QG+i}, v{QG+i}, v{QG+4+i}")
    else:
        for i in range(4): A(f"v_add_f32 v{QG+i}, v{QG+i}, v{QG+4+i}\nv_add_f32 v{QG+8+i}, v{QG+8+i}, v{QG+12+i}")
        for i in range(4): A(f"v_add_f32 v{QG+i}, v{QG+i}, v{QG+8+i}")
    for i in range(2): A(f"v_permlane32_swap_b32 v{QG+i}, v{QG+2+i}")
    for i in range(2): A(f"v_add_f32 v{QG+i}, v{QG+i}, v{QG+2+i}")
    A(f"v_cvt_pk_bf16_f32 v5, v{QG}, v{QG+1}\nds_write_b32 v{MA+1}, v5 offset:{L_Q}\nv_mov_b32 v6, s53")
    A(f"s_waitcnt lgkmcnt(0)\nds_write_b32 v{MA+7}, v6 offset:{L_FQ}")
    for i in range(4): A(f"v_mov_b32 v{ACC+i}, 0")
    if hlate: hissue("L_Cnoh"); A("L_Cnoh:")
    if pretouch and ptpos == 2: issue([(208, 1, XR+2, 0), (208, 1, XR+2, 256), (208, 1, XR, 0), (208, 1, XR, 1024)], sWS, ptfl)
    if pretouch and ptpos == 3:
        A(f"s_and_b32 s40, s{sJ}, 3\ns_lshl_b32 s40, s40, 9\nv_lshlrev_b32 v5, 4, v0\nv_sub_u32 v5, v{XR}, v5\nv_lshl_add_u32 v5, v0, 7, v5\nv_add_u32 v5, s40, v5")
        A(f"s_mov_b64 exec, 15\nglobal_load_dword v208, v5, s[{sWS}:{sWS+1}] {ptfl}")
        A(f"v_lshlrev_b32 v5, 4, v1\nv_sub_u32 v5, v{XR+2}, v5\nv_lshl_add_u32 v5, v0, 7, v5\nglobal_load_dword v208, v5, s[{sWS}:{sWS+1}] {ptfl}\ns_mov_b64 exec, -1")
    waitflag("L_wfK", L_FK, 1, F, MA+7)
    stamp("FK")
    for T in range(4):
        for u in range(4): A(f"ds_read_b128 {v(KF+16*T+4*u,4)}, v{KA+u} offset:{4096*T}")
    waitflag("L_wfq", L_FQ, 4, F, MA+6)
    for u in range(4): A(f"ds_read_b128 {v(QF+4*u,4)}, v{MA+3} offset:{L_Q+64*u}")
    for u in range(4):
        A(f"s_waitcnt lgkmcnt({3-u})")
        for T in range(4):
            A(f"v_mfma_f32_16x16x32_bf16 {v(SC+4*T,4)}, {v(KF+16*T+4*u,4)}, {v(QF+4*u,4)}, {v(SC+4*T,4) if u else 0}")
    E = F
    for T in range(4):
        A(f"v_cndmask_b32 v{SC+4*T}, v{SC+4*T}, v{SC+4*T+1}, s[54:55]\nv_cndmask_b32 v{SC+4*T+2}, v{SC+4*T+2}, v{SC+4*T+3}, s[54:55]")
    for T in range(4): A(f"v_cndmask_b32 v{E+T}, v{SC+4*T}, v{SC+4*T+2}, s[56:57]")
    for i in range(4): bf16r(E+i, E+i)
    for i in range(4): A(f"v_mul_f32 v{E+i}, {SCALE}, v{E+i}")
    for i in range(4): bf16r(E+i, E+i)
    A(f"v_max3_f32 v8, v{E}, v{E+1}, v{E+2}\nv_max_f32 v8, v8, v{E+3}")
    allred([8], "v_max_f32", [0, 1, 4, 5], 9)
    A(f"ds_write_b32 v{MA+4}, v8 offset:{L_MX}")
    A(f"v_mul_f32 v9, {LOG2E ^ 0x80000000}, v8\ns_mov_b32 s40, {LOG2E}")
    for i in range(4): A(f"v_fma_f32 v{E+i}, v{E+i}, s40, v9")
    for i in range(4): A(f"v_exp_f32 v{E+i}, v{E+i}")
    for i in range(4): A(f"v_cvt_pk_bf16_f32 v{SC+i}, v{E+i}, v{E+i}")
    A(f"ds_write_b128 v{MA+5}, {v(SC,4)} offset:{L_P}")
    A(f"v_add_f32 v8, v{E}, v{E+1}\nv_add_f32 v9, v{E+2}, v{E+3}\nv_add_f32 v8, v8, v9")
    allred([8], "v_add_f32", [0, 1, 4, 5], 9)
    A(f"ds_write_b32 v{MA+4}, v8 offset:{L_LW}")
    A(f"s_waitcnt lgkmcnt(0)\nds_write_b32 v{MA+7}, v6 offset:{L_FP}")
    stamp("pready")
    A(f"v_lshlrev_b32 v{FIN}, 16, v{FIN}\nv_lshlrev_b32 v{FIN+1}, 16, v{FIN+1}")
    waitflag("L_wfV", L_FV, 4, F, MA+6)
    stamp("FV")
    OLD = [(G+8, 4, XR+2, 0), (G+12, 4, XR+2, 256), (G, 4, XR, 0), (G+4, 4, XR, 1024)]
    if spre:
        A(f"s_cmp_ge_u32 s{sWAVE}, 2\ns_cbranch_scc1 L_nospre\nglobal_load_dwordx4 {v(F,4)}, v{XR+3}, s[{sWS}:{sWS+1}] {spre.replace('plain', '')}\nL_nospre:")
    if pretouch and ptpos == 0: issue(OLD, sWS, ptfl)
    def ldwo():
        for i in range(0 if hack == 3 else 2 if hack == 5 else 4): A(f"global_load_dwordx4 {v(WOR+4*i,4)}, v{FIN+5}, s[{sWO}:{sWO+1}] offset:{1024*i} {nt}")
    if wofirst: ldwo()
    A("s_cmp_eq_u32 s45, 0\ns_cbranch_scc1 L_Cnow2")
    if hack != 2:
        for i in range(4): A(f"global_load_dwordx4 {v(W2R+4*i,4)}, v{FIN+5}, s[{sW2}:{sW2+1}] offset:{1024*i} {nt}")
    A("L_Cnow2:")
    if not wofirst: ldwo()
    if pretouch and ptpos == 1: issue(OLD, sWS, ptfl)
    A("s_cmp_eq_u32 s45, 0\ns_cbranch_scc1 L_Cnoh2")
    if not noh: poll("L_pollH", HLD, 7, HLD, first=(4 if hack in (2, 3) else 6 if hack == 5 else 8) + 4*bool(pretouch and ptpos < 2), narrow=True)
    if not tr:
        for i in range(4): A(f"v_add_f32 v{XS+i}, v{XS+i}, v{XS+4+i}")
    allred([XS, XS+1, XS+2, XS+3], "v_add_f32", [0, 1, 2], 7)
    for i in range(4): bf16r(XS+i, XS+i)
    unpack(XS+4, B1R, 2)
    for i in range(4): A(f"v_add_f32 v{XS+i}, v{XS+i}, v{XS+4+i}")
    for i in range(4): bf16r(XS+i, XS+i)
    for i in range(4): A(f"v_max_f32 v{XS+i}, 0, v{XS+i}")
    for i in range(4): A(f"v_mul_f32 v{XS+i}, v{XS+i}, v{XS+i}")
    for i in range(4): delta(XF + 4*i, XS + i, MASK, 4, 5)

    A("L_Cnoh2:")
    A("s_waitcnt lgkmcnt(0)\ns_barrier")
    stamp("barC")
    def raise2():
        A(f"s_cmp_eq_u32 s62, 0\ns_cbranch_scc1 L_nf2\ns_mov_b64 exec, 1\nglobal_store_dword v{FIN+6}, v{vTG}, s[{sWS}:{sWS+1}] sc1\ns_mov_b64 exec, -1\nL_nf2:")
    if flag2 == 3: raise2()
    A("s_cmp_eq_u32 s45, 0\ns_cbranch_scc1 L_Cnoffn2")
    A(f"s_waitcnt vmcnt({(0 if wofirst or hack == 3 else 2 if hack == 5 else 4) + 4*(ptpos == 1)})")
    for i in range(4): A(f"v_mfma_f32_16x16x32_bf16 {v(ACC,4)}, {v(XF+4*i,4)}, {v(W2R+4*i,4)}, {v(ACC,4)}")
    A("L_Cnoffn2:")
    if owait is not None: A(f"s_waitcnt vmcnt({0 if ptpos == 1 else owait + (flag2 == 3)})")
    if flag2 == 2: raise2()
    stamp("wohere")
    if pipeO: pollpipe("L_pollO", [(XR, 0), (XR, 1024), (XR+2, 0), (XR+2, 256)], [XO + 16*r for r in range(pipeO)], G, 7, stagO)
    else:
        issue(OLD[2:] if hack == 6 else OLD, sWS)
        A(f"ds_write_b128 v{XR+6}, {v(ACC,4)} offset:{L_RED+4096}")
        poll("L_pollO", OLD[2:] if hack == 6 else OLD, 7, [(G+8, 4, XR+2, 0), (G+12, 4, XR+2, 256), (G, 4, FIN+3, 0), (G+4, 4, FIN+4, 0)], strip=not opt, first=0)
    if flag2 == 1: raise2()
    stamp("gathO")
    if pipeO: A(f"ds_write_b128 v{XR+6}, {v(ACC,4)} offset:{L_RED+4096}")
    m0, l0, m1, l1 = G+8, G+9, G+12, G+13
    if opt:
        X = (lambda r: "") if pipeO else (lambda r: f"v_xor_b32 v{r}, s{sT}, v{r}")
        D = lambda op, r, b: f"{op}_dpp v{r}, v{r}, v{r} {DPP[b]} row_mask:0xf bank_mask:0xf"
        if hack == 6: A("\n".join(X(G+i) for i in range(8)))
        else: A("\n".join([X(m0), X(m1), f"v_max_f32 v5, v{m0}, v{m1}", X(G), X(G+1), D("v_max_f32", 5, 0), X(G+2), X(G+3), D("v_max_f32", 5, 1),
                     X(G+4), X(G+5), D("v_max_f32", 5, 2), X(G+6), f"v_sub_f32 v{m0}, v{m0}, v5", f"v_sub_f32 v{m1}, v{m1}, v5",
                     f"v_mul_f32 v6, {LOG2E}, v{m0}", f"v_mul_f32 v8, {LOG2E}, v{m1}", "v_exp_f32 v6, v6", "v_exp_f32 v8, v8", X(G+7), X(l0), X(l1)]))
        if hack != 6: A(f"v_mul_f32 v{l0}, v{l0}, v6")
        for i in (0, 2): A(f"v_pk_mul_f32 {v(G+i,2)}, {v(G+i,2)}, v[6:7] op_sel_hi:[1,0]")
        if hack != 6: A(f"v_fmac_f32 v{l0}, v{l1}, v8")
        for i in (0, 2): A(f"v_pk_fma_f32 {v(G+i,2)}, {v(G+4+i,2)}, v[8:9], {v(G+i,2)} op_sel_hi:[1,0,1]")
        for b in (0, 1, 2):
            if hack != 6: A(D("v_add_f32", l0, b))
            if b == 2:
                A(D("v_add_f32", G, b))
                if hack != 6: A(f"v_rcp_f32 v6, v{l0}")
            for r in range(G + (b == 2), G + 4): A(D("v_add_f32", r, b))
        for i in (0, 2):
            if hack != 6: A(f"v_pk_mul_f32 {v(G+i,2)}, {v(G+i,2)}, v[6:7] op_sel_hi:[1,0]")
        M = lambda i: A(f"v_mfma_f32_16x16x32_bf16 {v(F,4)}, {v(XO+4*i,4)}, {v(WOR+4*i,4)}, {v(F,4) if i else 0}")
        if pipeO: XO = XO + 32
        delta(XO, G, MASK, 4, 5); delta(XO+4, G+1, MASK, 4, 8)
        M(0); delta(XO+8, G+2, MASK, 4, 5); M(1); delta(XO+12, G+3, MASK, 4, 8); M(2); M(3)
    else:
        A(f"v_max_f32 v5, v{m0}, v{m1}")
        allred([5], "v_max_f32", [0, 1, 2], 7)
        A(f"v_sub_f32 v{m0}, v{m0}, v5\nv_sub_f32 v{m1}, v{m1}, v5\nv_mul_f32 v{m0}, {LOG2E}, v{m0}\nv_mul_f32 v{m1}, {LOG2E}, v{m1}")
        A(f"v_exp_f32 v{m0}, v{m0}\nv_exp_f32 v{m1}, v{m1}")
        A(f"v_mul_f32 v{l0}, v{l0}, v{m0}")
        for i in range(4): A(f"v_mul_f32 v{G+i}, v{G+i}, v{m0}")
        A(f"v_fmac_f32 v{l0}, v{l1}, v{m1}")
        for i in range(4): A(f"v_fmac_f32 v{G+i}, v{G+4+i}, v{m1}")
        allred([l0, G, G+1, G+2, G+3], "v_add_f32", [0, 1, 2], 7)
        A(f"v_rcp_f32 v{l0}, v{l0}")
        for i in range(4): A(f"v_mul_f32 v{G+i}, v{G+i}, v{l0}")
        for i in range(4): delta(XO + 4*i, G + i, MASK, 4, 5 + (i & 1))
        for i in range(4): A(f"v_mfma_f32_16x16x32_bf16 {v(F,4)}, {v(XO+4*i,4)}, {v(WOR+4*i,4)}, {v(F,4) if i else 0}")
    if hack == 8:
        A(f"s_cmp_ge_u32 s{sWAVE}, 2\ns_cbranch_scc1 L_Cdone\ns_nop 5")
        for i in range(4): A(f"v_mov_b32 v{G+i}, v{F+i}")
        A("s_branch L_h8")
    A(f"ds_write_b128 v{XR+6}, {v(F,4)} offset:{L_RED}")
    A("s_waitcnt lgkmcnt(0)\ns_barrier")
    if ackwait: A(f"s_cmp_ge_u32 s{sWAVE}, 2\ns_cbranch_scc1 L_Cdone")
    else: A(f"s_cmp_eq_u32 s{sWAVE}, 2\ns_cbranch_scc1 L_Cfin\ns_cmp_eq_u32 s{sWAVE}, 3\ns_cbranch_scc1 L_Cdone")
    if not merge: A(f"s_cmp_eq_u32 s{sWAVE}, 1\ns_cbranch_scc1 {'L_Cdone' if hack in (1, 2) else 'L_Cpubf'}")
    if opt:
        PA = lambda a, b: A(f"v_pk_add_f32 {v(a,2)}, {v(a,2)}, {v(b,2)}\nv_pk_add_f32 {v(a+2,2)}, {v(a+2,2)}, {v(b+2,2)}")
        for i in range(4): A(f"ds_read_b128 {v(G+4*i,4)}, v{XR+7} offset:{L_RED+1024*i}")
        A("s_waitcnt lgkmcnt(2)"); PA(G, G+4)
        A("s_waitcnt lgkmcnt(1)"); PA(G, G+8)
        if not merge:
            A("s_branch L_Cpub\nL_Cpubf:")
            A(f"ds_read_b128 {v(G,4)}, v{XR+7} offset:{L_RED+4096}\nds_read_b128 {v(G+12,4)}, v{XR+7} offset:{L_RED+4096+1024}")
        A("L_Cpub:\ns_waitcnt lgkmcnt(0)"); PA(G, G+12)
    else:
        for i in range(4): A(f"ds_read_b128 {v(G+4*i,4)}, v{XR+7} offset:{L_RED+1024*i}")
        A("s_waitcnt lgkmcnt(0)")
        for i in range(4): A(f"v_add_f32 v{G+i}, v{G+i}, v{G+8+i}\nv_add_f32 v{G+4+i}, v{G+4+i}, v{G+12+i}")
        A("s_branch L_Cpub")
        A("L_Cpubf:")
        for i in range(2): A(f"ds_read_b128 {v(G+4*i,4)}, v{XR+7} offset:{L_RED+4096+1024*i}")
        A("s_waitcnt lgkmcnt(0)")
        A("L_Cpub:")
        for i in range(4): A(f"v_add_f32 v{G+i}, v{G+i}, v{G+4+i}")
    if hack == 8: A("L_h8:")
    tag(G, 4, vTG)
    store(XR+3, G, 4, sWS, sst)
    stamp("pubS")
    if ackwait: A(f"s_cmp_eq_u32 s{sWAVE}, 1\ns_cbranch_scc1 L_Cdone\ns_waitcnt vmcnt(0)")
    else: A("s_branch L_Cdone")
    A("L_Cfin:")
    if fsleep: A(f"s_sleep {fsleep}")
    if flag2:
        nf = 4 if fall else 1
        for k in range(1, nf): A(f"v_add_u32 v{F+8+k}, {8192*k}, v{FIN+7}")
        A(f"s_mov_b32 s{sCNT}, 0\nL_pf:")
        for k in range(nf): A(f"global_load_dword v{F+k}, v{F+8+k if k else FIN+7}, s[{sWS}:{sWS+1}] sc1")
        A(f"s_add_u32 s{sCNT}, s{sCNT}, 1\ns_waitcnt vmcnt(0)")
        if fall: A(f"v_bitop3_b32 v5, v{F}, v{F+1}, s{sT} bitop3:0x7e\nv_bitop3_b32 v5, v5, v{F+2}, s{sT} bitop3:0xf6\nv_bitop3_b32 v5, v5, v{F+3}, s{sT} bitop3:0xf6\nv_cmp_ne_u32 vcc, 0, v5")
        else: A(f"v_cmp_ne_u32 vcc, s{sT}, v{F}")
        A(f"s_and_b64 exec, exec, vcc\ns_cbranch_scc0 L_pf_x\ns_cmp_lt_u32 s{sCNT}, 4096\ns_cbranch_scc1 L_pf\nL_pf_x:\ns_mov_b64 exec, -1")
        if fdelay: A(f"s_sleep {fdelay}")
    if pipeS: pollpipe("L_pollS", [(XR+4, 0), (XR+5, 0)], [160 + 8*r for r in range(pipeS)], G, 7, stagS)
    else: poll("L_pollS", [(G, 4, XR+4, 0), (G+4, 4, XR+5, 0)][:1 if hack in (1, 2) else 2], 7)
    stamp("gathS")
    if hack == 7: A("s_branch L_h7")
    D2 = lambda r, b: f"v_add_f32_dpp v{r}, v{r}, v{r} {DPP[b]} row_mask:0xf bank_mask:0xf"
    f_, s_ = G + 4, G
    for a in (f_, f_+1, s_, s_+1): A(f"v_permlane32_swap_b32 v{a}, v{a+2}")
    for a in (f_, s_): A(f"v_pk_add_f32 {v(a,2)}, {v(a,2)}, {v(a+2,2)}")
    for a in (f_, s_): A(f"v_permlane16_swap_b32 v{a}, v{a+1}")
    for a in (f_, s_): A(f"v_add_f32 v{a}, v{a}, v{a+1}")
    for b in range(4): A(D2(f_, b) + ("\n" + D2(s_, b) if b < 3 else ""))
    bf16r(6, f_)
    A(f"v_add_f32 v6, v6, v{FIN+1}"); bf16r(6, 6)
    A(f"v_mul_f32 v7, {LOG2E ^ 0x80000000}, v6\nv_exp_f32 v7, v7\n{D2(s_, 3)}\nv_add_f32 v7, 1.0, v7\nv_rcp_f32 v7, v7")
    bf16r(5, s_)
    A("v_mul_f32 v6, v6, v7"); bf16r(6, 6)
    A("v_mul_f32 v5, v5, v6"); bf16r(5, 5)
    A(f"v_add_f32 v5, v5, v{FIN}\nv_cvt_pk_bf16_f32 v5, v5, v5")
    if hack == 7: A("L_h7:")
    if hops: A("s_branch L_hop0\nL_hopback:")
    if echo:
        r = 64 + 2*CNAMES.index(lx)
        A(f"s_cmp_eq_u32 s2, 0\ns_cbranch_scc0 L_noecho\ns_memrealtime s[58:59]\ns_waitcnt lgkmcnt(0)\ns_sub_u32 s40, s{r}, s64")
        if eskew:
            A(f"s_load_dwordx8 s[32:39], s[{sWS}:{sWS+1}], 0x2000 glc\ns_waitcnt lgkmcnt(0)")
            if eskew == 1:
                A("s_mov_b32 s40, s32\ns_mov_b32 s41, s32")
                for k in range(1, 8): A(f"s_max_u32 s40, s40, s{32+k}\ns_min_u32 s41, s41, s{32+k}")
                A("s_sub_u32 s40, s40, s41")
            elif eskew == 2:
                A("s_add_u32 s40, s36, s37\ns_add_u32 s40, s40, s38\ns_add_u32 s40, s40, s39\ns_sub_u32 s40, s40, s32\ns_sub_u32 s40, s40, s33\ns_sub_u32 s40, s40, s34\ns_sub_u32 s40, s40, s35\ns_add_u32 s40, s40, 600\ns_lshr_b32 s40, s40, 2")
            else:
                A("s_mov_b32 s41, s32")
                for k in range(1, 8): A(f"s_min_u32 s41, s41, s{32+k}")
                A(f"s_sub_u32 s40, s{32+eskew-10}, s41")
        A(f"s_mul_i32 s40, s40, {echo}\ns_min_u32 s40, s40, 20000")
        A("L_echo:\ns_memrealtime s[60:61]\ns_waitcnt lgkmcnt(0)\ns_sub_u32 s41, s60, s58\ns_cmp_lt_u32 s41, s40\ns_cbranch_scc1 L_echo\nL_noecho:")
    if chain:
        A("s_cmp_eq_u32 s2, 0\ns_cbranch_scc0 L_nochain\nv_mov_b32 v6, 0")
        for k in range(chain):
            A(f"global_load_dword v7, v6, s[{sK if k % 2 else sV}:{(sK if k % 2 else sV)+1}] nt\ns_waitcnt vmcnt(0)\nv_add_u32 v6, {(k % 2) << 23}, v6")
        A("L_nochain:")
    A("s_mov_b32 exec_lo, 0x00010001\ns_mov_b32 exec_hi, 0x00010001")
    A(f"global_store_short v{FIN+2}, v5, s[{sOUT}:{sOUT+1}] {outfl}")
    A("s_cmp_eq_u32 s2, 0\ns_cbranch_scc0 L_Cdone")
    A(f"s_mov_b64 exec, 1\nv_mov_b32 v5, 0\nglobal_store_dword v5, v{vTG}, s[{sWS}:{sWS+1}]")
    A("L_Cdone:")
    stamp("end")
    dump()
    A("s_endpgm")

    cpart = A.L; A.L = []
    role[0] = "S"
    KO, PM = 4, 12
    VV, KF, XP, A1, A2 = 32, 96, 112, 144, 148
    EA = 152
    sW = 33
    if jk: A(f"s_xor_b32 s{sJ}, s{sJ}, {jk}")
    A(f"s_lshr_b32 s34, s2, 7\ns_lshl_b32 s34, s34, 3\ns_add_u32 s34, s34, s{sXC}\ns_lshl_b32 s34, s34, 23\ns_and_b32 s35, s{sJ}, 15")
    if pat in (0, 2):
        A(f"s_lshl_b32 s35, s35, 2\ns_add_u32 s35, s35, s{sWAVE}\ns_lshl_b32 s35, s35, 12\ns_add_u32 s34, s34, s35\ns_add_u32 s34, s34, {28672*256 - 4*4096}")
    else:
        A(f"s_lshl_b32 s36, s{sWAVE}, 4\ns_add_u32 s35, s35, s36\ns_lshl_b32 s35, s35, 12\ns_add_u32 s34, s34, s35\ns_add_u32 s34, s34, {28672*256 - 64*4096}")
    A(f"v_lshlrev_b32 v14, 2, v2\nv_xor_b32 v14, v14, v1\nv_lshlrev_b32 v14, 4, v14\nv_lshl_add_u32 v{KO}, v2, 8, v14")
    for i in range(1, 4): A(f"v_xor_b32 v{KO+i}, {16*i}, v{KO}")
    A(f"s_lshl_b32 s36, s{sWAVE}, 14\ns_sub_u32 s36, s36, {4*16384 - L_K}")
    if not coop: A("s_waitcnt lgkmcnt(0)")
    pr(1)
    addbase(sK, "s34")
    def setup2():
        karg2()
        addbase(sV, "s34")
        A(f"s_sub_u32 s{sW}, s{sWAVE}, 4\nv_lshlrev_b32 v3, 4, v0\ns_lshl_b32 s37, s{sW}, 2\nv_mov_b32 v14, s37\nv_mov_b32 v15, 1")
        if boost: A(f"s_xor_b32 s38, s{sJ}, {jq ^ 1}\ns_and_b32 s38, s38, 3\ns_cselect_b64 vcc, 0, -1")
        pr(0)
        A("s_barrier")
    if not head: setup2()
    stamp("first")
    later = Asm()
    B = later
    B(f"v_and_b32 v26, 3, v0\nv_lshlrev_b32 v26, 4, v26\nv_mov_b32 v{PM}, 0xffff\nv_mov_b32 v{PM+1}, 0\nv_lshlrev_b64 v[{PM}:{PM+1}], v26, v[{PM}:{PM+1}]")
    B(f"s_lshl_b32 s38, s{sW}, 10\nv_lshl_add_u32 v{EA+1}, v0, 4, s38")
    B(f"s_lshl_b32 s38, s{sW}, 11\nv_lshl_add_u32 v{EA+2}, v0, 4, s38")
    B(f"v_and_b32 v24, 1, v0\nv_lshlrev_b32 v24, 10, v24\nv_bfe_u32 v25, v0, 1, 4\nv_lshl_add_u32 v24, v25, 4, v24\ns_lshl_b32 s38, s{sW}, 8\nv_add_u32 v{EA+3}, s38, v24")
    B(f"s_lshl_b32 s38, s{sXC}, 2\ns_add_u32 s38, s38, s{sW}\ns_lshr_b32 s39, s{sJ}, 4\ns_and_b32 s40, s{sJ}, 7\ns_bfe_u32 s41, s{sJ}, 0x10003")
    B(f"s_lshl_b32 s39, s39, 7\ns_lshl_b32 s40, s40, 4\ns_add_u32 s39, s39, s40")
    B(f"s_lshl_b32 s40, s38, 14\ns_lshl_b32 s42, s41, 10\ns_add_u32 s40, s40, s42\ns_add_u32 s40, s40, s39\ns_add_u32 s40, s40, {OP}")
    B(f"v_bfe_u32 v24, v0, 2, 3\nv_lshlrev_b32 v24, 11, v24\nv_and_b32 v25, 3, v0\nv_lshl_add_u32 v24, v25, 8, v24\nv_add_u32 v{EA+4}, s40, v24")
    B(f"s_lshl_b32 s38, s38, 9\ns_lshl_b32 s41, s41, 8\ns_add_u32 s38, s38, s41\ns_add_u32 s38, s38, s39\ns_add_u32 s38, s38, {ML}\nv_mov_b32 v25, s38")
    B(f"s_mov_b32 s42, -1\ns_mov_b32 s43, 0\ns_lshl_b32 s38, s{sXC}, 5\ns_add_u32 s38, s38, s{sJ}\nv_cndmask_b32 v{EA+4}, v25, v{EA+4}, s[42:43]")
    B(f"s_lshl_b32 s38, s38, 2\ns_add_u32 s38, s38, s{sW}\ns_lshl_b32 s38, s38, 9\ns_add_u32 s38, s38, {OP}\nv_lshl_add_u32 v{EA+9}, v0, 4, s38\nv_cndmask_b32 v{EA+9}, v25, v{EA+9}, s[42:43]")
    B(f"s_lshl_b32 s38, s{sW}, 4\nv_mov_b32 v{EA+6}, s38\nv_mov_b32 v{EA+8}, {TAGM}")
    chunks = [later.L[i::1] for i in (0,)][0]
    per = -(-len(chunks) // 8)
    def bump(r, T):
        if pat != 2: return addbase(r, 262144)
        A(f"s_and_b32 s44, s{sJ}, 3\ns_xor_b32 s45, s44, {T+1}\ns_xor_b32 s44, s44, {T}\ns_sub_u32 s44, s45, s44\ns_add_u32 s44, s44, 16\ns_lshl_b32 s44, s44, 14")
        addbase(r, "s44")
    cnt = [0]
    def after():
        cnt[0] += 1
        n = cnt[0]
        if n == head: setup2()
        if n == 13: A(f"s_waitcnt lgkmcnt(0)\ns_load_dword s{sT}, s[{sWS}:{sWS+1}], 0")
        if n == trig: A(f"ds_write_b32 v14, v15 offset:{L_FT}")
        if 4 <= n < 12:
            for line in chunks[(n-4)*per:(n-3)*per]: A(line)
        p = paceK if n <= 16 else (paceV if n - 16 <= paceVUntil else 0)
        if p and n + (2 if coop and n < p else 0) >= p and n < 32:
            if n <= boost: A(f"s_waitcnt vmcnt({p-1+bw})\ns_cbranch_vccnz L_b{n}\ns_waitcnt vmcnt({p-1})\nL_b{n}:")
            else: A(f"s_waitcnt vmcnt({p-1})")
        if coop and n == paceK - 1:
            assert n >= head
            A(f"ds_write_b32 v14, v15 offset:{L_FW+16}")
        if n == 16: stamp("Kiss")
    for T in range(4):
        A(f"s_mov_b32 m0, s36\ns_add_u32 s36, s36, 4096")
        for i in range(4):
            A(f"global_load_lds_dwordx4 v{KO+i}, s[{sK}:{sK+1}] offset:{1024*i} {nt}"); after()
        if T < 3: bump(sK, T)
    for n in range(16):
        A(f"global_load_dwordx4 {v(VV+4*n,4)}, v3, s[{sV}:{sV+1}] offset:{1024*(n&3)} {nt}"); after()
        if n == kpos: A(f"s_waitcnt vmcnt({n+1})\nds_write_b32 v14, v15 offset:{L_FK}")
        if n == fvpos and not woTrig: A(f"ds_write_b32 v14, v15 offset:{L_FV}")
        if n & 3 == 3 and n < 15: bump(sV, n >> 2)
    stamp("issued")
    get_tag()
    A(f"v_mov_b32 v{EA+7}, s{sT}\ns_mov_b32 s36, {LOG2E}")
    waitflag("L_wfP", L_FP, 1, 4, 14)
    A(f"s_mov_b32 s40, s52\nds_read_b128 v[4:7], v{EA+1} offset:{L_P}\ns_waitcnt lgkmcnt(0)")
    for T in range(4):
        for i in range(4):
            for j in range(2):
                A(f"v_and_b32_dpp v{XP+2*(4*T+i)+j}, v{4+T}, v{PM+j} quad_perm:[{i},{i},{i},{i}] row_mask:0xf bank_mask:0xf")
    stamp("pready")
    for n in range(16):
        if opt and n == wpos:
            A("v_mov_b32 v8, 0")
            waitflag("L_wfP4", L_FP, 4, 4, 8)
            A(f"ds_read_b128 v[16:19], v{EA+6} offset:{L_MX}\nds_read_b128 v[20:23], v{EA+6} offset:{L_LW}\ns_waitcnt lgkmcnt(1)")
            A(f"v_max3_f32 v24, v16, v17, v18\nv_max_f32 v24, v24, v19\nv_mul_f32 v25, {LOG2E ^ 0x80000000}, v24")
            for i in range(4): A(f"v_fma_f32 v{16+i}, v{16+i}, s36, v25")
            for i in range(4): A(f"v_exp_f32 v{8+2*i}, v{16+i}")
            A("s_waitcnt lgkmcnt(0)\nv_mul_f32 v25, v20, v8\nv_fmac_f32 v25, v21, v10\nv_fmac_f32 v25, v22, v12\nv_fmac_f32 v25, v23, v14")
        A(f"s_waitcnt vmcnt({15-n})")
        if woTrig == n + 1: A(f"ds_write_b32 v14, v15 offset:{L_FV}")
        A(f"v_mfma_f32_16x16x16_bf16 {v(A1,4)}, {v(XP+2*n,2)}, {v(VV+4*n,2)}, {v(A1,4) if n else 0}")
        A(f"v_mfma_f32_16x16x16_bf16 {v(A2,4)}, {v(XP+2*n,2)}, {v(VV+4*n+2,2)}, {v(A2,4) if n else 0}")
    stamp("PVdone")
    if hack == 4:
        for i in range(2): A(f"v_cndmask_b32 v{A1+i}, v{24+i}, v{A1+i}, s[42:43]")
        tag(A1, 4, EA+7)
        A("s_mov_b32 exec_hi, 1"); store(EA+4, A1, 4, sWS); A("s_barrier\ns_endpgm")
    A(f"ds_write_b128 v{EA+2}, {v(A1,4)} offset:{L_O}\nds_write_b128 v{EA+2}, {v(A2,4)} offset:{L_O+1024}")
    A("s_waitcnt lgkmcnt(0)\ns_barrier")
    stamp("barC")
    if opt:
        for i in range(4): A(f"ds_read_b128 {v(KF+4*i,4)}, v{EA+3} offset:{L_O+2048*i}")
        A("s_waitcnt lgkmcnt(3)")
        for i in (0, 2): A(f"v_pk_mul_f32 {v(KF+i,2)}, {v(KF+i,2)}, v[8:9] op_sel_hi:[1,0]")
        for k in range(1, 4):
            A(f"s_waitcnt lgkmcnt({3-k})")
            for i in (0, 2): A(f"v_pk_fma_f32 {v(KF+i,2)}, {v(KF+4*k+i,2)}, {v(8+2*k,2)}, {v(KF+i,2)} op_sel_hi:[1,0,1]")
    else:
        A(f"ds_read_b128 v[16:19], v{EA+6} offset:{L_MX}\nds_read_b128 v[20:23], v{EA+6} offset:{L_LW}")
        for i in range(4): A(f"ds_read_b128 {v(KF+4*i,4)}, v{EA+3} offset:{L_O+2048*i}")
        A("s_waitcnt lgkmcnt(5)")
        A(f"v_max3_f32 v24, v16, v17, v18\nv_max_f32 v24, v24, v19\nv_mul_f32 v25, {LOG2E ^ 0x80000000}, v24")
        for i in range(4): A(f"v_fma_f32 v{16+i}, v{16+i}, s36, v25")
        for i in range(4): A(f"v_exp_f32 v{16+i}, v{16+i}")
        A("s_waitcnt lgkmcnt(3)")
        A("v_mul_f32 v25, v20, v16")
        for i in range(4): A(f"v_mul_f32 v{KF+i}, v{KF+i}, v16")
        A("v_fmac_f32 v25, v21, v17\nv_fmac_f32 v25, v22, v18\nv_fmac_f32 v25, v23, v19")
        for k in range(1, 4):
            A(f"s_waitcnt lgkmcnt({3-k})")
            for i in range(4): A(f"v_fmac_f32 v{KF+i}, v{KF+4*k+i}, v{16+k}")
    for i in range(2): A(f"v_cndmask_b32 v{KF+i}, v{24+i}, v{KF+i}, s[42:43]")
    tag(KF, 4, EA+7)
    A("s_mov_b32 exec_hi, 1")
    store(EA+4, KF, 4, sWS, ost)
    stamp("pub")
    A("s_cmp_eq_u32 s40, 1\ns_cbranch_scc1 L_Snob")
    store(EA+9, KF, 4, sWSB, "sc1")
    A("L_Snob:")
    dump()
    A("L_end:\ns_endpgm")
    A.L = entry + A.L + cpart
    if cpf: A(".fill 640, 4, 0xbf800000")
    for h in range(hops):
        A(f".p2align 10\nL_hop{h}:\ns_branch {'L_hop%d' % (h+1) if h + 1 < hops else 'L_hopback'}")

    head = (hdr or "") + DOC + f"; @launch grid=(256,1,1) block=(512,1,1) lds={LDS_BYTES + (16384 if coop else 0) + (8192 if tr else 0)}\n"
    head += f'.amdgcn_target "amdgcn-amd-amdhsa--gfx950"\n.text\n.globl {K}\n.p2align 8\n.type {K},@function\n'
    tail = f""".section .rodata,"a"
.p2align 6
.amdhsa_kernel {K}
  .amdhsa_next_free_vgpr 216
  .amdhsa_next_free_sgpr 102
  .amdhsa_accum_offset 216
  .amdhsa_group_segment_fixed_size 0
  .amdhsa_kernarg_size 104
  .amdhsa_user_sgpr_count 2
  .amdhsa_user_sgpr_kernarg_segment_ptr 1
  .amdhsa_system_sgpr_workgroup_id_x 1
  .amdhsa_float_denorm_mode_32 3
.end_amdhsa_kernel
"""
    return head + A.finish() + tail

def header():
    ref = open(f"cdna_kernels/{NAME}.s.ref").read().split("\n")
    return "\n".join(l for l in ref if l.startswith(";") and "@launch" not in l and not l.startswith("; Override") and not l.startswith("; grid=")) + "\n"

if __name__ == "__main__":
    out = sys.argv[1] if len(sys.argv) > 1 else f"cdna_kernels/{NAME}.s"
    open(out, "w").write(gen(hdr=header()))
```

```python
import sys, os
sys.path.insert(0, os.path.dirname(os.path.abspath(__file__)))
from asmlib import Asm
NAME = "recurrent_scan__sliding_block_cached__dense_activation_squared_relu__decode"

FLG = 0x300000
IDS = 0x1000
QP, HP, OP, ML, SPS, SPF, STAMP = 0x10000, 0x50000, 0x100000, 0x180000, 0x200000, 0x250000, 0x400000
SPSTR = 1152
DELTA = 0x800000
L_K, L_Q, L_MX, L_LW, L_O, L_RED = 18432, 0, 1280, 1344, 1536, 9728
L_QSTR = 272
L_FT, L_FV, L_FQ, L_FK, L_FP = 1408, 1424, 1440, 1456, 1472
L_FW = 1488
L_W = 83968
L_W1 = L_W + 16384
L_XN = L_O + 2048
L_P = L_RED
LDS_BYTES = 83968
TAGM = 0x3ff
LOG2E = 0x3fb8aa3b
SCALE = 0x3db504f3

CNAMES = ["start", "issued", "LNdone", "pub1", "FT", "qgath", "FK", "pready", "FV", "first", "barC", "wohere", "gathO", "pubS", "gathS", "end"]
SNAMES = ["start", "first", "Kiss", "issued", "pready", "PVdone", "barC", "pub"]
DOC = """; One launch, 256 workgroups of 8 waves, one per CU.  Hand-offs between workgroups go through d_ws: every 32-bit word
; carries a per-launch tag in its low bits (tag = word 0 of d_ws at entry + 1, stored back at the end), readers spin until
; plain stores (visible through the die's L2) and, unless all 32 members have reported the same die id, a second time
"""
def v(a, n=1): return f"v{a}" if n == 1 else f"v[{a}:{a+n-1}]"

def gen(diag=False, nt="nt", limit=200000, hdr=None, hops=0, trig=18, paceK=7, paceV=7, kpos=5, warmLN=False,
        wofirst=False, pretouch=True, fbmask=31, prioC=0, diagwo=True, woTrig=0, spin=1, pat=0, owait=2, ackwait=True, head=3, lite=False, paceVUntil=16, fvpos=15, dirty=0, fsleep=0, lx="first", cpf=244, sfirst=True, probe=False, smtest=False, qst="", qld="sc1", noq=False, noh=False, preQ=0, hlate=True, tlb=0, chain=0, echo=0, flag2=0, dfl="", ost="", hack=0, swap=False, opt=1, wpos=10, jx=0, jq=3, jk=0, wpat=0, boost=0, bw=1, pipeS=2, stagS=2, pipeO=0, stagO=1, spre="", sst="sc1", outfl="", ptpos=0, ptfl="sc1", fall=False, fdelay=0, merge=True, mstr=2304, coop=True, latetag=True, eskew=0, tr=True, g2=True):
    A = Asm()
    sX, sK, sV, sWQ, sWO, sW1, sB1, sW2, sB2, sOUT, sWS = 4, 6, 8, 10, 12, 16, 18, 20, 22, 24, 26
    sT, sWAVE, sXC, sJ = 28, 29, 30, 31
    sCNT, sWSB, sID, sT8 = 46, 48, 50, 51
    role = ["C"]
    def stamp(k):
        names = SNAMES if role[0] == "S" else CNAMES
        if diag or ((lite or echo) and role[0] == "C" and k in ("start", "end", lx)): A(f"s_memrealtime s[{64+2*names.index(k)}:{65+2*names.index(k)}]")
    def addbase(r, off):
        A(f"s_add_u32 s{r}, s{r}, {off}\ns_addc_u32 s{r+1}, s{r+1}, 0")
    DPP = {0: "quad_perm:[1,0,3,2]", 1: "quad_perm:[2,3,0,1]", 2: "row_half_mirror", 3: "row_mirror"}
    def allred(regs, op, bits, tmp):
        for b in bits:
            for r in regs:
                if b < 4:
                    A(f"{op}_dpp v{r}, v{r}, v{r} {DPP[b]} row_mask:0xf bank_mask:0xf")
                else:
                    A(f"v_mov_b32 v{tmp}, v{r}")
                    A(f"v_permlane{16 if b == 4 else 32}_swap_b32 v{r}, v{tmp}")
                    A(f"{op} v{r}, v{r}, v{tmp}")
    def bf16r(dst, src):
        A(f"v_cvt_pk_bf16_f32 v{dst}, 0, v{src}")
    def unpack(dst, src, n):
        for i in range(n):
            A(f"v_lshlrev_b32 v{dst+2*i}, 16, v{src+i}\nv_and_b32 v{dst+2*i+1}, 0xffff0000, v{src+i}")
    def delta(dst, val, masks, n, tmp):
        A(f"v_cvt_pk_bf16_f32 v{tmp}, v{val}, v{val}")
        for j in range(n): A(f"v_and_b32 v{dst+j}, v{tmp}, v{masks+j}")
    def tag(r, n, vT):
        for i in range(n): A(f"v_bfi_b32 v{r+i}, v{vT+1}, v{vT}, v{r+i}")
    def issue(loads, base, fl="sc1"):
        for (d, n, a, off) in loads:
            A(f"global_load_dword{'x%d' % n if n > 1 else ''} {v(d, n)}, v{a}, s[{base}:{base+1}] offset:{off} {fl}")
    def check(dws, tmp, spare):
        parts = []
        for k in range(0, len(dws), 4):
            a, b, c, d = dws[k:k+4]
            u, w = spare + k // 2, spare + k // 2 + 1
            A(f"v_bitop3_b32 v{u}, v{a}, v{b}, v{c} bitop3:0x7e\nv_bitop3_b32 v{w}, v{c}, v{d}, s{sT} bitop3:0x7e")
            parts += [u, w]
        while len(parts) > 2:
            if len(parts) == 3: A(f"v_or_b32 v{parts[0]}, v{parts[0]}, v{parts[1]}"); parts = [parts[0], parts[2]]
            else: A(f"v_or3_b32 v{parts[0]}, v{parts[0]}, v{parts[1]}, v{parts[2]}"); parts = [parts[0]] + parts[3:]
        A(f"v_bitop3_b32 v{tmp}, v{parts[0]}, v{parts[1]}, v15 bitop3:0xa8\nv_cmp_ne_u32 vcc, 0, v{tmp}")
    def poll(name, loads, tmp, loadsB=None, first=None, narrow=False, strip=True):
        A(f"s_mov_b32 s{sCNT}, 0")
        if first == 0: A(f"s_branch {name}_c")
        elif first is not None: A(f"s_waitcnt vmcnt({first})\ns_branch {name}_f")
        A(f"{name}:")
        if diag and name[-1] in "OS": A("s_memtime s[58:59]")
        issue(loads, sWS)
        dws = [r for (d, n, a, off) in loads for r in range(d, d + n)]
        A(f"{name}_c:\ns_waitcnt vmcnt(0)")
        A(f"{name}_f:")
        if diag and name[-1] in "OS":
            r = 60 if name[-1] == "O" else 62
            A(f"s_memtime s[100:101]\ns_waitcnt lgkmcnt(0)\ns_sub_u32 s{r+1}, s100, s58\ns_cmp_eq_u32 s{sCNT}, 2\ns_cselect_b32 s{r}, s{r+1}, s{r}")
        if strip:
            for d in dws: A(f"v_xor_b32 v{d}, s{sT8 if narrow else sT}, v{d}")
            A(f"v_or3_b32 v{tmp}, v{dws[0]}, v{dws[1]}, v{dws[2]}")
            for k in range(3, len(dws) - 1, 2): A(f"v_or3_b32 v{tmp}, v{tmp}, v{dws[k]}, v{dws[k+1]}")
            if len(dws) % 2 == 0: A(f"v_or_b32 v{tmp}, v{tmp}, v{dws[-1]}")
            A(f"v_and_b32 v{tmp}, {0xff if narrow else TAGM}, v{tmp}\nv_cmp_ne_u32 vcc, 0, v{tmp}")
        else: check(dws, tmp, 32)
        A(f"s_and_b64 exec, exec, vcc\ns_cbranch_scc0 {name}_x")
        A(f"s_add_u32 s{sCNT}, s{sCNT}, 1\ns_cmp_gt_u32 s{sCNT}, {limit}\ns_cbranch_scc1 {name}_x")
        if loadsB:
            A(f"s_cmp_eq_u32 s53, 1\ns_cbranch_scc1 {name}\ns_and_b32 s52, s{sCNT}, 1\ns_cbranch_scc0 {name}")
            issue(loadsB, sWSB)
            A(f"s_branch {name}_c")
        else:
            A(f"s_branch {name}")
        A(f"{name}_x:\ns_mov_b64 exec, -1")
        if diag: A(f"s_mov_b32 s{ {'H':96,'Q':96,'O':97,'S':98}[name[-1]] }, s{sCNT}")
    def pollpipe(name, addrs, sets, final, tmp, stag, loadsB=None):
        nl = len(addrs); R = len(sets)
        def iss(r): issue([(sets[r] + 4*k, 4, a, off) for k, (a, off) in enumerate(addrs)], sWS)
        A(f"s_mov_b32 s{sCNT}, 0\ns_mov_b64 s[54:55], -1")
        for r in range(R):
            iss(r)
            if r < R - 1 and stag: A(f"s_sleep {stag}")
        A(f"{name}:")
        for r in range(R):
            dws = list(range(sets[r], sets[r] + 4*nl))
            A(f"s_waitcnt vmcnt({nl*(R-1)})")
            check(dws, tmp, 32)
            A("s_andn2_b64 exec, exec, vcc")
            for k, d in enumerate(dws): A(f"v_xor_b32 v{final+k}, s{sT}, v{d}")
            A(f"s_and_b64 exec, s[54:55], vcc\ns_cbranch_scc0 {name}_x\ns_mov_b64 s[54:55], exec")
            iss(r)
        A(f"s_add_u32 s{sCNT}, s{sCNT}, 1\ns_cmp_lt_u32 s{sCNT}, {limit}\ns_cbranch_scc1 {name}")
        A(f"{name}_x:\ns_mov_b64 exec, -1")
        if diag: A(f"s_mov_b32 s{ {'O':97,'S':98}[name[-1]] }, s{sCNT}")
    def store(addr, data, n, base, fl=""):
        A(f"global_store_dwordx{n} v{addr}, {v(data,n)}, s[{base}:{base+1}] {fl}")
    def waitflag(name, off, n, t, addr):
        A(f"{name}:\nds_read_b{32*n} {v(t,n)}, v{addr} offset:{off}\ns_waitcnt lgkmcnt(0)")
        if n == 4: A(f"v_and_b32 v{t}, v{t}, v{t+1}\nv_and_b32 v{t+2}, v{t+2}, v{t+3}\nv_and_b32 v{t}, v{t}, v{t+2}")
        A(f"v_readfirstlane_b32 s52, v{t}\ns_cmp_lg_u32 s52, 0\ns_cbranch_scc1 {name}_x\ns_sleep {spin}\ns_branch {name}\n{name}_x:")
    def wsb():
        A(f"s_add_u32 s{sWSB}, s{sWS}, {DELTA}\ns_addc_u32 s{sWSB+1}, s{sWS+1}, 0")
    def get_tag(b=True):
        if b: wsb()
        A(f"s_waitcnt lgkmcnt(0)\ns_add_u32 s{sT}, s{sT}, 1\ns_and_b32 s{sT}, s{sT}, {TAGM}\ns_and_b32 s{sT8}, s{sT}, 0xff")
        A(f"s_getreg_b32 s{sID}, hwreg(HW_REG_XCC_ID)\ns_lshl_b32 s{sID}, s{sID}, 10\ns_or_b32 s{sID}, s{sID}, s{sT}")
    def pr(k):
        if probe: A(f"s_memrealtime s[{96+2*k}:{97+2*k}]")
    def dump():
        if probe:
            A(f"s_waitcnt lgkmcnt(0)\ns_lshl_b32 s40, s2, 3\ns_add_u32 s40, s40, s{sWAVE}\ns_lshl_b32 s40, s40, 4\ns_add_u32 s40, s40, {STAMP+0x10000}")
            A(f"s_mov_b64 exec, 1\nv_mov_b32 v5, s40\nv_mov_b32 v6, s64\nv_mov_b32 v7, s96\nv_mov_b32 v8, s98\nglobal_store_dwordx3 v5, v[6:8], s[{sWS}:{sWS+1}]")
        if lite and role[0] == "C":
            A(f"s_waitcnt lgkmcnt(0)\ns_lshl_b32 s40, s2, 2\ns_add_u32 s40, s40, s{sWAVE}\ns_lshl_b32 s40, s40, 4\ns_add_u32 s40, s40, {STAMP}")
            A(f"s_mov_b64 exec, 1\nv_mov_b32 v5, s40\nv_mov_b32 v6, s64\nv_mov_b32 v7, s94\nv_mov_b32 v8, s{64+2*CNAMES.index(lx)}\nglobal_store_dwordx3 v5, v[6:8], s[{sWS}:{sWS+1}]")
        if not diag: return
        A("s_waitcnt lgkmcnt(0)")
        A(f"s_lshl_b32 s40, s2, 3\ns_add_u32 s40, s40, s{sWAVE}\ns_lshl_b32 s40, s40, 7\ns_add_u32 s40, s40, {STAMP}")
        A("s_mov_b64 exec, 1\nv_mov_b32 v5, s40")
        for k in range(16):
            A(f"v_mov_b32 v6, s{64+2*k}\nglobal_store_dword v5, v6, s[{sWS}:{sWS+1}] offset:{4*k}")
        for k in range(4):
            A(f"v_mov_b32 v6, s{60+k}\nglobal_store_dword v5, v6, s[{sWS}:{sWS+1}] offset:{80+4*k}")
        A(f"s_getreg_b32 s40, hwreg(HW_REG_HW_ID)\nv_mov_b32 v6, s40\nglobal_store_dword v5, v6, s[{sWS}:{sWS+1}] offset:96")
        for k in range(4):
            A(f"v_mov_b32 v6, s{96+k}\nglobal_store_dword v5, v6, s[{sWS}:{sWS+1}] offset:{64+4*k}")

    K = NAME + "_kernel"
    A(f"{K}:")
    stamp("start")
    A("s_load_dwordx16 s[4:19], s[0:1], 0")
    if cpf:
        A(f"s_getpc_b64 s[40:41]\nv_mul_u32_u24 v5, 20, v0\nglobal_load_dword v211, v5, s[40:41] offset:{cpf}")
    def karg2(): A("s_load_dwordx4 s[20:23], s[0:1], 64\ns_load_dwordx2 s[24:25], s[0:1], 80\ns_load_dwordx2 s[26:27], s[0:1], 96")
    A("v_lshrrev_b32 v1, 6, v0\nv_and_b32 v0, 63, v0")
    A(f"s_lshr_b32 s{sJ}, s2, 3\ns_and_b32 s{sXC}, s2, 7")
    if jx: A(f"s_xor_b32 s{sJ}, s{sJ}, {jx}")
    A(f"v_readfirstlane_b32 s{sWAVE}, v1")
    A(f"s_cmp_ge_u32 s{sJ}, 32\ns_cbranch_scc1 L_end")
    if swap: A(f"s_xor_b32 s{sWAVE}, s{sWAVE}, 4")
    A("v_and_b32 v1, 15, v0\nv_lshrrev_b32 v2, 4, v0")
    if diag:
        for k in range(1, 18): A(f"s_mov_b64 s[{64+2*k}:{65+2*k}], 0")
        A("s_mov_b64 s[60:61], 0\ns_mov_b64 s[62:63], 0")
    if coop:
        if tr:
            A(f"s_and_b32 s40, s{sJ}, 7\ns_lshl_b32 s41, s{sXC}, 3\ns_add_u32 s40, s40, s41\ns_lshl_b32 s40, s40, 7")
            A(f"s_and_b32 s41, s{sJ}, 24\ns_add_u32 s41, s41, s{sWAVE}\ns_lshl_b32 s41, s41, 17\ns_add_u32 s40, s40, s41")
            A("v_and_b32 v4, 7, v0\nv_lshrrev_b32 v6, 3, v0\nv_and_b32 v7, 2, v6\nv_xor_b32 v7, v7, v4\nv_lshlrev_b32 v7, 4, v7")
            A("v_lshl_add_u32 v8, v6, 13, v7\nv_xor_b32 v9, 64, v8\nv_add_u32 v9, 64512, v9")
            A(f"s_lshl_b32 s41, s{sWAVE}, 11\ns_add_u32 m0, s41, {L_W}")
            A("v_and_b32 v3, 1, v6\nv_lshl_add_u32 v5, v2, 3, v4\nv_lshlrev_b32 v5, 5, v5\nv_lshl_add_u32 v5, v3, 10, v5")
        else:
            A(f"s_xor_b32 s40, s{sJ}, {jq}\ns_lshr_b32 s41, s40, 2\ns_and_b32 s40, s40, 3\ns_lshl_b32 s42, s{sXC}, 2\ns_add_u32 s40, s40, s42\ns_lshl_b32 s40, s40, 8")
            A(f"s_lshl_b32 s41, s41, 5\ns_add_u32 s41, s41, s{sWAVE}\ns_lshl_b32 s41, s41, 14\ns_add_u32 s40, s40, s41")
            A("v_lshlrev_b32 v8, 17, v2\nv_lshl_add_u32 v8, v1, 4, v8\nv_add_u32 v9, 7168, v8")
            A(f"s_lshl_b32 s41, s{sWAVE}, 11\ns_add_u32 m0, s41, {L_W}")
            A("v_bfe_u32 v3, v0, 3, 1\nv_and_b32 v4, 7, v0\nv_lshl_add_u32 v5, v2, 3, v4\nv_lshlrev_b32 v5, 5, v5\nv_lshl_add_u32 v5, v3, 10, v5")
        A(f"s_cmp_lt_u32 s{sWAVE}, 2\ns_waitcnt lgkmcnt(0)\ns_cbranch_scc0 L_nox")
        A(f"global_load_dwordx4 v[16:19], v5, s[{sX}:{sX+1}]\nglobal_load_dwordx4 v[20:23], v5, s[{sX}:{sX+1}] offset:16\nL_nox:")
        addbase(sWQ, "s40")
        if lite or echo: stamp("first")
        A(f"global_load_lds_dwordx4 v8, s[{sWQ}:{sWQ+1}] {nt}\nglobal_load_lds_dwordx4 v9, s[{sWQ}:{sWQ+1}] offset:1024 {nt}")
    A(f"s_cmp_lt_u32 s{sWAVE}, 4\ns_cbranch_scc1 L_C")
    entry = A.L; A.L = []
    A(".p2align 8\nL_C:")
    if not coop: A("v_bfe_u32 v3, v0, 3, 1\nv_and_b32 v4, 7, v0")
    A(f"s_cmp_ge_u32 s{sWAVE}, 2\ns_cbranch_scc1 L_Cnoffn")

    MASK = 10; vTG = 14
    XS, XR, F, XO, W, ACC = 16, 24, 32, 48, 112, 176
    B1R = 180
    XF = 184
    FIN = 200
    def masks():
        A("v_and_b32 v5, 3, v0\nv_lshlrev_b32 v5, 4, v5\nv_mov_b32 v6, 0xffff\nv_mov_b32 v7, 0\nv_lshlrev_b64 v[6:7], v5, v[6:7]")
        A("v_cmp_gt_u32 vcc, 4, v4")
        A(f"v_cndmask_b32 v{MASK}, 0, v6, vcc\nv_cndmask_b32 v{MASK+1}, 0, v7, vcc")
        A(f"v_cndmask_b32 v{MASK+2}, v6, 0, vcc\nv_cndmask_b32 v{MASK+3}, v7, 0, vcc")
    if tr:
        A(f"s_cmp_eq_u32 s{sWAVE}, 0\ns_cbranch_scc1 L_Cwdone\ns_cmp_eq_u32 s{sXC}, 7\ns_cbranch_scc1 L_Cnoffn")
        A(f"s_lshr_b32 s40, s{sJ}, 2\ns_mul_i32 s39, s40, {64*3584}\ns_and_b32 s41, s{sJ}, 3\ns_lshl_b32 s42, s{sXC}, 2\ns_add_u32 s41, s41, s42\ns_lshl_b32 s42, s41, 7\ns_add_u32 s39, s39, s42")
        A(f"v_mul_u32_u24 v8, 3584, v6\nv_xor_b32 v9, 64, v7\nv_add_u32 v9, v9, v8\nv_add_u32 v9, {8*3584-1024}, v9\nv_add_u32 v8, v8, v7")
        addbase(sW1, "s39")
        for t in range(0, 8, 2):
            A(f"s_mov_b32 m0, {L_W1 + 1024*t}")
            if t: addbase(sW1, 16*3584)
            A(f"global_load_lds_dwordx4 v8, s[{sW1}:{sW1+1}] {nt}\nglobal_load_lds_dwordx4 v9, s[{sW1}:{sW1+1}] offset:1024 {nt}")
        A("L_Cwdone:")
        karg2()
        pr(0)
        A("s_barrier")
        stamp("issued")
        A(f"v_mov_b32 v{XF}, v5")
        A(f"s_cmp_eq_u32 s{sWAVE}, 1\ns_cbranch_scc1 L_Cp1")
        A(f"s_lshr_b32 s40, s{sJ}, 3\ns_lshl_b32 s34, s40, 8\ns_mov_b32 s35, {L_W}")
        A(f"s_bfe_u32 s41, s{sJ}, 0x20001\ns_lshl_b32 s42, s{sXC}, 2\ns_add_u32 s41, s41, s42\ns_lshl_b32 s41, s41, 2\ns_add_u32 s41, s41, s40\ns_lshl_b32 s41, s41, 1")
        A(f"s_and_b32 s42, s{sJ}, 1\ns_add_u32 s41, s41, s42\ns_lshl_b32 s37, s41, 8\ns_add_u32 s37, s37, {QP}\ns_mov_b32 s38, {32*4*512}\ns_branch L_Cpa")
        A(f"L_Cp1:\ns_lshl_b32 s34, s40, 7\ns_mov_b32 s35, {L_W1}\ns_mul_i32 s37, s40, 7168\ns_lshl_b32 s41, s41, 8\ns_add_u32 s37, s37, s41\ns_add_u32 s37, s37, {HP}\ns_mov_b32 s38, {8*7168}")
        A("L_Cpa:")
        A("v_bfe_u32 v5, v0, 1, 2\nv_lshl_add_u32 v5, v5, 2, v2\nv_lshl_add_u32 v9, v5, 4, s37\nv_and_b32 v5, 1, v0\nv_mad_u32_u24 v9, v5, s38, v9")
        A(f"v_lshl_add_u32 v6, v2, 3, v4\nv_lshlrev_b32 v6, 3, v6\nv_lshl_add_u32 v{XF+1}, v3, 10, v6\nv_add_u32 v{XF+1}, s34, v{XF+1}")
        A(f"s_lshl_b32 s40, s{sWAVE}, 9\nv_lshl_add_u32 v{XF+2}, v3, 8, v6\nv_add_u32 v{XF+2}, s40, v{XF+2}")
        A(f"v_lshlrev_b32 v{XF+3}, 8, v5\nv_lshl_add_u32 v{XF+3}, v2, 4, v{XF+3}\nv_add_u32 v{XF+3}, s40, v{XF+3}")
        A(f"v_bfe_u32 v5, v0, 2, 2\nv_and_b32 v6, 3, v0\nv_lshlrev_b32 v6, 3, v6\nv_lshl_add_u32 v6, v5, 7, v6\nv_lshl_add_u32 v6, v2, 10, v6")
        A(f"v_and_b32 v5, 2, v5\nv_lshl_add_u32 v6, v5, 4, v6\nv_and_b32 v5, 1, v2\nv_lshl_add_u32 v6, v5, 6, v6")
        for cg in range(4): A(f"v_xor_b32 v7, {32*cg}, v6\nv_add_u32 v{XF+4+cg}, s35, v7")
        A("v_and_b32 v5, 2, v0\nv_cmp_ne_u32 s[54:55], 0, v5\nv_and_b32 v5, 4, v0\nv_cmp_ne_u32 s[56:57], 0, v5")
        masks()
        A(f"s_cmp_eq_u32 s{sWAVE}, 1\ns_cbranch_scc1 L_Cw8\ns_waitcnt vmcnt(2)\nL_Cw8:\ns_waitcnt vmcnt(10)\nL_Cw:")
        A(f"ds_write_b128 v{XF}, {v(XS,4)} offset:{L_O}\nds_write_b128 v{XF}, {v(XS+4,4)} offset:{L_O+16}")
        A(f"ds_read_b64 {v(XR,2)}, v{XF+1} offset:{L_O}")
    else:
        if jq: A(f"s_xor_b32 s{sJ}, s{sJ}, {jq}")
        A(f"s_sub_u32 s33, 2, s{sWAVE}\ns_lshr_b32 s40, s{sJ}, s33\ns_lshl_b32 s41, s40, s33\ns_sub_u32 s41, s{sJ}, s41\ns_lshl_b32 s42, s{sXC}, s33\ns_add_u32 s41, s41, s42")
        if jq: A(f"s_xor_b32 s{sJ}, s{sJ}, {jq}")
        A(f"s_movk_i32 s32, 8192\ns_cmp_eq_u32 s{sWAVE}, 1\ns_cmovk_i32 s32, 3584")
        if wpat == 1:
            A("s_add_u32 s34, s33, 4\ns_lshl_b32 s39, s32, s34\ns_mul_i32 s39, s40, s39\ns_lshl_b32 s35, s32, 3\ns_lshl_b32 s42, s41, 8\ns_add_u32 s39, s39, s42")
            A("v_lshl_add_u32 v5, v2, 3, v4\nv_lshlrev_b32 v5, 5, v5\nv_lshl_add_u32 v5, v3, 10, v5")
            A("s_add_u32 s34, s33, 5\ns_lshl_b32 s34, s40, s34\nv_lshl_add_u32 v6, v2, 4, s34\nv_lshl_add_u32 v6, v3, 10, v6")
            A("s_sub_u32 s36, s33, 1\ns_lshl_b32 s36, s36, 6\nv_add_u32 v7, s36, v6")
        else:
            A("s_add_u32 s34, s33, 2\ns_lshl_b32 s35, s32, s34\ns_mul_i32 s39, s40, s35\ns_lshl_b32 s39, s39, 2\ns_lshl_b32 s42, s41, 8\ns_add_u32 s39, s39, s42")
            A("v_lshl_add_u32 v5, v2, 3, v4\nv_lshlrev_b32 v5, 5, v5\nv_lshl_add_u32 v5, v3, 10, v5")
            A("v_lshl_add_u32 v6, s40, 2, v2\ns_add_u32 s34, s33, 3\nv_lshlrev_b32 v6, s34, v6\nv_lshl_add_u32 v6, v3, 10, v6")
            A("s_sub_u32 s36, s33, 1\ns_lshl_b32 s36, s36, 4\nv_add_u32 v7, s36, v6")
        A("v_mul_lo_u32 v8, v2, s35\nv_lshl_add_u32 v8, v1, 4, v8")
        A(f"s_mul_i32 s44, s{sXC}, s{sWAVE}\ns_cmp_eq_u32 s44, 7\ns_cbranch_scc1 L_Cnoffn")
        if coop:
            A(f"v_mov_b32 v{XF}, v5\nv_mov_b32 v{XF+1}, v6\nv_mov_b32 v{XF+2}, v7")
            A(f"s_cmp_eq_u32 s{sWAVE}, 0\ns_cbranch_scc1 L_Cwdone")
            addbase(sW1, "s39")
            for t in range(8):
                A(f"global_load_dwordx4 {v(W+4*t,4)}, v8, s[{sW1}:{sW1+1}] {nt}")
                if t != 7: addbase(sW1, "s32")
        else:
            A(f"s_cmp_eq_u32 s{sWAVE}, 1\ns_waitcnt lgkmcnt(0)")
            if not ackwait or lite or echo: stamp("first")
            pr(1)
            A(f"global_load_dwordx4 {v(XS,4)}, v5, s[{sX}:{sX+1}]\nglobal_load_dwordx4 {v(XS+4,4)}, v5, s[{sX}:{sX+1}] offset:16")
            A(f"s_cselect_b64 s[42:43], s[{sW1}:{sW1+1}], s[{sWQ}:{sWQ+1}]")
            A(f"global_load_dwordx4 {v(XR,4)}, v6, s[{sX}:{sX+1}]\nglobal_load_dwordx4 {v(XR+4,4)}, v7, s[{sX}:{sX+1}]")
            addbase(42, "s39")
            for t in range(16):
                if t == 8: A(f"s_cmp_eq_u32 s{sWAVE}, 1\ns_cbranch_scc1 L_Cwdone")
                A(f"global_load_dwordx4 {v(W+4*t,4)}, v8, s[42:43] {nt}")
                if t == 7 and wpat == 1: addbase(42, 25*8192)
                elif t != 15: addbase(42, "s32")
        A("L_Cwdone:")
        karg2()
        pr(0)
        A("s_barrier")
        stamp("issued")
        if not latetag: A(f"s_waitcnt lgkmcnt(0)\ns_load_dword s{sT}, s[{sWS}:{sWS+1}], 0")
        if prioC: A(f"s_setprio {prioC}")
        A(f"s_lshl_b32 s37, s41, 3\ns_add_u32 s37, s37, s40\ns_lshl_b32 s37, s37, 9\ns_add_u32 s37, s37, {QP}\ns_mov_b32 s38, {32*8*512}")
        A(f"s_cmp_eq_u32 s{sWAVE}, 0\ns_cbranch_scc1 L_Cpa")
        A(f"s_mul_i32 s37, s40, 7168\ns_lshl_b32 s42, s41, 9\ns_add_u32 s37, s37, s42\ns_add_u32 s37, s37, {HP}\ns_mov_b32 s38, {16*7168}")
        A("L_Cpa:")
        A("v_and_b32 v5, 1, v2\nv_lshl_add_u32 v9, v5, 4, s37\nv_lshl_add_u32 v9, v1, 5, v9\nv_lshrrev_b32 v5, 1, v2\nv_mad_u32_u24 v9, v5, s38, v9")
        if preQ: A(f"global_load_dwordx4 {v(XF,4)}, v9, s[{sWS}:{sWS+1}] sc1")
        A("L_Cmask:")
        masks()
        if not latetag:
            get_tag()
            A(f"v_mov_b32 v{vTG}, s{sT}\nv_mov_b32 v{vTG+1}, {TAGM}")
        if coop: A(f"s_cmp_eq_u32 s{sWAVE}, 1\ns_cbranch_scc1 L_Cw8\ns_waitcnt vmcnt(2)\nL_Cw8:\ns_waitcnt vmcnt(10)\nL_Cw:")
        if coop:
            A(f"ds_write_b128 v{XF}, {v(XS,4)} offset:{L_O}\nds_write_b128 v{XF}, {v(XS+4,4)} offset:{L_O+16}")
            A(f"ds_read_b128 {v(XR,4)}, v{XF+1} offset:{L_O}\nds_read_b128 {v(XR+4,4)}, v{XF+2} offset:{L_O}")
        if not coop: A(f"s_cmp_eq_u32 s{sWAVE}, 1\ns_cbranch_scc1 L_Cw8\ns_waitcnt vmcnt({16+preQ})\ns_branch L_Cw\nL_Cw8:\ns_waitcnt vmcnt({8+preQ})\nL_Cw:")
    unpack(F, XS, 8)
    A(f"v_add_f32 v5, v{F}, v{F+1}\nv_add_f32 v6, v{F+2}, v{F+3}")
    for i in range(4, 16, 2): A(f"v_add_f32 v5, v5, v{F+i}\nv_add_f32 v6, v6, v{F+i+1}")
    A("v_add_f32 v5, v5, v6")
    allred([5], "v_add_f32", [0, 1, 2, 4, 5], 6)
    A("v_mul_f32 v5, 0x3b000000, v5")
    for i in range(16): A(f"v_sub_f32 v{F+i}, v{F+i}, v5")
    A(f"v_mul_f32 v6, v{F}, v{F}\nv_mul_f32 v7, v{F+1}, v{F+1}")
    for i in range(2, 16, 2): A(f"v_fmac_f32 v6, v{F+i}, v{F+i}\nv_fmac_f32 v7, v{F+i+1}, v{F+i+1}")
    A("v_add_f32 v6, v6, v7")
    allred([6], "v_add_f32", [0, 1, 2, 4, 5], 7)
    A("v_mul_f32 v6, 0x3b000000, v6")
    bf16r(5, 5); bf16r(6, 6)
    A("v_add_f32 v6, 0x3727c5ac, v6"); bf16r(6, 6)
    A("v_sqrt_f32 v6, v6"); bf16r(6, 6)
    A("v_rcp_f32 v6, v6")
    if coop or latetag: A("s_waitcnt lgkmcnt(0)")
    if latetag: A(f"s_load_dword s{sT}, s[{sWS}:{sWS+1}], 0")
    if tr:
        unpack(F, XR, 2)
        for i in range(4): A(f"v_sub_f32 v{F+i}, v{F+i}, v5")
        for i in range(4): bf16r(F+i, F+i)
        for i in range(4): A(f"v_mul_f32 v{F+i}, v{F+i}, v6")
        A(f"v_cvt_pk_bf16_f32 v{XR}, v{F}, v{F+1}\nv_cvt_pk_bf16_f32 v{XR+1}, v{F+2}, v{F+3}\nds_write_b64 v{XF+2}, {v(XR,2)} offset:{L_XN}")
        for k in range(4): A(f"ds_read_b128 {v(XO+4*k,4)}, v{XF+3} offset:{L_XN+64*k}")
        stamp("LNdone")
        get_tag()
        A(f"v_mov_b32 v{vTG}, s{sT}\nv_mov_b32 v{vTG+1}, {TAGM}")
        A(f"s_lshl_b32 s40, s{sWAVE}, 2\nv_mov_b32 v7, s40\nv_mov_b32 v8, 1\ns_waitcnt vmcnt(8)")
        A(f"s_cmp_eq_u32 s{sWAVE}, 1\ns_cbranch_scc0 L_Cl1\nds_write_b32 v7, v8 offset:{L_FW}\ns_waitcnt vmcnt(0)\ns_branch L_Cl0")
        A(f"L_Cl1:\ns_waitcnt vmcnt(0)\nds_write_b32 v7, v8 offset:{L_FW}")
        waitflag("L_wfW0", L_FW, 4, F, 7); waitflag("L_wfW1", L_FW+16, 4, F, 7)
        A("L_Cl0:")
        AC4 = XO + 16
        for k in range(4):
            if k == 2: A(f"s_cmp_eq_u32 s{sWAVE}, 1\ns_cbranch_scc1 L_Cm8")
            for cg in range(4):
                for h in range(2): A(f"ds_read_b64_tr_b16 {v(W+16*k+4*cg+2*h,2)}, v{XF+4+cg} offset:{4096*k+512*h}")
            for cg in range(4):
                A(f"s_waitcnt lgkmcnt({6-2*cg})")
                A(f"v_mfma_f32_16x16x32_bf16 {v(AC4+4*cg,4)}, {v(W+16*k+4*cg,4)}, {v(XO+4*k,4)}, {v(AC4+4*cg,4) if k else 0}")
        A("L_Cm8:\ns_nop 7")
        for i in range(4): A(f"v_cndmask_b32 v{AC4+i}, v{AC4+i}, v{AC4+4+i}, s[54:55]\nv_cndmask_b32 v{AC4+8+i}, v{AC4+8+i}, v{AC4+12+i}, s[54:55]")
        for i in range(4): A(f"v_cndmask_b32 v{ACC+i}, v{AC4+i}, v{AC4+8+i}, s[56:57]")
    else:
        unpack(F, XR, 8)
        for i in range(16): A(f"v_sub_f32 v{F+i}, v{F+i}, v5")
        for i in range(16): bf16r(F+i, F+i)
        for i in range(16): A(f"v_mul_f32 v{F+i}, v{F+i}, v6")
        for t in range(16):
            if t == 8: A(f"s_cmp_eq_u32 s{sWAVE}, 1\ns_cbranch_scc1 L_Cd8")
            delta(XO + 4*t, F + t, MASK, 4, 5)
        A("L_Cd8:")
        if warmLN: A(f"s_cmp_ge_u32 s{sWAVE}, 2\ns_cbranch_scc1 L_C23b")
        stamp("LNdone")
        if latetag:
            get_tag()
            A(f"v_mov_b32 v{vTG}, s{sT}\nv_mov_b32 v{vTG+1}, {TAGM}")
        if coop:
            A(f"s_lshl_b32 s40, s{sWAVE}, 2\nv_mov_b32 v7, s40\nv_mov_b32 v8, 1\ns_waitcnt vmcnt(8)")
            A(f"s_cmp_eq_u32 s{sWAVE}, 1\ns_cbranch_scc0 L_Cl1\nds_write_b32 v7, v8 offset:{L_FW}\ns_branch L_Cl0")
            A(f"L_Cl1:\ns_waitcnt vmcnt(0)\nds_write_b32 v7, v8 offset:{L_FW}")
            waitflag("L_wfW0", L_FW, 4, F, 7); waitflag("L_wfW1", L_FW+16, 4, F, 7)
            A("v_lshlrev_b32 v7, 4, v0\nv_add_u32 v7, %d, v7" % L_W)
            for t in range(16): A(f"ds_read_b128 {v(W+4*t,4)}, v7 offset:{1024*t}")
            A("L_Cl0:\ns_waitcnt vmcnt(0)")
            for t in range(16):
                if t == 8: A(f"s_cmp_eq_u32 s{sWAVE}, 1\ns_cbranch_scc1 L_Cm8")
                if t % 4 == 0: A(f"s_waitcnt lgkmcnt({12 - t})")
                A(f"v_mfma_f32_16x16x32_bf16 {v(ACC,4)}, {v(XO+4*t,4)}, {v(W+4*t,4)}, {v(ACC,4) if t else 0}")
        else:
            A(f"s_cmp_eq_u32 s{sWAVE}, 1\ns_cbranch_scc0 L_Cl0\ns_waitcnt vmcnt({preQ})\nL_Cl0:")
            for t in range(16):
                if t == 8: A(f"s_cmp_eq_u32 s{sWAVE}, 1\ns_cbranch_scc1 L_Cm8")
                if t % 4 == 0: A(f"s_waitcnt vmcnt({12 - t + preQ})")
                A(f"v_mfma_f32_16x16x32_bf16 {v(ACC,4)}, {v(XO+4*t,4)}, {v(W+4*t,4)}, {v(ACC,4) if t else 0}")
        A("L_Cm8:\ns_nop 7")
    A("v_mov_b32 v5, 0xff")
    for i in range(4): A(f"v_add_u32 v{ACC+i}, 0x80, v{ACC+i}")
    for i in range(4): A(f"v_bfi_b32 v{ACC+i}, v5, v{vTG}, v{ACC+i}")
    if tr: A("s_mov_b32 exec_lo, 0x00ff00ff\ns_mov_b32 exec_hi, 0x00ff00ff")
    store(9, ACC, 4, sWS, qst)
    if tr: A("s_mov_b64 exec, -1")
    A(f"v_mov_b32 v{B1R+2}, v9")
    stamp("pub1")
    if not trig:
        A(f"s_cmp_eq_u32 s{sWAVE}, 0\ns_cbranch_scc0 L_Cmid\nv_mov_b32 v5, 0\nv_mov_b32 v6, 1\nds_write_b32 v5, v6 offset:{L_FT}")
    A("s_branch L_Cmid")

    A(f"L_Cnoffn:\nv_mov_b32 v9, 0\nv_mov_b32 v{B1R+2}, 0")
    karg2()
    A(f"v_mov_b32 v5, 0\nv_and_b32 v6, 31, v0\nv_lshlrev_b32 v6, 2, v6\nds_write_b32 v6, v5 offset:{L_FT}")
    A("s_waitcnt lgkmcnt(0)"); pr(1); pr(0); A("s_barrier")
    A(f"s_load_dword s{sT}, s[{sWS}:{sWS+1}], 0")
    wsb()
    if warmLN:
        A(f"s_cmp_eq_u32 s{sWAVE}, 2\ns_cbranch_scc1 L_Cw\nL_C23b:")
    get_tag(False)
    A(f"v_mov_b32 v{vTG}, s{sT}\nv_mov_b32 v{vTG+1}, {TAGM}")
    if coop: A(f"s_lshl_b32 s40, s{sWAVE}, 2\nv_mov_b32 v7, s40\nv_mov_b32 v8, 1\ns_waitcnt vmcnt(0)\nds_write_b32 v7, v8 offset:{L_FW}")
    A(f"s_cmp_eq_u32 s{sWAVE}, 3\ns_cbranch_scc0 L_Cnoid")
    A(f"s_lshl_b32 s40, s{sXC}, 5\ns_add_u32 s40, s40, s{sJ}\ns_lshl_b32 s40, s40, 2\ns_add_u32 s40, s40, {IDS}")
    A(f"v_mov_b32 v5, s40\nv_mov_b32 v6, s{sID}\ns_mov_b64 exec, 1\nglobal_store_dword v5, v6, s[{sWS}:{sWS+1}] sc1\ns_mov_b64 exec, -1")
    if eskew:
        A(f"s_cmp_eq_u32 s{sJ}, 0\ns_cbranch_scc0 L_nosk\ns_lshl_b32 s40, s{sXC}, 2\ns_add_u32 s40, s40, 0x2000\nv_mov_b32 v5, s40\nv_mov_b32 v6, s64")
        A(f"s_mov_b64 exec, 1\nglobal_store_dword v5, v6, s[{sWS}:{sWS+1}] sc1\ns_mov_b64 exec, -1\nL_nosk:")
    if tlb:
        A(f"s_lshr_b32 s40, s2, 7\ns_lshl_b32 s40, s40, 3\ns_add_u32 s40, s40, s{sXC}\ns_lshl_b32 s40, s40, 23\ns_and_b32 s41, s{sJ}, 15\ns_lshl_b32 s41, s41, 14\ns_add_u32 s40, s40, s41\ns_add_u32 s40, s40, {28672*256}")
        A("v_lshlrev_b32 v5, 18, v0\nv_add_u32 v5, s40, v5\ns_mov_b64 exec, 15")
        A(f"global_load_dword v210, v5, s[{sV}:{sV+1}] nt")
        if tlb > 1: A(f"global_load_dword v210, v5, s[{sK}:{sK+1}] nt")
        A(f"s_mov_b64 exec, 1\ns_lshl_b32 s40, s{sXC}, 3\ns_lshr_b32 s41, s{sJ}, 2\ns_add_u32 s40, s40, s41\ns_lshl_b32 s41, s40, 16\nv_mov_b32 v5, s41")
        A(f"global_load_dword v210, v5, s[{sWO}:{sWO+1}] nt\ns_min_u32 s40, s40, 55\ns_lshl_b32 s41, s40, 15\nv_mov_b32 v5, s41\nglobal_load_dword v210, v5, s[{sW2}:{sW2+1}] nt")
        A(f"v_mov_b32 v5, {SPF + 0x4c000}\nglobal_load_dword v210, v5, s[{sWS}:{sWS+1}] nt\nv_mov_b32 v5, 0")
        A(f"global_load_dword v210, v5, s[{sB1}:{sB1+1}]\nglobal_load_dword v210, v5, s[{sOUT}:{sOUT+1}] nt\ns_mov_b64 exec, -1")
    if dirty:
        A("s_lshl_b32 s40, s2, 15\ns_add_u32 s40, s40, 0x1000000\nv_lshl_add_u32 v5, v0, 4, s40")
        for k in range(dirty): A(f"global_store_dwordx4 v5, v[16:19], s[{sWS}:{sWS+1}] {dfl}\nv_add_u32 v5, 1024, v5")
    A("L_Cnoid:")
    masks()

    A("L_Cmid:")
    QG, QF, SC, KA, MA, KF = XO, XO + 16, XO + 32, XO + 48, XO + 52, W
    A(f"s_cmp_lt_u32 s{sXC}, 7\ns_cselect_b32 s45, 2, 0\ns_cmp_lt_u32 s{sWAVE}, s45\ns_cselect_b32 s45, 1, 0")
    A(f"s_lshr_b32 s40, s{sJ}, 4\ns_lshl_b32 s40, s40, 5\ns_lshl_b32 s41, s{sXC}, 2\ns_add_u32 s40, s40, s41\ns_add_u32 s40, s40, s{sWAVE}")
    A(f"s_lshl_b32 s40, s40, {11 if tr else 12}\ns_add_u32 s40, s40, {QP}\nv_lshl_add_u32 v{MA}, v0, 4, s40")
    if not trig: A(f"s_add_u32 s58, s{sWS}, s40\ns_addc_u32 s59, s{sWS+1}, 0")
    A(f"s_mul_i32 s40, s{sWAVE}, {L_QSTR}\nv_and_b32 v5, 31, v0\nv_lshl_add_u32 v{MA+1}, v5, 3, s40\nv_lshrrev_b32 v6, 5, v0\nv_lshl_add_u32 v{MA+1}, v6, 2, v{MA+1}")
    A(f"s_lshl_b32 s40, s{sXC}, 7\ns_add_u32 s40, s40, {IDS}\nv_lshl_add_u32 v{MA+2}, v5, 2, s40")
    A(f"v_and_b32 v5, 3, v1\nv_lshlrev_b32 v5, 10, v5\nv_lshrrev_b32 v6, 2, v1\nv_lshl_add_u32 v5, v6, 8, v5\ns_lshl_b32 s40, s{sWAVE}, 14\ns_add_u32 s40, s40, {L_K}\nv_add_u32 v5, s40, v5")
    for u in range(4):
        A(f"v_add_u32 v7, {4*u}, v2\nv_xor_b32 v7, v7, v1\nv_lshl_add_u32 v{KA+u}, v7, 4, v5")
    A(f"v_mul_u32_u24 v{MA+3}, {L_QSTR}, v6\nv_lshl_add_u32 v{MA+3}, v2, 4, v{MA+3}")
    A(f"s_lshl_b32 s40, s{sWAVE}, 2\nv_lshl_add_u32 v{MA+4}, v6, 4, s40\nv_mov_b32 v{MA+7}, s40\nv_mov_b32 v{MA+6}, 0")
    A(f"s_lshl_b32 s40, s{sWAVE}, 10\nv_lshl_add_u32 v{MA+5}, v0, 4, s40")
    A("v_and_b32 v5, 1, v0\nv_cmp_ne_u32 s[54:55], 0, v5\nv_and_b32 v5, 2, v0\nv_cmp_ne_u32 s[56:57], 0, v5")
    A(f"s_lshl_b32 s40, s{sXC}, 3\ns_lshr_b32 s41, s{sJ}, 2\ns_add_u32 s40, s40, s41\ns_lshl_b32 s40, s40, 1\ns_add_u32 s40, s40, s{sWAVE}")
    A(f"s_lshl_b32 s41, s40, 6\ns_add_u32 s41, s41, {HP}\nv_mul_u32_u24 v6, 7168, v4\nv_lshl_add_u32 v6, v2, 4, v6\nv_add_u32 v6, s41, v6")
    A(f"v_mul_u32_u24 v8, {(8 if tr else 16)*7168}, v3\nv_add_u32 v{MA+9}, v6, v8\nv_add_u32 v{MA+10}, {8*7168}, v{MA+9}")
    A(f"s_lshl_b32 s41, s40, 5\nv_lshl_add_u32 v{MA+8}, v2, 3, s41")
    A(f"s_lshl_b32 s40, s{sXC}, 5\ns_add_u32 s40, s40, s{sJ}")
    A("s_lshr_b32 s41, s40, 6\ns_lshl_b32 s41, s41, 7\ns_and_b32 s42, s40, 15\ns_lshl_b32 s42, s42, 3\ns_add_u32 s41, s41, s42")
    A("s_bfe_u32 s42, s40, 0x10004\ns_lshl_b32 s42, s42, 2\ns_add_u32 s41, s41, s42")
    A("s_bfe_u32 s42, s40, 0x10005\ns_lshl_b32 s42, s42, 9\ns_add_u32 s42, s42, s41")
    if g2:
        A(f"s_and_b32 s43, s{sWAVE}, 1\nv_lshrrev_b32 v6, 5, v0\nv_lshl_add_u32 v6, s43, 1, v6\nv_add_lshl_u32 v{FIN+2}, v6, s42, 1\nv_add_lshl_u32 v7, v6, s41, 1")
    else: A(f"v_add_lshl_u32 v{FIN+2}, v2, s42, 1\nv_add_lshl_u32 v7, v2, s41, 1")
    A(f"global_load_ushort v{FIN}, v{FIN+2}, s[{sX}:{sX+1}]\nglobal_load_ushort v{FIN+1}, v7, s[{sB2}:{sB2+1}]")
    W2R, WOR, G = W, W + 16, W + 32
    A(f"s_and_b32 s40, s{sJ}, 3\ns_lshl_b32 s40, s40, 8\ns_lshr_b32 s41, s{sJ}, 2")
    A(f"s_lshl_b32 s42, s{sXC}, 3\ns_add_u32 s47, s42, s41")
    A(f"s_lshl_b32 s42, s47, 1\ns_add_u32 s42, s42, s{sWAVE}\ns_lshl_b32 s42, s42, 14\ns_add_u32 s42, s42, s40")
    addbase(sW2, "s42")
    A(f"s_lshl_b32 s42, s47, 2\ns_add_u32 s42, s42, s{sWAVE}\ns_lshl_b32 s43, s42, 14\ns_add_u32 s43, s43, s40")
    addbase(sWO, "s43")
    A(f"v_lshlrev_b32 v{FIN+5}, 12, v2\nv_lshl_add_u32 v{FIN+5}, v1, 4, v{FIN+5}")
    A(f"s_lshl_b32 s42, s42, 11\ns_add_u32 s42, s42, {OP}\nv_lshl_add_u32 v{XR}, v0, 4, s42")
    A(f"s_lshr_b32 s42, s47, 1\ns_lshl_b32 s42, s42, 9\ns_add_u32 s42, s42, {ML}\nv_lshl_add_u32 v{XR+2}, v1, 4, s42")
    A(f"s_lshl_b32 s42, s{sXC}, 16\ns_bfe_u32 s43, s{sJ}, 0x30002\ns_lshl_b32 s43, s43, 8\ns_add_u32 s42, s42, s43\ns_lshl_b32 s43, s{sWAVE}, 6\ns_add_u32 s42, s42, s43\ns_add_u32 s42, s42, {OP}")
    A(f"v_lshl_add_u32 v7, v3, 4, v4\nv_lshlrev_b32 v7, 11, v7\nv_lshl_add_u32 v7, v2, 4, v7\nv_add_u32 v{FIN+3}, s42, v7\nv_add_u32 v{FIN+4}, {8*2048}, v{FIN+3}")
    if merge:
        A(f"s_and_b32 s40, s{sJ}, 3\ns_lshl_b32 s40, s40, 6\ns_add_u32 s40, s40, s47\ns_mul_i32 s40, s40, {mstr}")
        A(f"s_lshl_b32 s41, s{sWAVE}, 10\ns_add_u32 s40, s40, s41\ns_add_u32 s40, s40, {SPS}\nv_lshl_add_u32 v{XR+3}, v0, 4, s40")
        A(f"s_lshl_b32 s40, s{sXC}, 5\ns_add_u32 s40, s40, s{sJ}\ns_lshr_b32 s41, s40, 6\ns_mul_i32 s41, s41, {64*mstr}\ns_and_b32 s40, s40, 63\ns_lshl_b32 s40, s40, 5")
        A(f"s_add_u32 s40, s40, s41\ns_add_u32 s40, s40, {SPS}\nv_mul_u32_u24 v{XR+4}, {mstr}, v0\nv_add_u32 v{XR+4}, s40, v{XR+4}\nv_add_u32 v{XR+5}, 16, v{XR+4}")
        if g2: A(f"s_lshl_b32 s40, s{sWAVE}, 4\nv_add_u32 v{XR+4}, s40, v{XR+4}")
    else:
        A(f"s_and_b32 s40, s{sJ}, 3\ns_lshl_b32 s40, s40, 6\ns_add_u32 s40, s40, s47\ns_mul_i32 s40, s40, {SPSTR}")
        A(f"s_cmp_eq_u32 s{sWAVE}, 0\ns_cselect_b32 s41, 0, {SPF-SPS}\ns_add_u32 s40, s40, s41\ns_add_u32 s40, s40, {SPS}\nv_lshl_add_u32 v{XR+3}, v0, 4, s40")
        A(f"s_lshl_b32 s40, s{sXC}, 5\ns_add_u32 s40, s40, s{sJ}\ns_lshr_b32 s41, s40, 6\ns_mul_i32 s41, s41, {64*SPSTR}\ns_and_b32 s40, s40, 63\ns_lshl_b32 s40, s40, 4")
        A(f"s_add_u32 s40, s40, s41\ns_add_u32 s40, s40, {SPS}\nv_mul_u32_u24 v{XR+4}, {SPSTR}, v0\nv_add_u32 v{XR+4}, s40, v{XR+4}\nv_add_u32 v{XR+5}, {SPF-SPS}, v{XR+4}")
    if flag2:
        A(f"s_and_b32 s40, s{sJ}, 3\ns_lshl_b32 s40, s40, 6\ns_add_u32 s40, s40, s47\ns_lshl_b32 s40, s40, 7\ns_add_u32 s40, s40, {FLG}\nv_mov_b32 v{FIN+6}, s40")
        if fall: A(f"s_mov_b32 s40, {FLG}\nv_lshl_add_u32 v{FIN+7}, v0, 7, s40")
        else: A(f"s_lshr_b32 s40, s{sXC}, 1\ns_lshl_b32 s40, s40, 13\ns_add_u32 s40, s40, {FLG}\nv_lshl_add_u32 v{FIN+7}, v0, 7, s40")
        A(f"s_cmp_eq_u32 s{sWAVE}, 3\ns_cselect_b32 s62, 1, 0\ns_mov_b32 s63, 0")
    A(f"s_lshl_b32 s40, s{sWAVE}, 10\nv_lshl_add_u32 v{XR+6}, v0, 4, s40\nv_lshlrev_b32 v{XR+7}, 4, v0")
    if g2: A(f"s_lshl_b32 s40, s{sWAVE}, 9\ns_add_u32 s40, s40, {L_RED}\nv_lshl_add_u32 v{XR+7}, v0, 3, s40")
    elif merge: A(f"s_lshl_b32 s40, s{sWAVE}, 9\nv_lshrrev_b32 v7, 1, v0\nv_lshl_add_u32 v{XR+7}, v7, 4, s40\nv_and_b32 v7, 1, v0\nv_lshl_add_u32 v{XR+7}, v7, 12, v{XR+7}")
    if trig: waitflag("L_wfT", L_FT, 4, F, MA+6)
    else:
        waitflag("L_wfT", L_FT, 1, F, MA+6)
        A(f"s_mov_b32 s{sCNT}, 0\nL_sq:")
        for k in range(8): A(f"s_load_dword s{32+k}, s[58:59], {512*k} glc")
        A(f"s_add_u32 s{sCNT}, s{sCNT}, 1\ns_waitcnt lgkmcnt(0)")
        A(f"s_xor_b32 s40, s32, s{sT8}")
        for k in range(1, 8): A(f"s_xor_b32 s41, s{32+k}, s{sT8}\ns_or_b32 s40, s40, s41")
        A(f"s_and_b32 s40, s40, 0xff\ns_cbranch_scc0 L_sq_x\ns_cmp_lt_u32 s{sCNT}, 64\ns_cbranch_scc1 L_sq\nL_sq_x:")
        if diag: A(f"s_mov_b32 s99, s{sCNT}")
    stamp("FT")
    if smtest:
        A(f"s_lshl_b32 s41, s2, 9\ns_add_u32 s41, s41, {QP}\ns_add_u32 s42, s{sWS}, s41\ns_addc_u32 s43, s{sWS+1}, 0")
        A("s_waitcnt lgkmcnt(0)\ns_memtime s[58:59]\ns_waitcnt lgkmcnt(0)\ns_load_dword s41, s[42:43], 0 glc\ns_waitcnt lgkmcnt(0)\ns_memtime s[100:101]\ns_waitcnt lgkmcnt(0)\ns_sub_u32 s99, s100, s58")
        A("s_memtime s[58:59]\ns_waitcnt lgkmcnt(0)\ns_load_dword s41, s[42:43], 0 glc\ns_waitcnt lgkmcnt(0)\ns_memtime s[100:101]\ns_waitcnt lgkmcnt(0)\ns_sub_u32 s41, s100, s58\ns_lshl_b32 s41, s41, 16\ns_or_b32 s99, s99, s41")
    QLD = [(QG + 4*k, 4, MA, 1024*k) for k in range(2 if hack == 9 or tr else 4)]
    HLD = [(XS, 4, MA+9, 0), (XS+4, 4, MA+10, 0)][:1 if tr else 2]
    A(f"global_load_dword v{MA+11}, v{MA+2}, s[{sWS}:{sWS+1}] sc1")
    if not noq: issue(QLD, sWS, qld)
    def hissue(lab):
        A(f"s_cmp_eq_u32 s45, 0\ns_cbranch_scc1 {lab}")
        if not noh: issue(HLD, sWS, qld)
        A(f"global_load_dwordx2 {v(B1R,2)}, v{MA+8}, s[{sB1}:{sB1+1}]")
        if hack == 2:
            for i in range(4): A(f"global_load_dwordx4 {v(XF+4*i,4)}, v{FIN+5}, s[{sW2}:{sW2+1}] offset:{1024*i} {nt}")
    if hlate: A("s_waitcnt vmcnt(0)")
    else:
        hissue("L_Cnoh")
        A("s_waitcnt vmcnt(3)\ns_branch L_Cnoh1\nL_Cnoh:\ns_waitcnt vmcnt(0)\nL_Cnoh1:")
    A(f"v_cmp_ne_u32 vcc, s{sID}, v{MA+11}\ns_mov_b32 s53, 1\ns_cbranch_vccz L_Cnob\ns_mov_b32 s53, 3")
    A(f"s_cmp_eq_u32 s{sWAVE}, 0\ns_cselect_b32 s40, 1, s45\ns_cmp_eq_u32 s40, 0\ns_cbranch_scc1 L_Cnob")
    if tr: A("s_mov_b32 exec_lo, 0x00ff00ff\ns_mov_b32 exec_hi, 0x00ff00ff")
    store(B1R+2, ACC, 4, sWSB, "sc1")
    if tr: A("s_mov_b64 exec, -1")
    A("L_Cnob:")
    if not noq: poll("L_pollQ", QLD, 7, QLD, first=63, narrow=True)
    stamp("qgath")
    if tr:
        for i in range(4): A(f"v_add_f32 v{QG+i}, v{QG+i}, v{QG+4+i}")
    else:
        for i in range(4): A(f"v_add_f32 v{QG+i}, v{QG+i}, v{QG+4+i}\nv_add_f32 v{QG+8+i}, v{QG+8+i}, v{QG+12+i}")
        for i in range(4): A(f"v_add_f32 v{QG+i}, v{QG+i}, v{QG+8+i}")
    for i in range(2): A(f"v_permlane32_swap_b32 v{QG+i}, v{QG+2+i}")
    for i in range(2): A(f"v_add_f32 v{QG+i}, v{QG+i}, v{QG+2+i}")
    A(f"v_cvt_pk_bf16_f32 v5, v{QG}, v{QG+1}\nds_write_b32 v{MA+1}, v5 offset:{L_Q}\nv_mov_b32 v6, s53")
    A(f"s_waitcnt lgkmcnt(0)\nds_write_b32 v{MA+7}, v6 offset:{L_FQ}")
    for i in range(4): A(f"v_mov_b32 v{ACC+i}, 0")
    if hlate: hissue("L_Cnoh"); A("L_Cnoh:")
    if pretouch and ptpos == 2: issue([(208, 1, XR+2, 0), (208, 1, XR+2, 256), (208, 1, XR, 0), (208, 1, XR, 1024)], sWS, ptfl)
    if pretouch and ptpos == 3:
        A(f"s_and_b32 s40, s{sJ}, 3\ns_lshl_b32 s40, s40, 9\nv_lshlrev_b32 v5, 4, v0\nv_sub_u32 v5, v{XR}, v5\nv_lshl_add_u32 v5, v0, 7, v5\nv_add_u32 v5, s40, v5")
        A(f"s_mov_b64 exec, 15\nglobal_load_dword v208, v5, s[{sWS}:{sWS+1}] {ptfl}")
        A(f"v_lshlrev_b32 v5, 4, v1\nv_sub_u32 v5, v{XR+2}, v5\nv_lshl_add_u32 v5, v0, 7, v5\nglobal_load_dword v208, v5, s[{sWS}:{sWS+1}] {ptfl}\ns_mov_b64 exec, -1")
    waitflag("L_wfK", L_FK, 1, F, MA+7)
    stamp("FK")
    for T in range(4):
        for u in range(4): A(f"ds_read_b128 {v(KF+16*T+4*u,4)}, v{KA+u} offset:{4096*T}")
    waitflag("L_wfq", L_FQ, 4, F, MA+6)
    for u in range(4): A(f"ds_read_b128 {v(QF+4*u,4)}, v{MA+3} offset:{L_Q+64*u}")
    for u in range(4):
        A(f"s_waitcnt lgkmcnt({3-u})")
        for T in range(4):
            A(f"v_mfma_f32_16x16x32_bf16 {v(SC+4*T,4)}, {v(KF+16*T+4*u,4)}, {v(QF+4*u,4)}, {v(SC+4*T,4) if u else 0}")
    E = F
    for T in range(4):
        A(f"v_cndmask_b32 v{SC+4*T}, v{SC+4*T}, v{SC+4*T+1}, s[54:55]\nv_cndmask_b32 v{SC+4*T+2}, v{SC+4*T+2}, v{SC+4*T+3}, s[54:55]")
    for T in range(4): A(f"v_cndmask_b32 v{E+T}, v{SC+4*T}, v{SC+4*T+2}, s[56:57]")
    for i in range(4): bf16r(E+i, E+i)
    for i in range(4): A(f"v_mul_f32 v{E+i}, {SCALE}, v{E+i}")
    for i in range(4): bf16r(E+i, E+i)
    A(f"v_max3_f32 v8, v{E}, v{E+1}, v{E+2}\nv_max_f32 v8, v8, v{E+3}")
    allred([8], "v_max_f32", [0, 1, 4, 5], 9)
    A(f"ds_write_b32 v{MA+4}, v8 offset:{L_MX}")
    A(f"v_mul_f32 v9, {LOG2E ^ 0x80000000}, v8\ns_mov_b32 s40, {LOG2E}")
    for i in range(4): A(f"v_fma_f32 v{E+i}, v{E+i}, s40, v9")
    for i in range(4): A(f"v_exp_f32 v{E+i}, v{E+i}")
    for i in range(4): A(f"v_cvt_pk_bf16_f32 v{SC+i}, v{E+i}, v{E+i}")
    A(f"ds_write_b128 v{MA+5}, {v(SC,4)} offset:{L_P}")
    A(f"v_add_f32 v8, v{E}, v{E+1}\nv_add_f32 v9, v{E+2}, v{E+3}\nv_add_f32 v8, v8, v9")
    allred([8], "v_add_f32", [0, 1, 4, 5], 9)
    A(f"ds_write_b32 v{MA+4}, v8 offset:{L_LW}")
    A(f"s_waitcnt lgkmcnt(0)\nds_write_b32 v{MA+7}, v6 offset:{L_FP}")
    stamp("pready")
    A(f"v_lshlrev_b32 v{FIN}, 16, v{FIN}\nv_lshlrev_b32 v{FIN+1}, 16, v{FIN+1}")
    waitflag("L_wfV", L_FV, 4, F, MA+6)
    stamp("FV")
    OLD = [(G+8, 4, XR+2, 0), (G+12, 4, XR+2, 256), (G, 4, XR, 0), (G+4, 4, XR, 1024)]
    if spre:
        A(f"s_cmp_ge_u32 s{sWAVE}, 2\ns_cbranch_scc1 L_nospre\nglobal_load_dwordx4 {v(F,4)}, v{XR+3}, s[{sWS}:{sWS+1}] {spre.replace('plain', '')}\nL_nospre:")
    if pretouch and ptpos == 0: issue(OLD, sWS, ptfl)
    def ldwo():
        for i in range(0 if hack == 3 else 2 if hack == 5 else 4): A(f"global_load_dwordx4 {v(WOR+4*i,4)}, v{FIN+5}, s[{sWO}:{sWO+1}] offset:{1024*i} {nt}")
    if wofirst: ldwo()
    A("s_cmp_eq_u32 s45, 0\ns_cbranch_scc1 L_Cnow2")
    if hack != 2:
        for i in range(4): A(f"global_load_dwordx4 {v(W2R+4*i,4)}, v{FIN+5}, s[{sW2}:{sW2+1}] offset:{1024*i} {nt}")
    A("L_Cnow2:")
    if not wofirst: ldwo()
    if pretouch and ptpos == 1: issue(OLD, sWS, ptfl)
    A("s_cmp_eq_u32 s45, 0\ns_cbranch_scc1 L_Cnoh2")
    if not noh: poll("L_pollH", HLD, 7, HLD, first=(4 if hack in (2, 3) else 6 if hack == 5 else 8) + 4*bool(pretouch and ptpos < 2), narrow=True)
    if not tr:
        for i in range(4): A(f"v_add_f32 v{XS+i}, v{XS+i}, v{XS+4+i}")
    allred([XS, XS+1, XS+2, XS+3], "v_add_f32", [0, 1, 2], 7)
    for i in range(4): bf16r(XS+i, XS+i)
    unpack(XS+4, B1R, 2)
    for i in range(4): A(f"v_add_f32 v{XS+i}, v{XS+i}, v{XS+4+i}")
    for i in range(4): bf16r(XS+i, XS+i)
    for i in range(4): A(f"v_max_f32 v{XS+i}, 0, v{XS+i}")
    for i in range(4): A(f"v_mul_f32 v{XS+i}, v{XS+i}, v{XS+i}")
    for i in range(4): delta(XF + 4*i, XS + i, MASK, 4, 5)

    A("L_Cnoh2:")
    A("s_waitcnt lgkmcnt(0)\ns_barrier")
    stamp("barC")
    def raise2():
        A(f"s_cmp_eq_u32 s62, 0\ns_cbranch_scc1 L_nf2\ns_mov_b64 exec, 1\nglobal_store_dword v{FIN+6}, v{vTG}, s[{sWS}:{sWS+1}] sc1\ns_mov_b64 exec, -1\nL_nf2:")
    if flag2 == 3: raise2()
    A("s_cmp_eq_u32 s45, 0\ns_cbranch_scc1 L_Cnoffn2")
    A(f"s_waitcnt vmcnt({(0 if wofirst or hack == 3 else 2 if hack == 5 else 4) + 4*(ptpos == 1)})")
    for i in range(4): A(f"v_mfma_f32_16x16x32_bf16 {v(ACC,4)}, {v(XF+4*i,4)}, {v(W2R+4*i,4)}, {v(ACC,4)}")
    A("L_Cnoffn2:")
    if owait is not None: A(f"s_waitcnt vmcnt({0 if ptpos == 1 else owait + (flag2 == 3)})")
    if flag2 == 2: raise2()
    stamp("wohere")
    if pipeO: pollpipe("L_pollO", [(XR, 0), (XR, 1024), (XR+2, 0), (XR+2, 256)], [XO + 16*r for r in range(pipeO)], G, 7, stagO)
    else:
        issue(OLD[2:] if hack == 6 else OLD, sWS)
        A(f"ds_write_b128 v{XR+6}, {v(ACC,4)} offset:{L_RED+4096}")
        poll("L_pollO", OLD[2:] if hack == 6 else OLD, 7, [(G+8, 4, XR+2, 0), (G+12, 4, XR+2, 256), (G, 4, FIN+3, 0), (G+4, 4, FIN+4, 0)], strip=not opt, first=0)
    if flag2 == 1: raise2()
    stamp("gathO")
    if pipeO: A(f"ds_write_b128 v{XR+6}, {v(ACC,4)} offset:{L_RED+4096}")
    m0, l0, m1, l1 = G+8, G+9, G+12, G+13
    if opt:
        X = (lambda r: "") if pipeO else (lambda r: f"v_xor_b32 v{r}, s{sT}, v{r}")
        D = lambda op, r, b: f"{op}_dpp v{r}, v{r}, v{r} {DPP[b]} row_mask:0xf bank_mask:0xf"
        if hack == 6: A("\n".join(X(G+i) for i in range(8)))
        else: A("\n".join([X(m0), X(m1), f"v_max_f32 v5, v{m0}, v{m1}", X(G), X(G+1), D("v_max_f32", 5, 0), X(G+2), X(G+3), D("v_max_f32", 5, 1),
                     X(G+4), X(G+5), D("v_max_f32", 5, 2), X(G+6), f"v_sub_f32 v{m0}, v{m0}, v5", f"v_sub_f32 v{m1}, v{m1}, v5",
                     f"v_mul_f32 v6, {LOG2E}, v{m0}", f"v_mul_f32 v8, {LOG2E}, v{m1}", "v_exp_f32 v6, v6", "v_exp_f32 v8, v8", X(G+7), X(l0), X(l1)]))
        if hack != 6: A(f"v_mul_f32 v{l0}, v{l0}, v6")
        for i in (0, 2): A(f"v_pk_mul_f32 {v(G+i,2)}, {v(G+i,2)}, v[6:7] op_sel_hi:[1,0]")
        if hack != 6: A(f"v_fmac_f32 v{l0}, v{l1}, v8")
        for i in (0, 2): A(f"v_pk_fma_f32 {v(G+i,2)}, {v(G+4+i,2)}, v[8:9], {v(G+i,2)} op_sel_hi:[1,0,1]")
        for b in (0, 1, 2):
            if hack != 6: A(D("v_add_f32", l0, b))
            if b == 2:
                A(D("v_add_f32", G, b))
                if hack != 6: A(f"v_rcp_f32 v6, v{l0}")
            for r in range(G + (b == 2), G + 4): A(D("v_add_f32", r, b))
        for i in (0, 2):
            if hack != 6: A(f"v_pk_mul_f32 {v(G+i,2)}, {v(G+i,2)}, v[6:7] op_sel_hi:[1,0]")
        M = lambda i: A(f"v_mfma_f32_16x16x32_bf16 {v(F,4)}, {v(XO+4*i,4)}, {v(WOR+4*i,4)}, {v(F,4) if i else 0}")
        if pipeO: XO = XO + 32
        delta(XO, G, MASK, 4, 5); delta(XO+4, G+1, MASK, 4, 8)
        M(0); delta(XO+8, G+2, MASK, 4, 5); M(1); delta(XO+12, G+3, MASK, 4, 8); M(2); M(3)
    else:
        A(f"v_max_f32 v5, v{m0}, v{m1}")
        allred([5], "v_max_f32", [0, 1, 2], 7)
        A(f"v_sub_f32 v{m0}, v{m0}, v5\nv_sub_f32 v{m1}, v{m1}, v5\nv_mul_f32 v{m0}, {LOG2E}, v{m0}\nv_mul_f32 v{m1}, {LOG2E}, v{m1}")
        A(f"v_exp_f32 v{m0}, v{m0}\nv_exp_f32 v{m1}, v{m1}")
        A(f"v_mul_f32 v{l0}, v{l0}, v{m0}")
        for i in range(4): A(f"v_mul_f32 v{G+i}, v{G+i}, v{m0}")
        A(f"v_fmac_f32 v{l0}, v{l1}, v{m1}")
        for i in range(4): A(f"v_fmac_f32 v{G+i}, v{G+4+i}, v{m1}")
        allred([l0, G, G+1, G+2, G+3], "v_add_f32", [0, 1, 2], 7)
        A(f"v_rcp_f32 v{l0}, v{l0}")
        for i in range(4): A(f"v_mul_f32 v{G+i}, v{G+i}, v{l0}")
        for i in range(4): delta(XO + 4*i, G + i, MASK, 4, 5 + (i & 1))
        for i in range(4): A(f"v_mfma_f32_16x16x32_bf16 {v(F,4)}, {v(XO+4*i,4)}, {v(WOR+4*i,4)}, {v(F,4) if i else 0}")
    if hack == 8:
        A(f"s_cmp_ge_u32 s{sWAVE}, 2\ns_cbranch_scc1 L_Cdone\ns_nop 5")
        for i in range(4): A(f"v_mov_b32 v{G+i}, v{F+i}")
        A("s_branch L_h8")
    A(f"ds_write_b128 v{XR+6}, {v(F,4)} offset:{L_RED}")
    if g2 and not diag and not lite: A(f"s_cmp_ge_u32 s{sWAVE}, 2\ns_cbranch_scc1 L_Cbar")
    A("s_waitcnt lgkmcnt(0)\ns_barrier")
    if g2 and not diag and not lite: pass
    elif ackwait: A(f"s_cmp_ge_u32 s{sWAVE}, 2\ns_cbranch_scc1 L_Cdone")
    else: A(f"s_cmp_eq_u32 s{sWAVE}, 2\ns_cbranch_scc1 L_Cfin\ns_cmp_eq_u32 s{sWAVE}, 3\ns_cbranch_scc1 L_Cdone")
    if not merge: A(f"s_cmp_eq_u32 s{sWAVE}, 1\ns_cbranch_scc1 {'L_Cdone' if hack in (1, 2) else 'L_Cpubf'}")
    if g2:
        A(f"ds_read2st64_b64 {v(G+4,4)}, v{XR+7} offset0:0 offset1:2\nds_read2st64_b64 {v(G+8,4)}, v{XR+7} offset0:4 offset1:6\nds_read2st64_b64 {v(G+12,4)}, v{XR+7} offset0:8 offset1:10")
        A(f"s_waitcnt lgkmcnt(2)\nv_pk_add_f32 {v(G,2)}, {v(G+4,2)}, {v(G+6,2)}\ns_waitcnt lgkmcnt(1)\nv_pk_add_f32 {v(G+8,2)}, {v(G+8,2)}, {v(G+10,2)}")
        A(f"v_pk_add_f32 {v(G,2)}, {v(G,2)}, {v(G+8,2)}\ns_waitcnt lgkmcnt(0)\nv_pk_add_f32 {v(G+2,2)}, {v(G+12,2)}, {v(G+14,2)}")
    elif opt:
        PA = lambda a, b: A(f"v_pk_add_f32 {v(a,2)}, {v(a,2)}, {v(b,2)}\nv_pk_add_f32 {v(a+2,2)}, {v(a+2,2)}, {v(b+2,2)}")
        for i in range(4): A(f"ds_read_b128 {v(G+4*i,4)}, v{XR+7} offset:{L_RED+1024*i}")
        A("s_waitcnt lgkmcnt(2)"); PA(G, G+4)
        A("s_waitcnt lgkmcnt(1)"); PA(G, G+8)
        if not merge:
            A("s_branch L_Cpub\nL_Cpubf:")
            A(f"ds_read_b128 {v(G,4)}, v{XR+7} offset:{L_RED+4096}\nds_read_b128 {v(G+12,4)}, v{XR+7} offset:{L_RED+4096+1024}")
        A("L_Cpub:\ns_waitcnt lgkmcnt(0)"); PA(G, G+12)
    else:
        for i in range(4): A(f"ds_read_b128 {v(G+4*i,4)}, v{XR+7} offset:{L_RED+1024*i}")
        A("s_waitcnt lgkmcnt(0)")
        for i in range(4): A(f"v_add_f32 v{G+i}, v{G+i}, v{G+8+i}\nv_add_f32 v{G+4+i}, v{G+4+i}, v{G+12+i}")
        A("s_branch L_Cpub")
        A("L_Cpubf:")
        for i in range(2): A(f"ds_read_b128 {v(G+4*i,4)}, v{XR+7} offset:{L_RED+4096+1024*i}")
        A("s_waitcnt lgkmcnt(0)")
        A("L_Cpub:")
        for i in range(4): A(f"v_add_f32 v{G+i}, v{G+i}, v{G+4+i}")
    if hack == 8: A("L_h8:")
    tag(G, 4, vTG)
    store(XR+3, G, 4, sWS, sst)
    stamp("pubS")
    if g2: A("s_waitcnt vmcnt(0)")
    elif ackwait: A(f"s_cmp_eq_u32 s{sWAVE}, 1\ns_cbranch_scc1 L_Cdone\ns_waitcnt vmcnt(0)")
    else: A("s_branch L_Cdone")
    A("L_Cfin:")
    if fsleep: A(f"s_sleep {fsleep}")
    if flag2:
        nf = 4 if fall else 1
        for k in range(1, nf): A(f"v_add_u32 v{F+8+k}, {8192*k}, v{FIN+7}")
        A(f"s_mov_b32 s{sCNT}, 0\nL_pf:")
        for k in range(nf): A(f"global_load_dword v{F+k}, v{F+8+k if k else FIN+7}, s[{sWS}:{sWS+1}] sc1")
        A(f"s_add_u32 s{sCNT}, s{sCNT}, 1\ns_waitcnt vmcnt(0)")
        if fall: A(f"v_bitop3_b32 v5, v{F}, v{F+1}, s{sT} bitop3:0x7e\nv_bitop3_b32 v5, v5, v{F+2}, s{sT} bitop3:0xf6\nv_bitop3_b32 v5, v5, v{F+3}, s{sT} bitop3:0xf6\nv_cmp_ne_u32 vcc, 0, v5")
        else: A(f"v_cmp_ne_u32 vcc, s{sT}, v{F}")
        A(f"s_and_b64 exec, exec, vcc\ns_cbranch_scc0 L_pf_x\ns_cmp_lt_u32 s{sCNT}, 4096\ns_cbranch_scc1 L_pf\nL_pf_x:\ns_mov_b64 exec, -1")
        if fdelay: A(f"s_sleep {fdelay}")
    if pipeS: pollpipe("L_pollS", [(XR+4, 0), (XR+5, 0)][:1 if g2 else 2], [160 + 8*r for r in range(pipeS)], G, 7, stagS)
    else: poll("L_pollS", [(G, 4, XR+4, 0), (G+4, 4, XR+5, 0)][:1 if hack in (1, 2) else 2], 7)
    stamp("gathS")
    if hack == 7: A("s_branch L_h7")
    D2 = lambda r, b: f"v_add_f32_dpp v{r}, v{r}, v{r} {DPP[b]} row_mask:0xf bank_mask:0xf"
    if g2:
        f_, s_ = G + 2, G
        for a in (f_, s_): A(f"v_permlane32_swap_b32 v{a}, v{a+1}")
        for a in (f_, s_): A(f"v_add_f32 v{a}, v{a}, v{a+1}")
        for a in (f_, s_): A(f"v_mov_b32 v{a+1}, v{a}")
        for a in (f_, s_): A(f"v_permlane16_swap_b32 v{a}, v{a+1}")
        for a in (f_, s_): A(f"v_add_f32 v{a}, v{a}, v{a+1}")
    else:
        f_, s_ = G + 4, G
        for a in (f_, f_+1, s_, s_+1): A(f"v_permlane32_swap_b32 v{a}, v{a+2}")
        for a in (f_, s_): A(f"v_pk_add_f32 {v(a,2)}, {v(a,2)}, {v(a+2,2)}")
        for a in (f_, s_): A(f"v_permlane16_swap_b32 v{a}, v{a+1}")
        for a in (f_, s_): A(f"v_add_f32 v{a}, v{a}, v{a+1}")
    for b in range(4): A(D2(f_, b) + ("\n" + D2(s_, b) if b < 3 else ""))
    bf16r(6, f_)
    A(f"v_add_f32 v6, v6, v{FIN+1}"); bf16r(6, 6)
    A(f"v_mul_f32 v7, {LOG2E ^ 0x80000000}, v6\nv_exp_f32 v7, v7\n{D2(s_, 3)}\nv_add_f32 v7, 1.0, v7\nv_rcp_f32 v7, v7")
    bf16r(5, s_)
    A("v_mul_f32 v6, v6, v7"); bf16r(6, 6)
    A("v_mul_f32 v5, v5, v6"); bf16r(5, 5)
    A(f"v_add_f32 v5, v5, v{FIN}\nv_cvt_pk_bf16_f32 v5, v5, v5")
    if hack == 7: A("L_h7:")
    if hops: A("s_branch L_hop0\nL_hopback:")
    if echo:
        r = 64 + 2*CNAMES.index(lx)
        A(f"s_cmp_eq_u32 s2, 0\ns_cbranch_scc0 L_noecho\ns_memrealtime s[58:59]\ns_waitcnt lgkmcnt(0)\ns_sub_u32 s40, s{r}, s64")
        if eskew:
            A(f"s_load_dwordx8 s[32:39], s[{sWS}:{sWS+1}], 0x2000 glc\ns_waitcnt lgkmcnt(0)")
            if eskew == 1:
                A("s_mov_b32 s40, s32\ns_mov_b32 s41, s32")
                for k in range(1, 8): A(f"s_max_u32 s40, s40, s{32+k}\ns_min_u32 s41, s41, s{32+k}")
                A("s_sub_u32 s40, s40, s41")
            elif eskew == 2:
                A("s_add_u32 s40, s36, s37\ns_add_u32 s40, s40, s38\ns_add_u32 s40, s40, s39\ns_sub_u32 s40, s40, s32\ns_sub_u32 s40, s40, s33\ns_sub_u32 s40, s40, s34\ns_sub_u32 s40, s40, s35\ns_add_u32 s40, s40, 600\ns_lshr_b32 s40, s40, 2")
            else:
                A("s_mov_b32 s41, s32")
                for k in range(1, 8): A(f"s_min_u32 s41, s41, s{32+k}")
                A(f"s_sub_u32 s40, s{32+eskew-10}, s41")
        A(f"s_mul_i32 s40, s40, {echo}\ns_min_u32 s40, s40, 20000")
        A("L_echo:\ns_memrealtime s[60:61]\ns_waitcnt lgkmcnt(0)\ns_sub_u32 s41, s60, s58\ns_cmp_lt_u32 s41, s40\ns_cbranch_scc1 L_echo\nL_noecho:")
    if chain:
        A("s_cmp_eq_u32 s2, 0\ns_cbranch_scc0 L_nochain\nv_mov_b32 v6, 0")
        for k in range(chain):
            A(f"global_load_dword v7, v6, s[{sK if k % 2 else sV}:{(sK if k % 2 else sV)+1}] nt\ns_waitcnt vmcnt(0)\nv_add_u32 v6, {(k % 2) << 23}, v6")
        A("L_nochain:")
    A("s_mov_b32 exec_lo, 1\ns_mov_b32 exec_hi, 1" if g2 else "s_mov_b32 exec_lo, 0x00010001\ns_mov_b32 exec_hi, 0x00010001")
    A(f"global_store_short v{FIN+2}, v5, s[{sOUT}:{sOUT+1}] {outfl}")
    A(f"s_or_b32 s40, s2, s{sWAVE}\ns_cbranch_scc1 L_Cdone")
    A(f"s_mov_b64 exec, 1\nv_mov_b32 v5, 0\nglobal_store_dword v5, v{vTG}, s[{sWS}:{sWS+1}]")
    A("L_Cdone:")
    stamp("end")
    dump()
    A("s_endpgm")
    if g2 and not diag and not lite: A("L_Cbar:\ns_waitcnt lgkmcnt(0)\ns_barrier\ns_endpgm")

    cpart = A.L; A.L = []
    role[0] = "S"
    KO, PM = 4, 12
    VV, KF, XP, A1, A2 = 32, 96, 112, 144, 148
    EA = 152
    sW = 33
    if jk: A(f"s_xor_b32 s{sJ}, s{sJ}, {jk}")
    A(f"s_lshr_b32 s34, s2, 7\ns_lshl_b32 s34, s34, 3\ns_add_u32 s34, s34, s{sXC}\ns_lshl_b32 s34, s34, 23\ns_and_b32 s35, s{sJ}, 15")
    if pat >= 3:
        R = {3: "s_and_b32 s46, s2, 3", 4: f"s_and_b32 s46, s{sJ}, 3", 5: f"s_lshr_b32 s46, s{sJ}, 2\ns_add_u32 s46, s46, s2\ns_and_b32 s46, s46, 3",
             6: f"s_bfe_u32 s46, s{sJ}, 0x20002", 7: f"s_and_b32 s46, s{sWAVE}, 3", 8: f"s_add_u32 s46, s2, s{sJ}\ns_and_b32 s46, s46, 3",
             9: "s_bfe_u32 s46, s2, 0x20001", 10: f"s_lshr_b32 s46, s2, 6\ns_and_b32 s46, s46, 2\ns_xor_b32 s46, s46, s2\ns_and_b32 s46, s46, 3",
             11: f"s_add_u32 s46, s2, s{sWAVE}\ns_and_b32 s46, s46, 3",
             12: f"s_add_u32 s46, s2, s{sJ}\ns_add_u32 s46, s46, s{sWAVE}\ns_and_b32 s46, s46, 3",
             13: f"s_lshr_b32 s46, s{sJ}, 2\ns_add_u32 s46, s46, s{sJ}\ns_add_u32 s46, s46, s2\ns_and_b32 s46, s46, 3",
             14: f"s_lshr_b32 s46, s2, 2\ns_add_u32 s46, s46, s2\ns_and_b32 s46, s46, 3",
             15: f"s_lshr_b32 s46, s{sJ}, 4\ns_add_u32 s46, s46, s{sJ}\ns_add_u32 s46, s46, s2\ns_and_b32 s46, s46, 3"}[pat]
        A(R + "\ns_lshl_b32 s36, s46, 18\ns_add_u32 s34, s34, s36")
    if pat != 1:
        A(f"s_lshl_b32 s35, s35, 2\ns_add_u32 s35, s35, s{sWAVE}\ns_lshl_b32 s35, s35, 12\ns_add_u32 s34, s34, s35\ns_add_u32 s34, s34, {28672*256 - 4*4096}")
    else:
        A(f"s_lshl_b32 s36, s{sWAVE}, 4\ns_add_u32 s35, s35, s36\ns_lshl_b32 s35, s35, 12\ns_add_u32 s34, s34, s35\ns_add_u32 s34, s34, {28672*256 - 64*4096}")
    A(f"v_lshlrev_b32 v14, 2, v2\nv_xor_b32 v14, v14, v1\nv_lshlrev_b32 v14, 4, v14\nv_lshl_add_u32 v{KO}, v2, 8, v14")
    for i in range(1, 4): A(f"v_xor_b32 v{KO+i}, {16*i}, v{KO}")
    A(f"s_lshl_b32 s36, s{sWAVE}, 14\ns_sub_u32 s36, s36, {4*16384 - L_K}")
    if not coop: A("s_waitcnt lgkmcnt(0)")
    pr(1)
    addbase(sK, "s34")
    def setup2():
        karg2()
        addbase(sV, "s34")
        A(f"s_sub_u32 s{sW}, s{sWAVE}, 4\nv_lshlrev_b32 v3, 4, v0\ns_lshl_b32 s37, s{sW}, 2\nv_mov_b32 v14, s37\nv_mov_b32 v15, 1")
        if boost: A(f"s_xor_b32 s38, s{sJ}, {jq ^ 1}\ns_and_b32 s38, s38, 3\ns_cselect_b64 vcc, 0, -1")
        pr(0)
        A("s_barrier")
    if not head: setup2()
    stamp("first")
    later = Asm()
    B = later
    B(f"v_and_b32 v26, 3, v0\nv_lshlrev_b32 v26, 4, v26\nv_mov_b32 v{PM}, 0xffff\nv_mov_b32 v{PM+1}, 0\nv_lshlrev_b64 v[{PM}:{PM+1}], v26, v[{PM}:{PM+1}]")
    B(f"s_lshl_b32 s38, s{sW}, 10\nv_lshl_add_u32 v{EA+1}, v0, 4, s38")
    B(f"s_lshl_b32 s38, s{sW}, 11\nv_lshl_add_u32 v{EA+2}, v0, 4, s38")
    B(f"v_and_b32 v24, 1, v0\nv_lshlrev_b32 v24, 10, v24\nv_bfe_u32 v25, v0, 1, 4\nv_lshl_add_u32 v24, v25, 4, v24\ns_lshl_b32 s38, s{sW}, 8\nv_add_u32 v{EA+3}, s38, v24")
    B(f"s_lshl_b32 s38, s{sXC}, 2\ns_add_u32 s38, s38, s{sW}\ns_lshr_b32 s39, s{sJ}, 4\ns_and_b32 s40, s{sJ}, 7\ns_bfe_u32 s41, s{sJ}, 0x10003")
    B(f"s_lshl_b32 s39, s39, 7\ns_lshl_b32 s40, s40, 4\ns_add_u32 s39, s39, s40")
    B(f"s_lshl_b32 s40, s38, 14\ns_lshl_b32 s42, s41, 10\ns_add_u32 s40, s40, s42\ns_add_u32 s40, s40, s39\ns_add_u32 s40, s40, {OP}")
    B(f"v_bfe_u32 v24, v0, 2, 3\nv_lshlrev_b32 v24, 11, v24\nv_and_b32 v25, 3, v0\nv_lshl_add_u32 v24, v25, 8, v24\nv_add_u32 v{EA+4}, s40, v24")
    B(f"s_lshl_b32 s38, s38, 9\ns_lshl_b32 s41, s41, 8\ns_add_u32 s38, s38, s41\ns_add_u32 s38, s38, s39\ns_add_u32 s38, s38, {ML}\nv_mov_b32 v25, s38")
    B(f"s_mov_b32 s42, -1\ns_mov_b32 s43, 0\ns_lshl_b32 s38, s{sXC}, 5\ns_add_u32 s38, s38, s{sJ}\nv_cndmask_b32 v{EA+4}, v25, v{EA+4}, s[42:43]")
    B(f"s_lshl_b32 s38, s38, 2\ns_add_u32 s38, s38, s{sW}\ns_lshl_b32 s38, s38, 9\ns_add_u32 s38, s38, {OP}\nv_lshl_add_u32 v{EA+9}, v0, 4, s38\nv_cndmask_b32 v{EA+9}, v25, v{EA+9}, s[42:43]")
    B(f"s_lshl_b32 s38, s{sW}, 4\nv_mov_b32 v{EA+6}, s38\nv_mov_b32 v{EA+8}, {TAGM}")
    chunks = [later.L[i::1] for i in (0,)][0]
    per = -(-len(chunks) // 8)
    def bump(r, T):
        if pat >= 3:
            A(f"s_xor_b32 s45, s46, {T+1}\ns_xor_b32 s44, s46, {T}\ns_sub_i32 s44, s45, s44\ns_lshl_b32 s44, s44, 18\ns_ashr_i32 s45, s44, 31")
            return A(f"s_add_u32 s{r}, s{r}, s44\ns_addc_u32 s{r+1}, s{r+1}, s45")
        if pat != 2: return addbase(r, 262144)
        A(f"s_and_b32 s44, s{sJ}, 3\ns_xor_b32 s45, s44, {T+1}\ns_xor_b32 s44, s44, {T}\ns_sub_u32 s44, s45, s44\ns_add_u32 s44, s44, 16\ns_lshl_b32 s44, s44, 14")
        addbase(r, "s44")
    cnt = [0]
    def after():
        cnt[0] += 1
        n = cnt[0]
        if n == head: setup2()
        if n == 13: A(f"s_waitcnt lgkmcnt(0)\ns_load_dword s{sT}, s[{sWS}:{sWS+1}], 0")
        if n == trig: A(f"ds_write_b32 v14, v15 offset:{L_FT}")
        if 4 <= n < 12:
            for line in chunks[(n-4)*per:(n-3)*per]: A(line)
        p = paceK if n <= 16 else (paceV if n - 16 <= paceVUntil else 0)
        if p and n + (2 if coop and n < p else 0) >= p and n < 32:
            if n <= boost: A(f"s_waitcnt vmcnt({p-1+bw})\ns_cbranch_vccnz L_b{n}\ns_waitcnt vmcnt({p-1})\nL_b{n}:")
            else: A(f"s_waitcnt vmcnt({p-1})")
        if coop and n == paceK - 1:
            assert n >= head
            A(f"ds_write_b32 v14, v15 offset:{L_FW+16}")
        if n == 16: stamp("Kiss")
    for T in range(4):
        A(f"s_mov_b32 m0, s36\ns_add_u32 s36, s36, 4096")
        for i in range(4):
            A(f"global_load_lds_dwordx4 v{KO+i}, s[{sK}:{sK+1}] offset:{1024*i} {nt}"); after()
        if T < 3: bump(sK, T)
    for n in range(16):
        A(f"global_load_dwordx4 {v(VV+4*n,4)}, v3, s[{sV}:{sV+1}] offset:{1024*(n&3)} {nt}"); after()
        if n == kpos: A(f"s_waitcnt vmcnt({n+1})\nds_write_b32 v14, v15 offset:{L_FK}")
        if n == fvpos and not woTrig: A(f"ds_write_b32 v14, v15 offset:{L_FV}")
        if n & 3 == 3 and n < 15: bump(sV, n >> 2)
    stamp("issued")
    get_tag()
    A(f"v_mov_b32 v{EA+7}, s{sT}\ns_mov_b32 s36, {LOG2E}")
    waitflag("L_wfP", L_FP, 1, 4, 14)
    A(f"s_mov_b32 s40, s52\nds_read_b128 v[4:7], v{EA+1} offset:{L_P}\ns_waitcnt lgkmcnt(0)")
    for T in range(4):
        for i in range(4):
            for j in range(2):
                A(f"v_and_b32_dpp v{XP+2*(4*T+i)+j}, v{4+T}, v{PM+j} quad_perm:[{i},{i},{i},{i}] row_mask:0xf bank_mask:0xf")
    stamp("pready")
    for n in range(16):
        if opt and n == wpos:
            A("v_mov_b32 v8, 0")
            waitflag("L_wfP4", L_FP, 4, 4, 8)
            A(f"ds_read_b128 v[16:19], v{EA+6} offset:{L_MX}\nds_read_b128 v[20:23], v{EA+6} offset:{L_LW}\ns_waitcnt lgkmcnt(1)")
            A(f"v_max3_f32 v24, v16, v17, v18\nv_max_f32 v24, v24, v19\nv_mul_f32 v25, {LOG2E ^ 0x80000000}, v24")
            for i in range(4): A(f"v_fma_f32 v{16+i}, v{16+i}, s36, v25")
            for i in range(4): A(f"v_exp_f32 v{8+2*i}, v{16+i}")
            A("s_waitcnt lgkmcnt(0)\nv_mul_f32 v25, v20, v8\nv_fmac_f32 v25, v21, v10\nv_fmac_f32 v25, v22, v12\nv_fmac_f32 v25, v23, v14")
        A(f"s_waitcnt vmcnt({15-n})")
        if woTrig == n + 1: A(f"ds_write_b32 v14, v15 offset:{L_FV}")
        A(f"v_mfma_f32_16x16x16_bf16 {v(A1,4)}, {v(XP+2*n,2)}, {v(VV+4*n,2)}, {v(A1,4) if n else 0}")
        A(f"v_mfma_f32_16x16x16_bf16 {v(A2,4)}, {v(XP+2*n,2)}, {v(VV+4*n+2,2)}, {v(A2,4) if n else 0}")
    stamp("PVdone")
    if hack == 4:
        for i in range(2): A(f"v_cndmask_b32 v{A1+i}, v{24+i}, v{A1+i}, s[42:43]")
        tag(A1, 4, EA+7)
        A("s_mov_b32 exec_hi, 1"); store(EA+4, A1, 4, sWS); A("s_barrier\ns_endpgm")
    A(f"ds_write_b128 v{EA+2}, {v(A1,4)} offset:{L_O}\nds_write_b128 v{EA+2}, {v(A2,4)} offset:{L_O+1024}")
    A("s_waitcnt lgkmcnt(0)\ns_barrier")
    stamp("barC")
    if opt:
        for i in range(4): A(f"ds_read_b128 {v(KF+4*i,4)}, v{EA+3} offset:{L_O+2048*i}")
        A("s_waitcnt lgkmcnt(3)")
        for i in (0, 2): A(f"v_pk_mul_f32 {v(KF+i,2)}, {v(KF+i,2)}, v[8:9] op_sel_hi:[1,0]")
        for k in range(1, 4):
            A(f"s_waitcnt lgkmcnt({3-k})")
            for i in (0, 2): A(f"v_pk_fma_f32 {v(KF+i,2)}, {v(KF+4*k+i,2)}, {v(8+2*k,2)}, {v(KF+i,2)} op_sel_hi:[1,0,1]")
    else:
        A(f"ds_read_b128 v[16:19], v{EA+6} offset:{L_MX}\nds_read_b128 v[20:23], v{EA+6} offset:{L_LW}")
        for i in range(4): A(f"ds_read_b128 {v(KF+4*i,4)}, v{EA+3} offset:{L_O+2048*i}")
        A("s_waitcnt lgkmcnt(5)")
        A(f"v_max3_f32 v24, v16, v17, v18\nv_max_f32 v24, v24, v19\nv_mul_f32 v25, {LOG2E ^ 0x80000000}, v24")
        for i in range(4): A(f"v_fma_f32 v{16+i}, v{16+i}, s36, v25")
        for i in range(4): A(f"v_exp_f32 v{16+i}, v{16+i}")
        A("s_waitcnt lgkmcnt(3)")
        A("v_mul_f32 v25, v20, v16")
        for i in range(4): A(f"v_mul_f32 v{KF+i}, v{KF+i}, v16")
        A("v_fmac_f32 v25, v21, v17\nv_fmac_f32 v25, v22, v18\nv_fmac_f32 v25, v23, v19")
        for k in range(1, 4):
            A(f"s_waitcnt lgkmcnt({3-k})")
            for i in range(4): A(f"v_fmac_f32 v{KF+i}, v{KF+4*k+i}, v{16+k}")
    for i in range(2): A(f"v_cndmask_b32 v{KF+i}, v{24+i}, v{KF+i}, s[42:43]")
    tag(KF, 4, EA+7)
    A("s_mov_b32 exec_hi, 1")
    store(EA+4, KF, 4, sWS, ost)
    stamp("pub")
    A("s_cmp_eq_u32 s40, 1\ns_cbranch_scc1 L_Snob")
    store(EA+9, KF, 4, sWSB, "sc1")
    A("L_Snob:")
    dump()
    A("L_end:\ns_endpgm")
    A.L = entry + A.L + cpart
    if cpf: A(".fill 640, 4, 0xbf800000")
    for h in range(hops):
        A(f".p2align 10\nL_hop{h}:\ns_branch {'L_hop%d' % (h+1) if h + 1 < hops else 'L_hopback'}")

    head = (hdr or "") + DOC + f"; @launch grid=(256,1,1) block=(512,1,1) lds={LDS_BYTES + (16384 if coop else 0) + (8192 if tr else 0)}\n"
    head += f'.amdgcn_target "amdgcn-amd-amdhsa--gfx950"\n.text\n.globl {K}\n.p2align 8\n.type {K},@function\n'
    tail = f""".section .rodata,"a"
.p2align 6
.amdhsa_kernel {K}
  .amdhsa_next_free_vgpr 216
  .amdhsa_next_free_sgpr 102
  .amdhsa_accum_offset 216
  .amdhsa_group_segment_fixed_size 0
  .amdhsa_kernarg_size 104
  .amdhsa_user_sgpr_count 2
  .amdhsa_user_sgpr_kernarg_segment_ptr 1
  .amdhsa_system_sgpr_workgroup_id_x 1
  .amdhsa_float_denorm_mode_32 3
.end_amdhsa_kernel
"""
    return head + A.finish() + tail

def header():
    ref = open(f"cdna_kernels/{NAME}.s.ref").read().split("\n")
    return "\n".join(l for l in ref if l.startswith(";") and "@launch" not in l and not l.startswith("; Override") and not l.startswith("; grid=")) + "\n"

if __name__ == "__main__":
    out = sys.argv[1] if len(sys.argv) > 1 else f"cdna_kernels/{NAME}.s"
    open(out, "w").write(gen(hdr=header()))
```

```python
import sys, os
sys.path.insert(0, os.path.dirname(os.path.abspath(__file__)))
from asmlib import Asm
NAME = "recurrent_scan__sliding_block_cached__dense_activation_squared_relu__decode"

FLG = 0x300000
IDS = 0x1000
QP, HP, OP, ML, SPS, SPF, STAMP = 0x10000, 0x50000, 0x100000, 0x180000, 0x200000, 0x250000, 0x400000
SPSTR = 1152
DELTA = 0x800000
L_K, L_Q, L_MX, L_LW, L_O, L_RED = 18432, 0, 1280, 1344, 1536, 9728
L_QSTR = 272
L_FT, L_FV, L_FQ, L_FK, L_FP = 1408, 1424, 1440, 1456, 1472
L_FW = 1488
L_W = 83968
L_W1 = L_W + 16384
L_XN = L_O + 2048
L_P = L_RED
LDS_BYTES = 83968
TAGM = 0x3ff
LOG2E = 0x3fb8aa3b
SCALE = 0x3db504f3

CNAMES = ["start", "issued", "LNdone", "pub1", "FT", "qgath", "FK", "pready", "FV", "first", "barC", "wohere", "gathO", "pubS", "gathS", "end"]
SNAMES = ["start", "first", "Kiss", "issued", "pready", "PVdone", "barC", "pub"]
DOC = """; One launch, 256 workgroups of 8 waves, one per CU.  Hand-offs between workgroups go through d_ws: every 32-bit word
; carries a per-launch tag in its low bits (tag = word 0 of d_ws at entry + 1, stored back at the end), readers spin until
; plain stores (visible through the die's L2) and, unless all 32 members have reported the same die id, a second time
"""
def v(a, n=1): return f"v{a}" if n == 1 else f"v[{a}:{a+n-1}]"

def gen(diag=False, nt="nt", limit=200000, hdr=None, hops=0, trig=19, paceK=7, paceV=7, kpos=5, warmLN=False,
        wofirst=False, pretouch=True, fbmask=31, prioC=0, diagwo=True, woTrig=0, spin=1, pat=0, owait=2, ackwait=True, head=3, lite=False, paceVUntil=16, fvpos=15, dirty=0, fsleep=0, lx="first", cpf=244, sfirst=True, probe=False, smtest=False, qst="", qld="sc1", noq=False, noh=False, preQ=0, hlate=True, tlb=0, chain=0, echo=0, flag2=0, dfl="", ost="", hack=0, swap=False, opt=1, wpos=10, jx=0, jq=3, jk=0, wpat=0, boost=0, bw=1, pipeS=2, stagS=2, pipeO=0, stagO=1, spre="", sst="sc1", outfl="", ptpos=0, ptfl="sc1", fall=False, fdelay=0, merge=True, mstr=2304, coop=True, latetag=True, eskew=0, tr=True, g2=True, kfirst=True, dip=0, dipw=2, k2top=True, q2=True, idst=""):
    A = Asm()
    sX, sK, sV, sWQ, sWO, sW1, sB1, sW2, sB2, sOUT, sWS = 4, 6, 8, 10, 12, 16, 18, 20, 22, 24, 26
    sT, sWAVE, sXC, sJ = 28, 29, 30, 31
    sCNT, sWSB, sID, sT8 = 46, 48, 50, 51
    role = ["C"]
    def stamp(k):
        names = SNAMES if role[0] == "S" else CNAMES
        if diag or ((lite or echo) and role[0] == "C" and k in ("start", "end", lx)): A(f"s_memrealtime s[{64+2*names.index(k)}:{65+2*names.index(k)}]")
    def addbase(r, off):
        A(f"s_add_u32 s{r}, s{r}, {off}\ns_addc_u32 s{r+1}, s{r+1}, 0")
    DPP = {0: "quad_perm:[1,0,3,2]", 1: "quad_perm:[2,3,0,1]", 2: "row_half_mirror", 3: "row_mirror"}
    def allred(regs, op, bits, tmp):
        for b in bits:
            for r in regs:
                if b < 4:
                    A(f"{op}_dpp v{r}, v{r}, v{r} {DPP[b]} row_mask:0xf bank_mask:0xf")
                else:
                    A(f"v_mov_b32 v{tmp}, v{r}")
                    A(f"v_permlane{16 if b == 4 else 32}_swap_b32 v{r}, v{tmp}")
                    A(f"{op} v{r}, v{r}, v{tmp}")
    def bf16r(dst, src):
        A(f"v_cvt_pk_bf16_f32 v{dst}, 0, v{src}")
    def unpack(dst, src, n):
        for i in range(n):
            A(f"v_lshlrev_b32 v{dst+2*i}, 16, v{src+i}\nv_and_b32 v{dst+2*i+1}, 0xffff0000, v{src+i}")
    def delta(dst, val, masks, n, tmp):
        A(f"v_cvt_pk_bf16_f32 v{tmp}, v{val}, v{val}")
        for j in range(n): A(f"v_and_b32 v{dst+j}, v{tmp}, v{masks+j}")
    def tag(r, n, vT):
        for i in range(n): A(f"v_bfi_b32 v{r+i}, v{vT+1}, v{vT}, v{r+i}")
    def issue(loads, base, fl="sc1"):
        for (d, n, a, off) in loads:
            A(f"global_load_dword{'x%d' % n if n > 1 else ''} {v(d, n)}, v{a}, s[{base}:{base+1}] offset:{off} {fl}")
    def check(dws, tmp, spare):
        parts = []
        for k in range(0, len(dws), 4):
            a, b, c, d = dws[k:k+4]
            u, w = spare + k // 2, spare + k // 2 + 1
            A(f"v_bitop3_b32 v{u}, v{a}, v{b}, v{c} bitop3:0x7e\nv_bitop3_b32 v{w}, v{c}, v{d}, s{sT} bitop3:0x7e")
            parts += [u, w]
        while len(parts) > 2:
            if len(parts) == 3: A(f"v_or_b32 v{parts[0]}, v{parts[0]}, v{parts[1]}"); parts = [parts[0], parts[2]]
            else: A(f"v_or3_b32 v{parts[0]}, v{parts[0]}, v{parts[1]}, v{parts[2]}"); parts = [parts[0]] + parts[3:]
        A(f"v_bitop3_b32 v{tmp}, v{parts[0]}, v{parts[1]}, v15 bitop3:0xa8\nv_cmp_ne_u32 vcc, 0, v{tmp}")
    def poll(name, loads, tmp, loadsB=None, first=None, narrow=False, strip=True, spare=None):
        A(f"s_mov_b32 s{sCNT}, 0")
        if first == 0: A(f"s_branch {name}_c")
        elif first is not None: A(f"s_waitcnt vmcnt({first})\ns_branch {name}_f")
        A(f"{name}:")
        if diag and name[-1] in "OS": A("s_memtime s[58:59]")
        issue(loads, sWS)
        dws = [r for (d, n, a, off) in loads for r in range(d, d + n)]
        A(f"{name}_c:\ns_waitcnt vmcnt(0)")
        A(f"{name}_f:")
        if diag and name[-1] in "OS":
            r = 60 if name[-1] == "O" else 62
            A(f"s_memtime s[100:101]\ns_waitcnt lgkmcnt(0)\ns_sub_u32 s{r+1}, s100, s58\ns_cmp_eq_u32 s{sCNT}, 2\ns_cselect_b32 s{r}, s{r+1}, s{r}")
        if strip:
            for d in dws: A(f"v_xor_b32 v{d}, s{sT8 if narrow else sT}, v{d}")
            A(f"v_or3_b32 v{tmp}, v{dws[0]}, v{dws[1]}, v{dws[2]}")
            for k in range(3, len(dws) - 1, 2): A(f"v_or3_b32 v{tmp}, v{tmp}, v{dws[k]}, v{dws[k+1]}")
            if len(dws) % 2 == 0: A(f"v_or_b32 v{tmp}, v{tmp}, v{dws[-1]}")
            A(f"v_and_b32 v{tmp}, {0xff if narrow else TAGM}, v{tmp}\nv_cmp_ne_u32 vcc, 0, v{tmp}")
        else: check(dws, tmp, 32)
        A(f"s_and_b64 exec, exec, vcc\ns_cbranch_scc0 {name}_x")
        A(f"s_add_u32 s{sCNT}, s{sCNT}, 1\ns_cmp_gt_u32 s{sCNT}, {limit}\ns_cbranch_scc1 {name}_x")
        if spare is not None:
            A(f"s_cmp_eq_u32 s{sCNT}, 1\ns_cbranch_scc0 {name}_n\ns_waitcnt vmcnt(0)")
            for k, d in enumerate(dws): A(f"v_mov_b32 v{d}, v{spare+k}")
            A(f"s_branch {name}_f\n{name}_n:")
        if loadsB:
            A(f"s_cmp_eq_u32 s53, 1\ns_cbranch_scc1 {name}\ns_and_b32 s52, s{sCNT}, 1\ns_cbranch_scc0 {name}")
            issue(loadsB, sWSB)
            A(f"s_branch {name}_c")
        else:
            A(f"s_branch {name}")
        A(f"{name}_x:\ns_mov_b64 exec, -1")
        if diag: A(f"s_mov_b32 s{ {'H':96,'Q':96,'O':97,'S':98}[name[-1]] }, s{sCNT}")
    def pollpipe(name, addrs, sets, final, tmp, stag, loadsB=None):
        nl = len(addrs); R = len(sets)
        def iss(r): issue([(sets[r] + 4*k, 4, a, off) for k, (a, off) in enumerate(addrs)], sWS)
        A(f"s_mov_b32 s{sCNT}, 0\ns_mov_b64 s[54:55], -1")
        for r in range(R):
            iss(r)
            if r < R - 1 and stag: A(f"s_sleep {stag}")
        A(f"{name}:")
        for r in range(R):
            dws = list(range(sets[r], sets[r] + 4*nl))
            A(f"s_waitcnt vmcnt({nl*(R-1)})")
            check(dws, tmp, 32)
            A("s_andn2_b64 exec, exec, vcc")
            for k, d in enumerate(dws): A(f"v_xor_b32 v{final+k}, s{sT}, v{d}")
            A(f"s_and_b64 exec, s[54:55], vcc\ns_cbranch_scc0 {name}_x\ns_mov_b64 s[54:55], exec")
            iss(r)
        A(f"s_add_u32 s{sCNT}, s{sCNT}, 1\ns_cmp_lt_u32 s{sCNT}, {limit}\ns_cbranch_scc1 {name}")
        A(f"{name}_x:\ns_mov_b64 exec, -1")
        if diag: A(f"s_mov_b32 s{ {'O':97,'S':98}[name[-1]] }, s{sCNT}")
    def store(addr, data, n, base, fl=""):
        A(f"global_store_dwordx{n} v{addr}, {v(data,n)}, s[{base}:{base+1}] {fl}")
    def waitflag(name, off, n, t, addr):
        A(f"{name}:\nds_read_b{32*n} {v(t,n)}, v{addr} offset:{off}\ns_waitcnt lgkmcnt(0)")
        if n == 4: A(f"v_and_b32 v{t}, v{t}, v{t+1}\nv_and_b32 v{t+2}, v{t+2}, v{t+3}\nv_and_b32 v{t}, v{t}, v{t+2}")
        A(f"v_readfirstlane_b32 s52, v{t}\ns_cmp_lg_u32 s52, 0\ns_cbranch_scc1 {name}_x\ns_sleep {spin}\ns_branch {name}\n{name}_x:")
    def wsb():
        A(f"s_add_u32 s{sWSB}, s{sWS}, {DELTA}\ns_addc_u32 s{sWSB+1}, s{sWS+1}, 0")
    def get_tag(b=True):
        if b: wsb()
        A(f"s_waitcnt lgkmcnt(0)\ns_add_u32 s{sT}, s{sT}, 1\ns_and_b32 s{sT}, s{sT}, {TAGM}\ns_and_b32 s{sT8}, s{sT}, 0xff")
        A(f"s_getreg_b32 s{sID}, hwreg(HW_REG_XCC_ID)\ns_lshl_b32 s{sID}, s{sID}, 10\ns_or_b32 s{sID}, s{sID}, s{sT}")
    def pr(k):
        if probe: A(f"s_memrealtime s[{96+2*k}:{97+2*k}]")
    def dump():
        if probe:
            A(f"s_waitcnt lgkmcnt(0)\ns_lshl_b32 s40, s2, 3\ns_add_u32 s40, s40, s{sWAVE}\ns_lshl_b32 s40, s40, 4\ns_add_u32 s40, s40, {STAMP+0x10000}")
            A(f"s_mov_b64 exec, 1\nv_mov_b32 v5, s40\nv_mov_b32 v6, s64\nv_mov_b32 v7, s96\nv_mov_b32 v8, s98\nglobal_store_dwordx3 v5, v[6:8], s[{sWS}:{sWS+1}]")
        if lite and role[0] == "C":
            A(f"s_waitcnt lgkmcnt(0)\ns_lshl_b32 s40, s2, 2\ns_add_u32 s40, s40, s{sWAVE}\ns_lshl_b32 s40, s40, 4\ns_add_u32 s40, s40, {STAMP}")
            A(f"s_mov_b64 exec, 1\nv_mov_b32 v5, s40\nv_mov_b32 v6, s64\nv_mov_b32 v7, s94\nv_mov_b32 v8, s{64+2*CNAMES.index(lx)}\nglobal_store_dwordx3 v5, v[6:8], s[{sWS}:{sWS+1}]")
        if not diag: return
        A("s_waitcnt lgkmcnt(0)")
        A(f"s_lshl_b32 s40, s2, 3\ns_add_u32 s40, s40, s{sWAVE}\ns_lshl_b32 s40, s40, 7\ns_add_u32 s40, s40, {STAMP}")
        A("s_mov_b64 exec, 1\nv_mov_b32 v5, s40")
        for k in range(16):
            A(f"v_mov_b32 v6, s{64+2*k}\nglobal_store_dword v5, v6, s[{sWS}:{sWS+1}] offset:{4*k}")
        for k in range(4):
            A(f"v_mov_b32 v6, s{60+k}\nglobal_store_dword v5, v6, s[{sWS}:{sWS+1}] offset:{80+4*k}")
        A(f"s_getreg_b32 s40, hwreg(HW_REG_HW_ID)\nv_mov_b32 v6, s40\nglobal_store_dword v5, v6, s[{sWS}:{sWS+1}] offset:96")
        for k in range(4):
            A(f"v_mov_b32 v6, s{96+k}\nglobal_store_dword v5, v6, s[{sWS}:{sWS+1}] offset:{64+4*k}")

    K = NAME + "_kernel"
    A(f"{K}:")
    stamp("start")
    A("s_load_dwordx16 s[4:19], s[0:1], 0")
    if cpf:
        A(f"s_getpc_b64 s[40:41]\nv_mul_u32_u24 v5, 20, v0\nglobal_load_dword v211, v5, s[40:41] offset:{cpf}")
    def karg2(top=False):
        if top == k2top: A("s_load_dwordx4 s[20:23], s[0:1], 64\ns_load_dwordx2 s[24:25], s[0:1], 80\ns_load_dwordx2 s[26:27], s[0:1], 96")
    karg2(True)
    A("v_lshrrev_b32 v1, 6, v0\nv_and_b32 v0, 63, v0")
    A(f"s_lshr_b32 s{sJ}, s2, 3\ns_and_b32 s{sXC}, s2, 7")
    if jx: A(f"s_xor_b32 s{sJ}, s{sJ}, {jx}")
    A(f"v_readfirstlane_b32 s{sWAVE}, v1")
    A(f"s_cmp_ge_u32 s{sJ}, 32\ns_cbranch_scc1 L_end")
    if swap: A(f"s_xor_b32 s{sWAVE}, s{sWAVE}, 4")
    A("v_and_b32 v1, 15, v0\nv_lshrrev_b32 v2, 4, v0")
    if diag:
        for k in range(1, 18): A(f"s_mov_b64 s[{64+2*k}:{65+2*k}], 0")
        A("s_mov_b64 s[60:61], 0\ns_mov_b64 s[62:63], 0")
    if coop:
        if tr:
            A(f"s_and_b32 s40, s{sJ}, 7\ns_lshl_b32 s41, s{sXC}, 3\ns_add_u32 s40, s40, s41\ns_lshl_b32 s40, s40, 7")
            A(f"s_and_b32 s41, s{sJ}, 24\ns_add_u32 s41, s41, s{sWAVE}\ns_lshl_b32 s41, s41, 17\ns_add_u32 s40, s40, s41")
            A("v_and_b32 v4, 7, v0\nv_lshrrev_b32 v6, 3, v0\nv_and_b32 v7, 2, v6\nv_xor_b32 v7, v7, v4\nv_lshlrev_b32 v7, 4, v7")
            A("v_lshl_add_u32 v8, v6, 13, v7\nv_xor_b32 v9, 64, v8\nv_add_u32 v9, 64512, v9")
            A(f"s_lshl_b32 s41, s{sWAVE}, 11\ns_add_u32 m0, s41, {L_W}")
            A("v_and_b32 v3, 1, v6\nv_lshl_add_u32 v5, v2, 3, v4\nv_lshlrev_b32 v5, 5, v5\nv_lshl_add_u32 v5, v3, 10, v5")
        else:
            A(f"s_xor_b32 s40, s{sJ}, {jq}\ns_lshr_b32 s41, s40, 2\ns_and_b32 s40, s40, 3\ns_lshl_b32 s42, s{sXC}, 2\ns_add_u32 s40, s40, s42\ns_lshl_b32 s40, s40, 8")
            A(f"s_lshl_b32 s41, s41, 5\ns_add_u32 s41, s41, s{sWAVE}\ns_lshl_b32 s41, s41, 14\ns_add_u32 s40, s40, s41")
            A("v_lshlrev_b32 v8, 17, v2\nv_lshl_add_u32 v8, v1, 4, v8\nv_add_u32 v9, 7168, v8")
            A(f"s_lshl_b32 s41, s{sWAVE}, 11\ns_add_u32 m0, s41, {L_W}")
            A("v_bfe_u32 v3, v0, 3, 1\nv_and_b32 v4, 7, v0\nv_lshl_add_u32 v5, v2, 3, v4\nv_lshlrev_b32 v5, 5, v5\nv_lshl_add_u32 v5, v3, 10, v5")
        A(f"s_cmp_lt_u32 s{sWAVE}, 2\ns_waitcnt lgkmcnt(0)\ns_cbranch_scc0 L_nox")
        A(f"global_load_dwordx4 v[16:19], v5, s[{sX}:{sX+1}]\nglobal_load_dwordx4 v[20:23], v5, s[{sX}:{sX+1}] offset:16\nL_nox:")
        addbase(sWQ, "s40")
        if lite or echo: stamp("first")
        A(f"global_load_lds_dwordx4 v8, s[{sWQ}:{sWQ+1}] {nt}\nglobal_load_lds_dwordx4 v9, s[{sWQ}:{sWQ+1}] offset:1024 {nt}")
    A(f"s_cmp_lt_u32 s{sWAVE}, 4\ns_cbranch_scc1 L_C")
    entry = A.L; A.L = []
    A(".p2align 8\nL_C:")
    if not coop: A("v_bfe_u32 v3, v0, 3, 1\nv_and_b32 v4, 7, v0")
    A(f"s_cmp_ge_u32 s{sWAVE}, 2\ns_cbranch_scc1 L_Cnoffn")

    MASK = 10; vTG = 14
    XS, XR, F, XO, W, ACC = 16, 24, 32, 48, 112, 176
    B1R = 180
    XF = 184
    FIN = 200
    def masks():
        A("v_and_b32 v5, 3, v0\nv_lshlrev_b32 v5, 4, v5\nv_mov_b32 v6, 0xffff\nv_mov_b32 v7, 0\nv_lshlrev_b64 v[6:7], v5, v[6:7]")
        A("v_cmp_gt_u32 vcc, 4, v4")
        A(f"v_cndmask_b32 v{MASK}, 0, v6, vcc\nv_cndmask_b32 v{MASK+1}, 0, v7, vcc")
        A(f"v_cndmask_b32 v{MASK+2}, v6, 0, vcc\nv_cndmask_b32 v{MASK+3}, v7, 0, vcc")
    if tr:
        A(f"s_cmp_eq_u32 s{sWAVE}, 0\ns_cbranch_scc1 L_Cwdone\ns_cmp_eq_u32 s{sXC}, 7\ns_cbranch_scc1 L_Cnoffn")
        A(f"s_lshr_b32 s40, s{sJ}, 2\ns_mul_i32 s39, s40, {64*3584}\ns_and_b32 s41, s{sJ}, 3\ns_lshl_b32 s42, s{sXC}, 2\ns_add_u32 s41, s41, s42\ns_lshl_b32 s42, s41, 7\ns_add_u32 s39, s39, s42")
        A(f"v_mul_u32_u24 v8, 3584, v6\nv_xor_b32 v9, 64, v7\nv_add_u32 v9, v9, v8\nv_add_u32 v9, {8*3584-1024}, v9\nv_add_u32 v8, v8, v7")
        addbase(sW1, "s39")
        for t in range(0, 8, 2):
            A(f"s_mov_b32 m0, {L_W1 + 1024*t}")
            if t: addbase(sW1, 16*3584)
            A(f"global_load_lds_dwordx4 v8, s[{sW1}:{sW1+1}] {nt}\nglobal_load_lds_dwordx4 v9, s[{sW1}:{sW1+1}] offset:1024 {nt}")
        A("L_Cwdone:")
        karg2()
        if k2top: A(f"s_load_dword s{sT}, s[{sWS}:{sWS+1}], 0")
        pr(0)
        A("s_barrier")
        stamp("issued")
        A(f"v_mov_b32 v{XF}, v5")
        A(f"s_cmp_eq_u32 s{sWAVE}, 1\ns_cbranch_scc1 L_Cp1")
        A(f"s_lshr_b32 s40, s{sJ}, 3\ns_lshl_b32 s34, s40, 8\ns_mov_b32 s35, {L_W}")
        A(f"s_bfe_u32 s41, s{sJ}, 0x20001\ns_lshl_b32 s42, s{sXC}, 2\ns_add_u32 s41, s41, s42\ns_lshl_b32 s41, s41, 2\ns_add_u32 s41, s41, s40\ns_lshl_b32 s41, s41, 1")
        A(f"s_and_b32 s42, s{sJ}, 1\ns_add_u32 s41, s41, s42\ns_lshl_b32 s37, s41, 8\ns_add_u32 s37, s37, {QP}\ns_mov_b32 s38, {32*4*512}\ns_branch L_Cpa")
        A(f"L_Cp1:\ns_lshl_b32 s34, s40, 7\ns_mov_b32 s35, {L_W1}\ns_mul_i32 s37, s40, 7168\ns_lshl_b32 s41, s41, 8\ns_add_u32 s37, s37, s41\ns_add_u32 s37, s37, {HP}\ns_mov_b32 s38, {8*7168}")
        A("L_Cpa:")
        A("v_bfe_u32 v5, v0, 1, 2\nv_lshl_add_u32 v5, v5, 2, v2\nv_lshl_add_u32 v9, v5, 4, s37\nv_and_b32 v5, 1, v0\nv_mad_u32_u24 v9, v5, s38, v9")
        if preQ: A(f"global_load_dword v210, v9, s[{sWS}:{sWS+1}] sc1")
        A(f"v_lshl_add_u32 v6, v2, 3, v4\nv_lshlrev_b32 v6, 3, v6\nv_lshl_add_u32 v{XF+1}, v3, 10, v6\nv_add_u32 v{XF+1}, s34, v{XF+1}")
        A(f"s_lshl_b32 s40, s{sWAVE}, 9\nv_lshl_add_u32 v{XF+2}, v3, 8, v6\nv_add_u32 v{XF+2}, s40, v{XF+2}")
        A(f"v_lshlrev_b32 v{XF+3}, 8, v5\nv_lshl_add_u32 v{XF+3}, v2, 4, v{XF+3}\nv_add_u32 v{XF+3}, s40, v{XF+3}")
        A(f"v_bfe_u32 v5, v0, 2, 2\nv_and_b32 v6, 3, v0\nv_lshlrev_b32 v6, 3, v6\nv_lshl_add_u32 v6, v5, 7, v6\nv_lshl_add_u32 v6, v2, 10, v6")
        A(f"v_and_b32 v5, 2, v5\nv_lshl_add_u32 v6, v5, 4, v6\nv_and_b32 v5, 1, v2\nv_lshl_add_u32 v6, v5, 6, v6")
        for cg in range(4): A(f"v_xor_b32 v7, {32*cg}, v6\nv_add_u32 v{XF+4+cg}, s35, v7")
        A("v_and_b32 v5, 2, v0\nv_cmp_ne_u32 s[54:55], 0, v5\nv_and_b32 v5, 4, v0\nv_cmp_ne_u32 s[56:57], 0, v5")
        masks()
        A(f"s_cmp_eq_u32 s{sWAVE}, 1\ns_cbranch_scc1 L_Cw8\ns_waitcnt vmcnt({2+preQ})\nL_Cw8:\ns_waitcnt vmcnt({10+preQ})\nL_Cw:")
        A(f"ds_write_b128 v{XF}, {v(XS,4)} offset:{L_O}\nds_write_b128 v{XF}, {v(XS+4,4)} offset:{L_O+16}")
        A(f"ds_read_b64 {v(XR,2)}, v{XF+1} offset:{L_O}")
    else:
        if jq: A(f"s_xor_b32 s{sJ}, s{sJ}, {jq}")
        A(f"s_sub_u32 s33, 2, s{sWAVE}\ns_lshr_b32 s40, s{sJ}, s33\ns_lshl_b32 s41, s40, s33\ns_sub_u32 s41, s{sJ}, s41\ns_lshl_b32 s42, s{sXC}, s33\ns_add_u32 s41, s41, s42")
        if jq: A(f"s_xor_b32 s{sJ}, s{sJ}, {jq}")
        A(f"s_movk_i32 s32, 8192\ns_cmp_eq_u32 s{sWAVE}, 1\ns_cmovk_i32 s32, 3584")
        if wpat == 1:
            A("s_add_u32 s34, s33, 4\ns_lshl_b32 s39, s32, s34\ns_mul_i32 s39, s40, s39\ns_lshl_b32 s35, s32, 3\ns_lshl_b32 s42, s41, 8\ns_add_u32 s39, s39, s42")
            A("v_lshl_add_u32 v5, v2, 3, v4\nv_lshlrev_b32 v5, 5, v5\nv_lshl_add_u32 v5, v3, 10, v5")
            A("s_add_u32 s34, s33, 5\ns_lshl_b32 s34, s40, s34\nv_lshl_add_u32 v6, v2, 4, s34\nv_lshl_add_u32 v6, v3, 10, v6")
            A("s_sub_u32 s36, s33, 1\ns_lshl_b32 s36, s36, 6\nv_add_u32 v7, s36, v6")
        else:
            A("s_add_u32 s34, s33, 2\ns_lshl_b32 s35, s32, s34\ns_mul_i32 s39, s40, s35\ns_lshl_b32 s39, s39, 2\ns_lshl_b32 s42, s41, 8\ns_add_u32 s39, s39, s42")
            A("v_lshl_add_u32 v5, v2, 3, v4\nv_lshlrev_b32 v5, 5, v5\nv_lshl_add_u32 v5, v3, 10, v5")
            A("v_lshl_add_u32 v6, s40, 2, v2\ns_add_u32 s34, s33, 3\nv_lshlrev_b32 v6, s34, v6\nv_lshl_add_u32 v6, v3, 10, v6")
            A("s_sub_u32 s36, s33, 1\ns_lshl_b32 s36, s36, 4\nv_add_u32 v7, s36, v6")
        A("v_mul_lo_u32 v8, v2, s35\nv_lshl_add_u32 v8, v1, 4, v8")
        A(f"s_mul_i32 s44, s{sXC}, s{sWAVE}\ns_cmp_eq_u32 s44, 7\ns_cbranch_scc1 L_Cnoffn")
        if coop:
            A(f"v_mov_b32 v{XF}, v5\nv_mov_b32 v{XF+1}, v6\nv_mov_b32 v{XF+2}, v7")
            A(f"s_cmp_eq_u32 s{sWAVE}, 0\ns_cbranch_scc1 L_Cwdone")
            addbase(sW1, "s39")
            for t in range(8):
                A(f"global_load_dwordx4 {v(W+4*t,4)}, v8, s[{sW1}:{sW1+1}] {nt}")
                if t != 7: addbase(sW1, "s32")
        else:
            A(f"s_cmp_eq_u32 s{sWAVE}, 1\ns_waitcnt lgkmcnt(0)")
            if not ackwait or lite or echo: stamp("first")
            pr(1)
            A(f"global_load_dwordx4 {v(XS,4)}, v5, s[{sX}:{sX+1}]\nglobal_load_dwordx4 {v(XS+4,4)}, v5, s[{sX}:{sX+1}] offset:16")
            A(f"s_cselect_b64 s[42:43], s[{sW1}:{sW1+1}], s[{sWQ}:{sWQ+1}]")
            A(f"global_load_dwordx4 {v(XR,4)}, v6, s[{sX}:{sX+1}]\nglobal_load_dwordx4 {v(XR+4,4)}, v7, s[{sX}:{sX+1}]")
            addbase(42, "s39")
            for t in range(16):
                if t == 8: A(f"s_cmp_eq_u32 s{sWAVE}, 1\ns_cbranch_scc1 L_Cwdone")
                A(f"global_load_dwordx4 {v(W+4*t,4)}, v8, s[42:43] {nt}")
                if t == 7 and wpat == 1: addbase(42, 25*8192)
                elif t != 15: addbase(42, "s32")
        A("L_Cwdone:")
        karg2()
        pr(0)
        A("s_barrier")
        stamp("issued")
        if not latetag: A(f"s_waitcnt lgkmcnt(0)\ns_load_dword s{sT}, s[{sWS}:{sWS+1}], 0")
        if prioC: A(f"s_setprio {prioC}")
        A(f"s_lshl_b32 s37, s41, 3\ns_add_u32 s37, s37, s40\ns_lshl_b32 s37, s37, 9\ns_add_u32 s37, s37, {QP}\ns_mov_b32 s38, {32*8*512}")
        A(f"s_cmp_eq_u32 s{sWAVE}, 0\ns_cbranch_scc1 L_Cpa")
        A(f"s_mul_i32 s37, s40, 7168\ns_lshl_b32 s42, s41, 9\ns_add_u32 s37, s37, s42\ns_add_u32 s37, s37, {HP}\ns_mov_b32 s38, {16*7168}")
        A("L_Cpa:")
        A("v_and_b32 v5, 1, v2\nv_lshl_add_u32 v9, v5, 4, s37\nv_lshl_add_u32 v9, v1, 5, v9\nv_lshrrev_b32 v5, 1, v2\nv_mad_u32_u24 v9, v5, s38, v9")
        if preQ: A(f"global_load_dwordx4 {v(XF,4)}, v9, s[{sWS}:{sWS+1}] sc1")
        A("L_Cmask:")
        masks()
        if not latetag:
            get_tag()
            A(f"v_mov_b32 v{vTG}, s{sT}\nv_mov_b32 v{vTG+1}, {TAGM}")
        if coop: A(f"s_cmp_eq_u32 s{sWAVE}, 1\ns_cbranch_scc1 L_Cw8\ns_waitcnt vmcnt(2)\nL_Cw8:\ns_waitcnt vmcnt(10)\nL_Cw:")
        if coop:
            A(f"ds_write_b128 v{XF}, {v(XS,4)} offset:{L_O}\nds_write_b128 v{XF}, {v(XS+4,4)} offset:{L_O+16}")
            A(f"ds_read_b128 {v(XR,4)}, v{XF+1} offset:{L_O}\nds_read_b128 {v(XR+4,4)}, v{XF+2} offset:{L_O}")
        if not coop: A(f"s_cmp_eq_u32 s{sWAVE}, 1\ns_cbranch_scc1 L_Cw8\ns_waitcnt vmcnt({16+preQ})\ns_branch L_Cw\nL_Cw8:\ns_waitcnt vmcnt({8+preQ})\nL_Cw:")
    unpack(F, XS, 8)
    A(f"v_add_f32 v5, v{F}, v{F+1}\nv_add_f32 v6, v{F+2}, v{F+3}")
    for i in range(4, 16, 2): A(f"v_add_f32 v5, v5, v{F+i}\nv_add_f32 v6, v6, v{F+i+1}")
    A("v_add_f32 v5, v5, v6")
    allred([5], "v_add_f32", [0, 1, 2, 4, 5], 6)
    A("v_mul_f32 v5, 0x3b000000, v5")
    for i in range(16): A(f"v_sub_f32 v{F+i}, v{F+i}, v5")
    A(f"v_mul_f32 v6, v{F}, v{F}\nv_mul_f32 v7, v{F+1}, v{F+1}")
    for i in range(2, 16, 2): A(f"v_fmac_f32 v6, v{F+i}, v{F+i}\nv_fmac_f32 v7, v{F+i+1}, v{F+i+1}")
    A("v_add_f32 v6, v6, v7")
    allred([6], "v_add_f32", [0, 1, 2, 4, 5], 7)
    A("v_mul_f32 v6, 0x3b000000, v6")
    bf16r(5, 5); bf16r(6, 6)
    A("v_add_f32 v6, 0x3727c5ac, v6"); bf16r(6, 6)
    A("v_sqrt_f32 v6, v6"); bf16r(6, 6)
    A("v_rcp_f32 v6, v6")
    if coop or latetag: A("s_waitcnt lgkmcnt(0)")
    if latetag and not (tr and k2top): A(f"s_load_dword s{sT}, s[{sWS}:{sWS+1}], 0")
    if tr:
        unpack(F, XR, 2)
        for i in range(4): A(f"v_sub_f32 v{F+i}, v{F+i}, v5")
        for i in range(4): bf16r(F+i, F+i)
        for i in range(4): A(f"v_mul_f32 v{F+i}, v{F+i}, v6")
        A(f"v_cvt_pk_bf16_f32 v{XR}, v{F}, v{F+1}\nv_cvt_pk_bf16_f32 v{XR+1}, v{F+2}, v{F+3}\nds_write_b64 v{XF+2}, {v(XR,2)} offset:{L_XN}")
        for k in range(4): A(f"ds_read_b128 {v(XO+4*k,4)}, v{XF+3} offset:{L_XN+64*k}")
        stamp("LNdone")
        get_tag()
        A(f"v_mov_b32 v{vTG}, s{sT}\nv_mov_b32 v{vTG+1}, {TAGM}")
        A(f"s_lshl_b32 s40, s{sWAVE}, 2\nv_mov_b32 v7, s40\nv_mov_b32 v8, 1\ns_waitcnt vmcnt({8+preQ})")
        A(f"s_cmp_eq_u32 s{sWAVE}, 1\ns_cbranch_scc0 L_Cl1\nds_write_b32 v7, v8 offset:{L_FW}\ns_waitcnt vmcnt({preQ})\ns_branch L_Cl0")
        A(f"L_Cl1:\ns_waitcnt vmcnt({preQ})\nds_write_b32 v7, v8 offset:{L_FW}")
        waitflag("L_wfW0", L_FW, 4, F, 7); waitflag("L_wfW1", L_FW+16, 4, F, 7)
        A("L_Cl0:")
        AC4 = XO + 16
        for k in range(4):
            if k == 2: A(f"s_cmp_eq_u32 s{sWAVE}, 1\ns_cbranch_scc1 L_Cm8")
            for cg in range(4):
                for h in range(2): A(f"ds_read_b64_tr_b16 {v(W+16*k+4*cg+2*h,2)}, v{XF+4+cg} offset:{4096*k+512*h}")
            for cg in range(4):
                A(f"s_waitcnt lgkmcnt({6-2*cg})")
                A(f"v_mfma_f32_16x16x32_bf16 {v(AC4+4*cg,4)}, {v(W+16*k+4*cg,4)}, {v(XO+4*k,4)}, {v(AC4+4*cg,4) if k else 0}")
        A("L_Cm8:\ns_nop 7")
        for i in range(4): A(f"v_cndmask_b32 v{AC4+i}, v{AC4+i}, v{AC4+4+i}, s[54:55]\nv_cndmask_b32 v{AC4+8+i}, v{AC4+8+i}, v{AC4+12+i}, s[54:55]")
        for i in range(4): A(f"v_cndmask_b32 v{ACC+i}, v{AC4+i}, v{AC4+8+i}, s[56:57]")
    else:
        unpack(F, XR, 8)
        for i in range(16): A(f"v_sub_f32 v{F+i}, v{F+i}, v5")
        for i in range(16): bf16r(F+i, F+i)
        for i in range(16): A(f"v_mul_f32 v{F+i}, v{F+i}, v6")
        for t in range(16):
            if t == 8: A(f"s_cmp_eq_u32 s{sWAVE}, 1\ns_cbranch_scc1 L_Cd8")
            delta(XO + 4*t, F + t, MASK, 4, 5)
        A("L_Cd8:")
        if warmLN: A(f"s_cmp_ge_u32 s{sWAVE}, 2\ns_cbranch_scc1 L_C23b")
        stamp("LNdone")
        if latetag:
            get_tag()
            A(f"v_mov_b32 v{vTG}, s{sT}\nv_mov_b32 v{vTG+1}, {TAGM}")
        if coop:
            A(f"s_lshl_b32 s40, s{sWAVE}, 2\nv_mov_b32 v7, s40\nv_mov_b32 v8, 1\ns_waitcnt vmcnt(8)")
            A(f"s_cmp_eq_u32 s{sWAVE}, 1\ns_cbranch_scc0 L_Cl1\nds_write_b32 v7, v8 offset:{L_FW}\ns_branch L_Cl0")
            A(f"L_Cl1:\ns_waitcnt vmcnt(0)\nds_write_b32 v7, v8 offset:{L_FW}")
            waitflag("L_wfW0", L_FW, 4, F, 7); waitflag("L_wfW1", L_FW+16, 4, F, 7)
            A("v_lshlrev_b32 v7, 4, v0\nv_add_u32 v7, %d, v7" % L_W)
            for t in range(16): A(f"ds_read_b128 {v(W+4*t,4)}, v7 offset:{1024*t}")
            A("L_Cl0:\ns_waitcnt vmcnt(0)")
            for t in range(16):
                if t == 8: A(f"s_cmp_eq_u32 s{sWAVE}, 1\ns_cbranch_scc1 L_Cm8")
                if t % 4 == 0: A(f"s_waitcnt lgkmcnt({12 - t})")
                A(f"v_mfma_f32_16x16x32_bf16 {v(ACC,4)}, {v(XO+4*t,4)}, {v(W+4*t,4)}, {v(ACC,4) if t else 0}")
        else:
            A(f"s_cmp_eq_u32 s{sWAVE}, 1\ns_cbranch_scc0 L_Cl0\ns_waitcnt vmcnt({preQ})\nL_Cl0:")
            for t in range(16):
                if t == 8: A(f"s_cmp_eq_u32 s{sWAVE}, 1\ns_cbranch_scc1 L_Cm8")
                if t % 4 == 0: A(f"s_waitcnt vmcnt({12 - t + preQ})")
                A(f"v_mfma_f32_16x16x32_bf16 {v(ACC,4)}, {v(XO+4*t,4)}, {v(W+4*t,4)}, {v(ACC,4) if t else 0}")
        A("L_Cm8:\ns_nop 7")
    A("v_mov_b32 v5, 0xff")
    for i in range(4): A(f"v_add_u32 v{ACC+i}, 0x80, v{ACC+i}")
    for i in range(4): A(f"v_bfi_b32 v{ACC+i}, v5, v{vTG}, v{ACC+i}")
    if tr: A("s_mov_b32 exec_lo, 0x00ff00ff\ns_mov_b32 exec_hi, 0x00ff00ff")
    store(9, ACC, 4, sWS, qst)
    if tr: A("s_mov_b64 exec, -1")
    A(f"v_mov_b32 v{B1R+2}, v9")
    stamp("pub1")
    if not trig:
        A(f"s_cmp_eq_u32 s{sWAVE}, 0\ns_cbranch_scc0 L_Cmid\nv_mov_b32 v5, 0\nv_mov_b32 v6, 1\nds_write_b32 v5, v6 offset:{L_FT}")
    A("s_branch L_Cmid")

    A(f"L_Cnoffn:\nv_mov_b32 v9, 0\nv_mov_b32 v{B1R+2}, 0")
    karg2()
    A(f"v_mov_b32 v5, 0\nv_and_b32 v6, 31, v0\nv_lshlrev_b32 v6, 2, v6\nds_write_b32 v6, v5 offset:{L_FT}")
    A("s_waitcnt lgkmcnt(0)"); pr(1); pr(0)
    A(f"s_load_dword s{sT}, s[{sWS}:{sWS+1}], 0\ns_barrier")
    wsb()
    if warmLN:
        A(f"s_cmp_eq_u32 s{sWAVE}, 2\ns_cbranch_scc1 L_Cw\nL_C23b:")
    get_tag(False)
    A(f"v_mov_b32 v{vTG}, s{sT}\nv_mov_b32 v{vTG+1}, {TAGM}")
    if coop: A(f"s_lshl_b32 s40, s{sWAVE}, 2\nv_mov_b32 v7, s40\nv_mov_b32 v8, 1")
    A(f"s_cmp_eq_u32 s{sWAVE}, 3\ns_cbranch_scc1 L_Cid")
    if coop: A("s_waitcnt vmcnt(0)")
    A("s_branch L_Cnoid\nL_Cid:")
    A(f"s_lshl_b32 s40, s{sXC}, 5\ns_add_u32 s40, s40, s{sJ}\ns_lshl_b32 s40, s40, 2\ns_add_u32 s40, s40, {IDS}")
    A(f"v_mov_b32 v5, s40\nv_mov_b32 v6, s{sID}\ns_mov_b64 exec, 1\nglobal_store_dword v5, v6, s[{sWS}:{sWS+1}] {idst}\ns_mov_b64 exec, -1")
    if eskew:
        A(f"s_cmp_eq_u32 s{sJ}, 0\ns_cbranch_scc0 L_nosk\ns_lshl_b32 s40, s{sXC}, 2\ns_add_u32 s40, s40, 0x2000\nv_mov_b32 v5, s40\nv_mov_b32 v6, s64")
        A(f"s_mov_b64 exec, 1\nglobal_store_dword v5, v6, s[{sWS}:{sWS+1}] sc1\ns_mov_b64 exec, -1\nL_nosk:")
    if tlb:
        A(f"s_lshr_b32 s40, s2, 7\ns_lshl_b32 s40, s40, 3\ns_add_u32 s40, s40, s{sXC}\ns_lshl_b32 s40, s40, 23\ns_and_b32 s41, s{sJ}, 15\ns_lshl_b32 s41, s41, 14\ns_add_u32 s40, s40, s41\ns_add_u32 s40, s40, {28672*256}")
        A("v_lshlrev_b32 v5, 18, v0\nv_add_u32 v5, s40, v5\ns_mov_b64 exec, 15")
        A(f"global_load_dword v210, v5, s[{sV}:{sV+1}] nt")
        if tlb > 1: A(f"global_load_dword v210, v5, s[{sK}:{sK+1}] nt")
        A(f"s_mov_b64 exec, 1\ns_lshl_b32 s40, s{sXC}, 3\ns_lshr_b32 s41, s{sJ}, 2\ns_add_u32 s40, s40, s41\ns_lshl_b32 s41, s40, 16\nv_mov_b32 v5, s41")
        A(f"global_load_dword v210, v5, s[{sWO}:{sWO+1}] nt\ns_min_u32 s40, s40, 55\ns_lshl_b32 s41, s40, 15\nv_mov_b32 v5, s41\nglobal_load_dword v210, v5, s[{sW2}:{sW2+1}] nt")
        A(f"v_mov_b32 v5, {SPF + 0x4c000}\nglobal_load_dword v210, v5, s[{sWS}:{sWS+1}] nt\nv_mov_b32 v5, 0")
        A(f"global_load_dword v210, v5, s[{sB1}:{sB1+1}]\nglobal_load_dword v210, v5, s[{sOUT}:{sOUT+1}] nt\ns_mov_b64 exec, -1")
    if dirty:
        A("s_lshl_b32 s40, s2, 15\ns_add_u32 s40, s40, 0x1000000\nv_lshl_add_u32 v5, v0, 4, s40")
        for k in range(dirty): A(f"global_store_dwordx4 v5, v[16:19], s[{sWS}:{sWS+1}] {dfl}\nv_add_u32 v5, 1024, v5")
    A("L_Cnoid:")
    if coop: A(f"s_waitcnt vmcnt(1)\nds_write_b32 v7, v8 offset:{L_FW}")
    masks()

    A("L_Cmid:")
    QG, QF, SC, KA, MA, KF = XO, XO + 16, XO + 32, XO + 48, XO + 52, W
    A(f"s_cmp_lt_u32 s{sXC}, 7\ns_cselect_b32 s45, 2, 0\ns_cmp_lt_u32 s{sWAVE}, s45\ns_cselect_b32 s45, 1, 0")
    A(f"s_lshr_b32 s40, s{sJ}, 4\ns_lshl_b32 s40, s40, 5\ns_lshl_b32 s41, s{sXC}, 2\ns_add_u32 s40, s40, s41\ns_add_u32 s40, s40, s{sWAVE}")
    A(f"s_lshl_b32 s40, s40, {11 if tr else 12}\ns_add_u32 s40, s40, {QP}\nv_lshl_add_u32 v{MA}, v0, 4, s40")
    if not trig: A(f"s_add_u32 s58, s{sWS}, s40\ns_addc_u32 s59, s{sWS+1}, 0")
    A(f"s_mul_i32 s40, s{sWAVE}, {L_QSTR}\nv_and_b32 v5, 31, v0\nv_lshl_add_u32 v{MA+1}, v5, 3, s40\nv_lshrrev_b32 v6, 5, v0\nv_lshl_add_u32 v{MA+1}, v6, 2, v{MA+1}")
    A(f"s_lshl_b32 s40, s{sXC}, 7\ns_add_u32 s40, s40, {IDS}\nv_lshl_add_u32 v{MA+2}, v5, 2, s40")
    A(f"v_and_b32 v5, 3, v1\nv_lshlrev_b32 v5, 10, v5\nv_lshrrev_b32 v6, 2, v1\nv_lshl_add_u32 v5, v6, 8, v5\ns_lshl_b32 s40, s{sWAVE}, 14\ns_add_u32 s40, s40, {L_K}\nv_add_u32 v5, s40, v5")
    for u in range(4):
        A(f"v_add_u32 v7, {4*u}, v2\nv_xor_b32 v7, v7, v1\nv_lshl_add_u32 v{KA+u}, v7, 4, v5")
    A(f"v_mul_u32_u24 v{MA+3}, {L_QSTR}, v6\nv_lshl_add_u32 v{MA+3}, v2, 4, v{MA+3}")
    A(f"s_lshl_b32 s40, s{sWAVE}, 2\nv_lshl_add_u32 v{MA+4}, v6, 4, s40\nv_mov_b32 v{MA+7}, s40\nv_mov_b32 v{MA+6}, 0")
    A(f"s_lshl_b32 s40, s{sWAVE}, 10\nv_lshl_add_u32 v{MA+5}, v0, 4, s40")
    A("v_and_b32 v5, 1, v0\nv_cmp_ne_u32 s[54:55], 0, v5\nv_and_b32 v5, 2, v0\nv_cmp_ne_u32 s[56:57], 0, v5")
    A(f"s_lshl_b32 s40, s{sXC}, 3\ns_lshr_b32 s41, s{sJ}, 2\ns_add_u32 s40, s40, s41\ns_lshl_b32 s40, s40, 1\ns_add_u32 s40, s40, s{sWAVE}")
    A(f"s_lshl_b32 s41, s40, 6\ns_add_u32 s41, s41, {HP}\nv_mul_u32_u24 v6, 7168, v4\nv_lshl_add_u32 v6, v2, 4, v6\nv_add_u32 v6, s41, v6")
    A(f"v_mul_u32_u24 v8, {(8 if tr else 16)*7168}, v3\nv_add_u32 v{MA+9}, v6, v8\nv_add_u32 v{MA+10}, {8*7168}, v{MA+9}")
    A(f"s_lshl_b32 s41, s40, 5\nv_lshl_add_u32 v{MA+8}, v2, 3, s41")
    A(f"s_lshl_b32 s40, s{sXC}, 5\ns_add_u32 s40, s40, s{sJ}")
    A("s_lshr_b32 s41, s40, 6\ns_lshl_b32 s41, s41, 7\ns_and_b32 s42, s40, 15\ns_lshl_b32 s42, s42, 3\ns_add_u32 s41, s41, s42")
    A("s_bfe_u32 s42, s40, 0x10004\ns_lshl_b32 s42, s42, 2\ns_add_u32 s41, s41, s42")
    A("s_bfe_u32 s42, s40, 0x10005\ns_lshl_b32 s42, s42, 9\ns_add_u32 s42, s42, s41")
    if g2:
        A(f"s_and_b32 s43, s{sWAVE}, 1\nv_lshrrev_b32 v6, 5, v0\nv_lshl_add_u32 v6, s43, 1, v6\nv_add_lshl_u32 v{FIN+2}, v6, s42, 1\nv_add_lshl_u32 v7, v6, s41, 1")
    else: A(f"v_add_lshl_u32 v{FIN+2}, v2, s42, 1\nv_add_lshl_u32 v7, v2, s41, 1")
    A(f"global_load_ushort v{FIN}, v{FIN+2}, s[{sX}:{sX+1}]\nglobal_load_ushort v{FIN+1}, v7, s[{sB2}:{sB2+1}]")
    W2R, WOR, G = W, W + 16, W + 32
    A(f"s_and_b32 s40, s{sJ}, 3\ns_lshl_b32 s40, s40, 8\ns_lshr_b32 s41, s{sJ}, 2")
    A(f"s_lshl_b32 s42, s{sXC}, 3\ns_add_u32 s47, s42, s41")
    A(f"s_lshl_b32 s42, s47, 1\ns_add_u32 s42, s42, s{sWAVE}\ns_lshl_b32 s42, s42, 14\ns_add_u32 s42, s42, s40")
    addbase(sW2, "s42")
    A(f"s_lshl_b32 s42, s47, 2\ns_add_u32 s42, s42, s{sWAVE}\ns_lshl_b32 s43, s42, 14\ns_add_u32 s43, s43, s40")
    addbase(sWO, "s43")
    A(f"v_lshlrev_b32 v{FIN+5}, 12, v2\nv_lshl_add_u32 v{FIN+5}, v1, 4, v{FIN+5}")
    A(f"s_lshl_b32 s42, s42, 11\ns_add_u32 s42, s42, {OP}\nv_lshl_add_u32 v{XR}, v0, 4, s42")
    A(f"s_lshr_b32 s42, s47, 1\ns_lshl_b32 s42, s42, 9\ns_add_u32 s42, s42, {ML}\nv_lshl_add_u32 v{XR+2}, v1, 4, s42")
    A(f"s_lshl_b32 s42, s{sXC}, 16\ns_bfe_u32 s43, s{sJ}, 0x30002\ns_lshl_b32 s43, s43, 8\ns_add_u32 s42, s42, s43\ns_lshl_b32 s43, s{sWAVE}, 6\ns_add_u32 s42, s42, s43\ns_add_u32 s42, s42, {OP}")
    A(f"v_lshl_add_u32 v7, v3, 4, v4\nv_lshlrev_b32 v7, 11, v7\nv_lshl_add_u32 v7, v2, 4, v7\nv_add_u32 v{FIN+3}, s42, v7\nv_add_u32 v{FIN+4}, {8*2048}, v{FIN+3}")
    if merge:
        A(f"s_and_b32 s40, s{sJ}, 3\ns_lshl_b32 s40, s40, 6\ns_add_u32 s40, s40, s47\ns_mul_i32 s40, s40, {mstr}")
        A(f"s_lshl_b32 s41, s{sWAVE}, 10\ns_add_u32 s40, s40, s41\ns_add_u32 s40, s40, {SPS}\nv_lshl_add_u32 v{XR+3}, v0, 4, s40")
        A(f"s_lshl_b32 s40, s{sXC}, 5\ns_add_u32 s40, s40, s{sJ}\ns_lshr_b32 s41, s40, 6\ns_mul_i32 s41, s41, {64*mstr}\ns_and_b32 s40, s40, 63\ns_lshl_b32 s40, s40, 5")
        A(f"s_add_u32 s40, s40, s41\ns_add_u32 s40, s40, {SPS}\nv_mul_u32_u24 v{XR+4}, {mstr}, v0\nv_add_u32 v{XR+4}, s40, v{XR+4}\nv_add_u32 v{XR+5}, 16, v{XR+4}")
        if g2: A(f"s_lshl_b32 s40, s{sWAVE}, 4\nv_add_u32 v{XR+4}, s40, v{XR+4}")
    else:
        A(f"s_and_b32 s40, s{sJ}, 3\ns_lshl_b32 s40, s40, 6\ns_add_u32 s40, s40, s47\ns_mul_i32 s40, s40, {SPSTR}")
        A(f"s_cmp_eq_u32 s{sWAVE}, 0\ns_cselect_b32 s41, 0, {SPF-SPS}\ns_add_u32 s40, s40, s41\ns_add_u32 s40, s40, {SPS}\nv_lshl_add_u32 v{XR+3}, v0, 4, s40")
        A(f"s_lshl_b32 s40, s{sXC}, 5\ns_add_u32 s40, s40, s{sJ}\ns_lshr_b32 s41, s40, 6\ns_mul_i32 s41, s41, {64*SPSTR}\ns_and_b32 s40, s40, 63\ns_lshl_b32 s40, s40, 4")
        A(f"s_add_u32 s40, s40, s41\ns_add_u32 s40, s40, {SPS}\nv_mul_u32_u24 v{XR+4}, {SPSTR}, v0\nv_add_u32 v{XR+4}, s40, v{XR+4}\nv_add_u32 v{XR+5}, {SPF-SPS}, v{XR+4}")
    if flag2:
        A(f"s_and_b32 s40, s{sJ}, 3\ns_lshl_b32 s40, s40, 6\ns_add_u32 s40, s40, s47\ns_lshl_b32 s40, s40, 7\ns_add_u32 s40, s40, {FLG}\nv_mov_b32 v{FIN+6}, s40")
        if fall: A(f"s_mov_b32 s40, {FLG}\nv_lshl_add_u32 v{FIN+7}, v0, 7, s40")
        else: A(f"s_lshr_b32 s40, s{sXC}, 1\ns_lshl_b32 s40, s40, 13\ns_add_u32 s40, s40, {FLG}\nv_lshl_add_u32 v{FIN+7}, v0, 7, s40")
        A(f"s_cmp_eq_u32 s{sWAVE}, 3\ns_cselect_b32 s62, 1, 0\ns_mov_b32 s63, 0")
    A(f"s_lshl_b32 s40, s{sWAVE}, 10\nv_lshl_add_u32 v{XR+6}, v0, 4, s40\nv_lshlrev_b32 v{XR+7}, 4, v0")
    if g2: A(f"s_lshl_b32 s40, s{sWAVE}, 9\ns_add_u32 s40, s40, {L_RED}\nv_lshl_add_u32 v{XR+7}, v0, 3, s40")
    elif merge: A(f"s_lshl_b32 s40, s{sWAVE}, 9\nv_lshrrev_b32 v7, 1, v0\nv_lshl_add_u32 v{XR+7}, v7, 4, s40\nv_and_b32 v7, 1, v0\nv_lshl_add_u32 v{XR+7}, v7, 12, v{XR+7}")
    if trig: waitflag("L_wfT", L_FT, 4, F, MA+6)
    else:
        waitflag("L_wfT", L_FT, 1, F, MA+6)
        A(f"s_mov_b32 s{sCNT}, 0\nL_sq:")
        for k in range(8): A(f"s_load_dword s{32+k}, s[58:59], {512*k} glc")
        A(f"s_add_u32 s{sCNT}, s{sCNT}, 1\ns_waitcnt lgkmcnt(0)")
        A(f"s_xor_b32 s40, s32, s{sT8}")
        for k in range(1, 8): A(f"s_xor_b32 s41, s{32+k}, s{sT8}\ns_or_b32 s40, s40, s41")
        A(f"s_and_b32 s40, s40, 0xff\ns_cbranch_scc0 L_sq_x\ns_cmp_lt_u32 s{sCNT}, 64\ns_cbranch_scc1 L_sq\nL_sq_x:")
        if diag: A(f"s_mov_b32 s99, s{sCNT}")
    stamp("FT")
    if smtest:
        A(f"s_lshl_b32 s41, s2, 9\ns_add_u32 s41, s41, {QP}\ns_add_u32 s42, s{sWS}, s41\ns_addc_u32 s43, s{sWS+1}, 0")
        A("s_waitcnt lgkmcnt(0)\ns_memtime s[58:59]\ns_waitcnt lgkmcnt(0)\ns_load_dword s41, s[42:43], 0 glc\ns_waitcnt lgkmcnt(0)\ns_memtime s[100:101]\ns_waitcnt lgkmcnt(0)\ns_sub_u32 s99, s100, s58")
        A("s_memtime s[58:59]\ns_waitcnt lgkmcnt(0)\ns_load_dword s41, s[42:43], 0 glc\ns_waitcnt lgkmcnt(0)\ns_memtime s[100:101]\ns_waitcnt lgkmcnt(0)\ns_sub_u32 s41, s100, s58\ns_lshl_b32 s41, s41, 16\ns_or_b32 s99, s99, s41")
    QLD = [(QG + 4*k, 4, MA, 1024*k) for k in range(2 if hack == 9 or tr else 4)]
    HLD = [(XS, 4, MA+9, 0), (XS+4, 4, MA+10, 0)][:1 if tr else 2]
    A(f"global_load_dword v{MA+11}, v{MA+2}, s[{sWS}:{sWS+1}] sc1")
    if not noq: issue(QLD, sWS, qld)
    def hissue(lab):
        A(f"s_cmp_eq_u32 s45, 0\ns_cbranch_scc1 {lab}")
        if not noh: issue(HLD, sWS, qld)
        A(f"global_load_dwordx2 {v(B1R,2)}, v{MA+8}, s[{sB1}:{sB1+1}]")
        if hack == 2:
            for i in range(4): A(f"global_load_dwordx4 {v(XF+4*i,4)}, v{FIN+5}, s[{sW2}:{sW2+1}] offset:{1024*i} {nt}")
    def kreads():
        waitflag("L_wfK", L_FK, 1, F, MA+7)
        stamp("FK")
        for T in range(4):
            for u in range(4): A(f"ds_read_b128 {v(KF+16*T+4*u,4)}, v{KA+u} offset:{4096*T}")
    if kfirst: kreads()
    if q2:
        assert kfirst and tr and hlate
        issue([(d + 8, n, a, off) for (d, n, a, off) in QLD], sWS, qld)
        A("s_waitcnt vmcnt(2)")
    elif hlate: A("s_waitcnt vmcnt(0)")
    else:
        hissue("L_Cnoh")
        A("s_waitcnt vmcnt(3)\ns_branch L_Cnoh1\nL_Cnoh:\ns_waitcnt vmcnt(0)\nL_Cnoh1:")
    A(f"v_cmp_ne_u32 vcc, s{sID}, v{MA+11}\ns_mov_b32 s53, 1\ns_cbranch_vccz L_Cnob\ns_mov_b32 s53, 3")
    A(f"s_cmp_eq_u32 s{sWAVE}, 0\ns_cselect_b32 s40, 1, s45\ns_cmp_eq_u32 s40, 0\ns_cbranch_scc1 L_Cnob")
    if tr: A("s_mov_b32 exec_lo, 0x00ff00ff\ns_mov_b32 exec_hi, 0x00ff00ff")
    store(B1R+2, ACC, 4, sWSB, "sc1")
    if tr: A("s_mov_b64 exec, -1")
    A("L_Cnob:")
    if not noq: poll("L_pollQ", QLD, 7, QLD, first=63, narrow=True, spare=QG+8 if q2 else None)
    stamp("qgath")
    if tr:
        for i in range(4): A(f"v_add_f32 v{QG+i}, v{QG+i}, v{QG+4+i}")
    else:
        for i in range(4): A(f"v_add_f32 v{QG+i}, v{QG+i}, v{QG+4+i}\nv_add_f32 v{QG+8+i}, v{QG+8+i}, v{QG+12+i}")
        for i in range(4): A(f"v_add_f32 v{QG+i}, v{QG+i}, v{QG+8+i}")
    for i in range(2): A(f"v_permlane32_swap_b32 v{QG+i}, v{QG+2+i}")
    for i in range(2): A(f"v_add_f32 v{QG+i}, v{QG+i}, v{QG+2+i}")
    A(f"v_cvt_pk_bf16_f32 v5, v{QG}, v{QG+1}\nds_write_b32 v{MA+1}, v5 offset:{L_Q}\nv_mov_b32 v6, s53")
    A(f"s_waitcnt lgkmcnt(0)\nds_write_b32 v{MA+7}, v6 offset:{L_FQ}")
    for i in range(4): A(f"v_mov_b32 v{ACC+i}, 0")
    if hlate: hissue("L_Cnoh"); A("L_Cnoh:")
    if pretouch and ptpos == 2: issue([(208, 1, XR+2, 0), (208, 1, XR+2, 256), (208, 1, XR, 0), (208, 1, XR, 1024)], sWS, ptfl)
    if pretouch and ptpos == 3:
        A(f"s_and_b32 s40, s{sJ}, 3\ns_lshl_b32 s40, s40, 9\nv_lshlrev_b32 v5, 4, v0\nv_sub_u32 v5, v{XR}, v5\nv_lshl_add_u32 v5, v0, 7, v5\nv_add_u32 v5, s40, v5")
        A(f"s_mov_b64 exec, 15\nglobal_load_dword v208, v5, s[{sWS}:{sWS+1}] {ptfl}")
        A(f"v_lshlrev_b32 v5, 4, v1\nv_sub_u32 v5, v{XR+2}, v5\nv_lshl_add_u32 v5, v0, 7, v5\nglobal_load_dword v208, v5, s[{sWS}:{sWS+1}] {ptfl}\ns_mov_b64 exec, -1")
    if not kfirst: kreads()
    waitflag("L_wfq", L_FQ, 4, F, MA+6)
    for u in range(4): A(f"ds_read_b128 {v(QF+4*u,4)}, v{MA+3} offset:{L_Q+64*u}")
    for u in range(4):
        A(f"s_waitcnt lgkmcnt({3-u})")
        for T in range(4):
            A(f"v_mfma_f32_16x16x32_bf16 {v(SC+4*T,4)}, {v(KF+16*T+4*u,4)}, {v(QF+4*u,4)}, {v(SC+4*T,4) if u else 0}")
    E = F
    for T in range(4):
        A(f"v_cndmask_b32 v{SC+4*T}, v{SC+4*T}, v{SC+4*T+1}, s[54:55]\nv_cndmask_b32 v{SC+4*T+2}, v{SC+4*T+2}, v{SC+4*T+3}, s[54:55]")
    for T in range(4): A(f"v_cndmask_b32 v{E+T}, v{SC+4*T}, v{SC+4*T+2}, s[56:57]")
    for i in range(4): bf16r(E+i, E+i)
    for i in range(4): A(f"v_mul_f32 v{E+i}, {SCALE}, v{E+i}")
    for i in range(4): bf16r(E+i, E+i)
    A(f"v_max3_f32 v8, v{E}, v{E+1}, v{E+2}\nv_max_f32 v8, v8, v{E+3}")
    allred([8], "v_max_f32", [0, 1, 4, 5], 9)
    A(f"ds_write_b32 v{MA+4}, v8 offset:{L_MX}")
    A(f"v_mul_f32 v9, {LOG2E ^ 0x80000000}, v8\ns_mov_b32 s40, {LOG2E}")
    for i in range(4): A(f"v_fma_f32 v{E+i}, v{E+i}, s40, v9")
    for i in range(4): A(f"v_exp_f32 v{E+i}, v{E+i}")
    for i in range(4): A(f"v_cvt_pk_bf16_f32 v{SC+i}, v{E+i}, v{E+i}")
    A(f"ds_write_b128 v{MA+5}, {v(SC,4)} offset:{L_P}")
    A(f"v_add_f32 v8, v{E}, v{E+1}\nv_add_f32 v9, v{E+2}, v{E+3}\nv_add_f32 v8, v8, v9")
    allred([8], "v_add_f32", [0, 1, 4, 5], 9)
    A(f"ds_write_b32 v{MA+4}, v8 offset:{L_LW}")
    A(f"s_waitcnt lgkmcnt(0)\nds_write_b32 v{MA+7}, v6 offset:{L_FP}")
    stamp("pready")
    A(f"v_lshlrev_b32 v{FIN}, 16, v{FIN}\nv_lshlrev_b32 v{FIN+1}, 16, v{FIN+1}")
    waitflag("L_wfV", L_FV, 4, F, MA+6)
    stamp("FV")
    OLD = [(G+8, 4, XR+2, 0), (G+12, 4, XR+2, 256), (G, 4, XR, 0), (G+4, 4, XR, 1024)]
    if spre:
        A(f"s_cmp_ge_u32 s{sWAVE}, 2\ns_cbranch_scc1 L_nospre\nglobal_load_dwordx4 {v(F,4)}, v{XR+3}, s[{sWS}:{sWS+1}] {spre.replace('plain', '')}\nL_nospre:")
    if pretouch and ptpos == 0: issue(OLD, sWS, ptfl)
    def ldwo():
        for i in range(0 if hack == 3 else 2 if hack == 5 else 4): A(f"global_load_dwordx4 {v(WOR+4*i,4)}, v{FIN+5}, s[{sWO}:{sWO+1}] offset:{1024*i} {nt}")
    if wofirst: ldwo()
    A("s_cmp_eq_u32 s45, 0\ns_cbranch_scc1 L_Cnow2")
    if hack != 2:
        for i in range(4): A(f"global_load_dwordx4 {v(W2R+4*i,4)}, v{FIN+5}, s[{sW2}:{sW2+1}] offset:{1024*i} {nt}")
    A("L_Cnow2:")
    if not wofirst: ldwo()
    if pretouch and ptpos == 1: issue(OLD, sWS, ptfl)
    A("s_cmp_eq_u32 s45, 0\ns_cbranch_scc1 L_Cnoh2")
    if not noh: poll("L_pollH", HLD, 7, HLD, first=(4 if hack in (2, 3) else 6 if hack == 5 else 8) + 4*bool(pretouch and ptpos < 2), narrow=True)
    if not tr:
        for i in range(4): A(f"v_add_f32 v{XS+i}, v{XS+i}, v{XS+4+i}")
    allred([XS, XS+1, XS+2, XS+3], "v_add_f32", [0, 1, 2], 7)
    for i in range(4): bf16r(XS+i, XS+i)
    unpack(XS+4, B1R, 2)
    for i in range(4): A(f"v_add_f32 v{XS+i}, v{XS+i}, v{XS+4+i}")
    for i in range(4): bf16r(XS+i, XS+i)
    for i in range(4): A(f"v_max_f32 v{XS+i}, 0, v{XS+i}")
    for i in range(4): A(f"v_mul_f32 v{XS+i}, v{XS+i}, v{XS+i}")
    for i in range(4): delta(XF + 4*i, XS + i, MASK, 4, 5)

    A("L_Cnoh2:")
    A("s_waitcnt lgkmcnt(0)\ns_barrier")
    stamp("barC")
    def raise2():
        A(f"s_cmp_eq_u32 s62, 0\ns_cbranch_scc1 L_nf2\ns_mov_b64 exec, 1\nglobal_store_dword v{FIN+6}, v{vTG}, s[{sWS}:{sWS+1}] sc1\ns_mov_b64 exec, -1\nL_nf2:")
    if flag2 == 3: raise2()
    A("s_cmp_eq_u32 s45, 0\ns_cbranch_scc1 L_Cnoffn2")
    A(f"s_waitcnt vmcnt({(0 if wofirst or hack == 3 else 2 if hack == 5 else 4) + 4*(ptpos == 1)})")
    for i in range(4): A(f"v_mfma_f32_16x16x32_bf16 {v(ACC,4)}, {v(XF+4*i,4)}, {v(W2R+4*i,4)}, {v(ACC,4)}")
    A("L_Cnoffn2:")
    if owait is not None: A(f"s_waitcnt vmcnt({0 if ptpos == 1 else owait + (flag2 == 3)})")
    if flag2 == 2: raise2()
    stamp("wohere")
    if pipeO: pollpipe("L_pollO", [(XR, 0), (XR, 1024), (XR+2, 0), (XR+2, 256)], [XO + 16*r for r in range(pipeO)], G, 7, stagO)
    else:
        issue(OLD[2:] if hack == 6 else OLD, sWS)
        A(f"ds_write_b128 v{XR+6}, {v(ACC,4)} offset:{L_RED+4096}")
        poll("L_pollO", OLD[2:] if hack == 6 else OLD, 7, [(G+8, 4, XR+2, 0), (G+12, 4, XR+2, 256), (G, 4, FIN+3, 0), (G+4, 4, FIN+4, 0)], strip=not opt, first=0)
    if flag2 == 1: raise2()
    stamp("gathO")
    if pipeO: A(f"ds_write_b128 v{XR+6}, {v(ACC,4)} offset:{L_RED+4096}")
    m0, l0, m1, l1 = G+8, G+9, G+12, G+13
    if opt:
        X = (lambda r: "") if pipeO else (lambda r: f"v_xor_b32 v{r}, s{sT}, v{r}")
        D = lambda op, r, b: f"{op}_dpp v{r}, v{r}, v{r} {DPP[b]} row_mask:0xf bank_mask:0xf"
        if hack == 6: A("\n".join(X(G+i) for i in range(8)))
        else: A("\n".join([X(m0), X(m1), f"v_max_f32 v5, v{m0}, v{m1}", X(G), X(G+1), D("v_max_f32", 5, 0), X(G+2), X(G+3), D("v_max_f32", 5, 1),
                     X(G+4), X(G+5), D("v_max_f32", 5, 2), X(G+6), f"v_sub_f32 v{m0}, v{m0}, v5", f"v_sub_f32 v{m1}, v{m1}, v5",
                     f"v_mul_f32 v6, {LOG2E}, v{m0}", f"v_mul_f32 v8, {LOG2E}, v{m1}", "v_exp_f32 v6, v6", "v_exp_f32 v8, v8", X(G+7), X(l0), X(l1)]))
        if hack != 6: A(f"v_mul_f32 v{l0}, v{l0}, v6")
        for i in (0, 2): A(f"v_pk_mul_f32 {v(G+i,2)}, {v(G+i,2)}, v[6:7] op_sel_hi:[1,0]")
        if hack != 6: A(f"v_fmac_f32 v{l0}, v{l1}, v8")
        for i in (0, 2): A(f"v_pk_fma_f32 {v(G+i,2)}, {v(G+4+i,2)}, v[8:9], {v(G+i,2)} op_sel_hi:[1,0,1]")
        for b in (0, 1, 2):
            if hack != 6: A(D("v_add_f32", l0, b))
            if b == 2:
                A(D("v_add_f32", G, b))
                if hack != 6: A(f"v_rcp_f32 v6, v{l0}")
            for r in range(G + (b == 2), G + 4): A(D("v_add_f32", r, b))
        for i in (0, 2):
            if hack != 6: A(f"v_pk_mul_f32 {v(G+i,2)}, {v(G+i,2)}, v[6:7] op_sel_hi:[1,0]")
        M = lambda i: A(f"v_mfma_f32_16x16x32_bf16 {v(F,4)}, {v(XO+4*i,4)}, {v(WOR+4*i,4)}, {v(F,4) if i else 0}")
        if pipeO: XO = XO + 32
        delta(XO, G, MASK, 4, 5); delta(XO+4, G+1, MASK, 4, 8)
        M(0); delta(XO+8, G+2, MASK, 4, 5); M(1); delta(XO+12, G+3, MASK, 4, 8); M(2); M(3)
    else:
        A(f"v_max_f32 v5, v{m0}, v{m1}")
        allred([5], "v_max_f32", [0, 1, 2], 7)
        A(f"v_sub_f32 v{m0}, v{m0}, v5\nv_sub_f32 v{m1}, v{m1}, v5\nv_mul_f32 v{m0}, {LOG2E}, v{m0}\nv_mul_f32 v{m1}, {LOG2E}, v{m1}")
        A(f"v_exp_f32 v{m0}, v{m0}\nv_exp_f32 v{m1}, v{m1}")
        A(f"v_mul_f32 v{l0}, v{l0}, v{m0}")
        for i in range(4): A(f"v_mul_f32 v{G+i}, v{G+i}, v{m0}")
        A(f"v_fmac_f32 v{l0}, v{l1}, v{m1}")
        for i in range(4): A(f"v_fmac_f32 v{G+i}, v{G+4+i}, v{m1}")
        allred([l0, G, G+1, G+2, G+3], "v_add_f32", [0, 1, 2], 7)
        A(f"v_rcp_f32 v{l0}, v{l0}")
        for i in range(4): A(f"v_mul_f32 v{G+i}, v{G+i}, v{l0}")
        for i in range(4): delta(XO + 4*i, G + i, MASK, 4, 5 + (i & 1))
        for i in range(4): A(f"v_mfma_f32_16x16x32_bf16 {v(F,4)}, {v(XO+4*i,4)}, {v(WOR+4*i,4)}, {v(F,4) if i else 0}")
    if hack == 8:
        A(f"s_cmp_ge_u32 s{sWAVE}, 2\ns_cbranch_scc1 L_Cdone\ns_nop 5")
        for i in range(4): A(f"v_mov_b32 v{G+i}, v{F+i}")
        A("s_branch L_h8")
    A(f"ds_write_b128 v{XR+6}, {v(F,4)} offset:{L_RED}")
    if g2 and not diag and not lite: A(f"s_cmp_ge_u32 s{sWAVE}, 2\ns_cbranch_scc1 L_Cbar")
    A("s_waitcnt lgkmcnt(0)\ns_barrier")
    if g2 and not diag and not lite: pass
    elif ackwait: A(f"s_cmp_ge_u32 s{sWAVE}, 2\ns_cbranch_scc1 L_Cdone")
    else: A(f"s_cmp_eq_u32 s{sWAVE}, 2\ns_cbranch_scc1 L_Cfin\ns_cmp_eq_u32 s{sWAVE}, 3\ns_cbranch_scc1 L_Cdone")
    if not merge: A(f"s_cmp_eq_u32 s{sWAVE}, 1\ns_cbranch_scc1 {'L_Cdone' if hack in (1, 2) else 'L_Cpubf'}")
    if g2:
        A(f"ds_read2st64_b64 {v(G+4,4)}, v{XR+7} offset0:0 offset1:2\nds_read2st64_b64 {v(G+8,4)}, v{XR+7} offset0:4 offset1:6\nds_read2st64_b64 {v(G+12,4)}, v{XR+7} offset0:8 offset1:10")
        A(f"s_waitcnt lgkmcnt(2)\nv_pk_add_f32 {v(G,2)}, {v(G+4,2)}, {v(G+6,2)}\ns_waitcnt lgkmcnt(1)\nv_pk_add_f32 {v(G+8,2)}, {v(G+8,2)}, {v(G+10,2)}")
        A(f"v_pk_add_f32 {v(G,2)}, {v(G,2)}, {v(G+8,2)}\ns_waitcnt lgkmcnt(0)\nv_pk_add_f32 {v(G+2,2)}, {v(G+12,2)}, {v(G+14,2)}")
    elif opt:
        PA = lambda a, b: A(f"v_pk_add_f32 {v(a,2)}, {v(a,2)}, {v(b,2)}\nv_pk_add_f32 {v(a+2,2)}, {v(a+2,2)}, {v(b+2,2)}")
        for i in range(4): A(f"ds_read_b128 {v(G+4*i,4)}, v{XR+7} offset:{L_RED+1024*i}")
        A("s_waitcnt lgkmcnt(2)"); PA(G, G+4)
        A("s_waitcnt lgkmcnt(1)"); PA(G, G+8)
        if not merge:
            A("s_branch L_Cpub\nL_Cpubf:")
            A(f"ds_read_b128 {v(G,4)}, v{XR+7} offset:{L_RED+4096}\nds_read_b128 {v(G+12,4)}, v{XR+7} offset:{L_RED+4096+1024}")
        A("L_Cpub:\ns_waitcnt lgkmcnt(0)"); PA(G, G+12)
    else:
        for i in range(4): A(f"ds_read_b128 {v(G+4*i,4)}, v{XR+7} offset:{L_RED+1024*i}")
        A("s_waitcnt lgkmcnt(0)")
        for i in range(4): A(f"v_add_f32 v{G+i}, v{G+i}, v{G+8+i}\nv_add_f32 v{G+4+i}, v{G+4+i}, v{G+12+i}")
        A("s_branch L_Cpub")
        A("L_Cpubf:")
        for i in range(2): A(f"ds_read_b128 {v(G+4*i,4)}, v{XR+7} offset:{L_RED+4096+1024*i}")
        A("s_waitcnt lgkmcnt(0)")
        A("L_Cpub:")
        for i in range(4): A(f"v_add_f32 v{G+i}, v{G+i}, v{G+4+i}")
    if hack == 8: A("L_h8:")
    tag(G, 4, vTG)
    store(XR+3, G, 4, sWS, sst)
    stamp("pubS")
    if g2: A("s_waitcnt vmcnt(0)")
    elif ackwait: A(f"s_cmp_eq_u32 s{sWAVE}, 1\ns_cbranch_scc1 L_Cdone\ns_waitcnt vmcnt(0)")
    else: A("s_branch L_Cdone")
    A("L_Cfin:")
    if fsleep: A(f"s_sleep {fsleep}")
    if flag2:
        nf = 4 if fall else 1
        for k in range(1, nf): A(f"v_add_u32 v{F+8+k}, {8192*k}, v{FIN+7}")
        A(f"s_mov_b32 s{sCNT}, 0\nL_pf:")
        for k in range(nf): A(f"global_load_dword v{F+k}, v{F+8+k if k else FIN+7}, s[{sWS}:{sWS+1}] sc1")
        A(f"s_add_u32 s{sCNT}, s{sCNT}, 1\ns_waitcnt vmcnt(0)")
        if fall: A(f"v_bitop3_b32 v5, v{F}, v{F+1}, s{sT} bitop3:0x7e\nv_bitop3_b32 v5, v5, v{F+2}, s{sT} bitop3:0xf6\nv_bitop3_b32 v5, v5, v{F+3}, s{sT} bitop3:0xf6\nv_cmp_ne_u32 vcc, 0, v5")
        else: A(f"v_cmp_ne_u32 vcc, s{sT}, v{F}")
        A(f"s_and_b64 exec, exec, vcc\ns_cbranch_scc0 L_pf_x\ns_cmp_lt_u32 s{sCNT}, 4096\ns_cbranch_scc1 L_pf\nL_pf_x:\ns_mov_b64 exec, -1")
        if fdelay: A(f"s_sleep {fdelay}")
    if pipeS: pollpipe("L_pollS", [(XR+4, 0), (XR+5, 0)][:1 if g2 else 2], [160 + 8*r for r in range(pipeS)], G, 7, stagS)
    else: poll("L_pollS", [(G, 4, XR+4, 0), (G+4, 4, XR+5, 0)][:1 if hack in (1, 2) else 2], 7)
    stamp("gathS")
    if hack == 7: A("s_branch L_h7")
    D2 = lambda r, b: f"v_add_f32_dpp v{r}, v{r}, v{r} {DPP[b]} row_mask:0xf bank_mask:0xf"
    if g2:
        f_, s_ = G + 2, G
        for a in (f_, s_): A(f"v_permlane32_swap_b32 v{a}, v{a+1}")
        for a in (f_, s_): A(f"v_add_f32 v{a}, v{a}, v{a+1}")
        for a in (f_, s_): A(f"v_mov_b32 v{a+1}, v{a}")
        for a in (f_, s_): A(f"v_permlane16_swap_b32 v{a}, v{a+1}")
        for a in (f_, s_): A(f"v_add_f32 v{a}, v{a}, v{a+1}")
    else:
        f_, s_ = G + 4, G
        for a in (f_, f_+1, s_, s_+1): A(f"v_permlane32_swap_b32 v{a}, v{a+2}")
        for a in (f_, s_): A(f"v_pk_add_f32 {v(a,2)}, {v(a,2)}, {v(a+2,2)}")
        for a in (f_, s_): A(f"v_permlane16_swap_b32 v{a}, v{a+1}")
        for a in (f_, s_): A(f"v_add_f32 v{a}, v{a}, v{a+1}")
    for b in range(4): A(D2(f_, b) + ("\n" + D2(s_, b) if b < 3 else ""))
    bf16r(6, f_)
    A(f"v_add_f32 v6, v6, v{FIN+1}"); bf16r(6, 6)
    A(f"v_mul_f32 v7, {LOG2E ^ 0x80000000}, v6\nv_exp_f32 v7, v7\n{D2(s_, 3)}\nv_add_f32 v7, 1.0, v7\nv_rcp_f32 v7, v7")
    bf16r(5, s_)
    A("v_mul_f32 v6, v6, v7"); bf16r(6, 6)
    A("v_mul_f32 v5, v5, v6"); bf16r(5, 5)
    A(f"v_add_f32 v5, v5, v{FIN}\nv_cvt_pk_bf16_f32 v5, v5, v5")
    if hack == 7: A("L_h7:")
    if hops: A("s_branch L_hop0\nL_hopback:")
    if echo:
        r = 64 + 2*CNAMES.index(lx)
        A(f"s_cmp_eq_u32 s2, 0\ns_cbranch_scc0 L_noecho\ns_memrealtime s[58:59]\ns_waitcnt lgkmcnt(0)\ns_sub_u32 s40, s{r}, s64")
        if eskew:
            A(f"s_load_dwordx8 s[32:39], s[{sWS}:{sWS+1}], 0x2000 glc\ns_waitcnt lgkmcnt(0)")
            if eskew == 1:
                A("s_mov_b32 s40, s32\ns_mov_b32 s41, s32")
                for k in range(1, 8): A(f"s_max_u32 s40, s40, s{32+k}\ns_min_u32 s41, s41, s{32+k}")
                A("s_sub_u32 s40, s40, s41")
            elif eskew == 2:
                A("s_add_u32 s40, s36, s37\ns_add_u32 s40, s40, s38\ns_add_u32 s40, s40, s39\ns_sub_u32 s40, s40, s32\ns_sub_u32 s40, s40, s33\ns_sub_u32 s40, s40, s34\ns_sub_u32 s40, s40, s35\ns_add_u32 s40, s40, 600\ns_lshr_b32 s40, s40, 2")
            else:
                A("s_mov_b32 s41, s32")
                for k in range(1, 8): A(f"s_min_u32 s41, s41, s{32+k}")
                A(f"s_sub_u32 s40, s{32+eskew-10}, s41")
        A(f"s_mul_i32 s40, s40, {echo}\ns_min_u32 s40, s40, 20000")
        A("L_echo:\ns_memrealtime s[60:61]\ns_waitcnt lgkmcnt(0)\ns_sub_u32 s41, s60, s58\ns_cmp_lt_u32 s41, s40\ns_cbranch_scc1 L_echo\nL_noecho:")
    if chain:
        A("s_cmp_eq_u32 s2, 0\ns_cbranch_scc0 L_nochain\nv_mov_b32 v6, 0")
        for k in range(chain):
            A(f"global_load_dword v7, v6, s[{sK if k % 2 else sV}:{(sK if k % 2 else sV)+1}] nt\ns_waitcnt vmcnt(0)\nv_add_u32 v6, {(k % 2) << 23}, v6")
        A("L_nochain:")
    A("s_mov_b32 exec_lo, 1\ns_mov_b32 exec_hi, 1" if g2 else "s_mov_b32 exec_lo, 0x00010001\ns_mov_b32 exec_hi, 0x00010001")
    A(f"global_store_short v{FIN+2}, v5, s[{sOUT}:{sOUT+1}] {outfl}")
    A(f"s_or_b32 s40, s2, s{sWAVE}\ns_cbranch_scc1 L_Cdone")
    A(f"s_mov_b64 exec, 1\nv_mov_b32 v5, 0\nglobal_store_dword v5, v{vTG}, s[{sWS}:{sWS+1}]")
    A("L_Cdone:")
    stamp("end")
    dump()
    A("s_endpgm")
    if g2 and not diag and not lite: A("L_Cbar:\ns_waitcnt lgkmcnt(0)\ns_barrier\ns_endpgm")

    cpart = A.L; A.L = []
    role[0] = "S"
    KO, PM = 4, 12
    VV, KF, XP, A1, A2 = 32, 96, 112, 144, 148
    EA = 152
    sW = 33
    if jk: A(f"s_xor_b32 s{sJ}, s{sJ}, {jk}")
    A(f"s_lshr_b32 s34, s2, 7\ns_lshl_b32 s34, s34, 3\ns_add_u32 s34, s34, s{sXC}\ns_lshl_b32 s34, s34, 23\ns_and_b32 s35, s{sJ}, 15")
    if pat >= 3:
        R = {3: "s_and_b32 s46, s2, 3", 4: f"s_and_b32 s46, s{sJ}, 3", 5: f"s_lshr_b32 s46, s{sJ}, 2\ns_add_u32 s46, s46, s2\ns_and_b32 s46, s46, 3",
             6: f"s_bfe_u32 s46, s{sJ}, 0x20002", 7: f"s_and_b32 s46, s{sWAVE}, 3", 8: f"s_add_u32 s46, s2, s{sJ}\ns_and_b32 s46, s46, 3",
             9: "s_bfe_u32 s46, s2, 0x20001", 10: f"s_lshr_b32 s46, s2, 6\ns_and_b32 s46, s46, 2\ns_xor_b32 s46, s46, s2\ns_and_b32 s46, s46, 3",
             11: f"s_add_u32 s46, s2, s{sWAVE}\ns_and_b32 s46, s46, 3",
             12: f"s_add_u32 s46, s2, s{sJ}\ns_add_u32 s46, s46, s{sWAVE}\ns_and_b32 s46, s46, 3",
             13: f"s_lshr_b32 s46, s{sJ}, 2\ns_add_u32 s46, s46, s{sJ}\ns_add_u32 s46, s46, s2\ns_and_b32 s46, s46, 3",
             14: f"s_lshr_b32 s46, s2, 2\ns_add_u32 s46, s46, s2\ns_and_b32 s46, s46, 3",
             15: f"s_lshr_b32 s46, s{sJ}, 4\ns_add_u32 s46, s46, s{sJ}\ns_add_u32 s46, s46, s2\ns_and_b32 s46, s46, 3"}[pat]
        A(R + "\ns_lshl_b32 s36, s46, 18\ns_add_u32 s34, s34, s36")
    if pat != 1:
        A(f"s_lshl_b32 s35, s35, 2\ns_add_u32 s35, s35, s{sWAVE}\ns_lshl_b32 s35, s35, 12\ns_add_u32 s34, s34, s35\ns_add_u32 s34, s34, {28672*256 - 4*4096}")
    else:
        A(f"s_lshl_b32 s36, s{sWAVE}, 4\ns_add_u32 s35, s35, s36\ns_lshl_b32 s35, s35, 12\ns_add_u32 s34, s34, s35\ns_add_u32 s34, s34, {28672*256 - 64*4096}")
    A(f"v_lshlrev_b32 v14, 2, v2\nv_xor_b32 v14, v14, v1\nv_lshlrev_b32 v14, 4, v14\nv_lshl_add_u32 v{KO}, v2, 8, v14")
    for i in range(1, 4): A(f"v_xor_b32 v{KO+i}, {16*i}, v{KO}")
    A(f"s_lshl_b32 s36, s{sWAVE}, 14\ns_sub_u32 s36, s36, {4*16384 - L_K}")
    if not coop: A("s_waitcnt lgkmcnt(0)")
    pr(1)
    addbase(sK, "s34")
    def setup2():
        karg2()
        addbase(sV, "s34")
        A(f"s_sub_u32 s{sW}, s{sWAVE}, 4\nv_lshlrev_b32 v3, 4, v0\ns_lshl_b32 s37, s{sW}, 2\nv_mov_b32 v14, s37\nv_mov_b32 v15, 1")
        if boost: A(f"s_xor_b32 s38, s{sJ}, {jq ^ 1}\ns_and_b32 s38, s38, 3\ns_cselect_b64 vcc, 0, -1")
        pr(0)
        A("s_barrier")
    if not head: setup2()
    stamp("first")
    later = Asm()
    B = later
    B(f"v_and_b32 v26, 3, v0\nv_lshlrev_b32 v26, 4, v26\nv_mov_b32 v{PM}, 0xffff\nv_mov_b32 v{PM+1}, 0\nv_lshlrev_b64 v[{PM}:{PM+1}], v26, v[{PM}:{PM+1}]")
    B(f"s_lshl_b32 s38, s{sW}, 10\nv_lshl_add_u32 v{EA+1}, v0, 4, s38")
    B(f"s_lshl_b32 s38, s{sW}, 11\nv_lshl_add_u32 v{EA+2}, v0, 4, s38")
    B(f"v_and_b32 v24, 1, v0\nv_lshlrev_b32 v24, 10, v24\nv_bfe_u32 v25, v0, 1, 4\nv_lshl_add_u32 v24, v25, 4, v24\ns_lshl_b32 s38, s{sW}, 8\nv_add_u32 v{EA+3}, s38, v24")
    B(f"s_lshl_b32 s38, s{sXC}, 2\ns_add_u32 s38, s38, s{sW}\ns_lshr_b32 s39, s{sJ}, 4\ns_and_b32 s40, s{sJ}, 7\ns_bfe_u32 s41, s{sJ}, 0x10003")
    B(f"s_lshl_b32 s39, s39, 7\ns_lshl_b32 s40, s40, 4\ns_add_u32 s39, s39, s40")
    B(f"s_lshl_b32 s40, s38, 14\ns_lshl_b32 s42, s41, 10\ns_add_u32 s40, s40, s42\ns_add_u32 s40, s40, s39\ns_add_u32 s40, s40, {OP}")
    B(f"v_bfe_u32 v24, v0, 2, 3\nv_lshlrev_b32 v24, 11, v24\nv_and_b32 v25, 3, v0\nv_lshl_add_u32 v24, v25, 8, v24\nv_add_u32 v{EA+4}, s40, v24")
    B(f"s_lshl_b32 s38, s38, 9\ns_lshl_b32 s41, s41, 8\ns_add_u32 s38, s38, s41\ns_add_u32 s38, s38, s39\ns_add_u32 s38, s38, {ML}\nv_mov_b32 v25, s38")
    B(f"s_mov_b32 s42, -1\ns_mov_b32 s43, 0\ns_lshl_b32 s38, s{sXC}, 5\ns_add_u32 s38, s38, s{sJ}\nv_cndmask_b32 v{EA+4}, v25, v{EA+4}, s[42:43]")
    B(f"s_lshl_b32 s38, s38, 2\ns_add_u32 s38, s38, s{sW}\ns_lshl_b32 s38, s38, 9\ns_add_u32 s38, s38, {OP}\nv_lshl_add_u32 v{EA+9}, v0, 4, s38\nv_cndmask_b32 v{EA+9}, v25, v{EA+9}, s[42:43]")
    B(f"s_lshl_b32 s38, s{sW}, 4\nv_mov_b32 v{EA+6}, s38\nv_mov_b32 v{EA+8}, {TAGM}")
    chunks = [later.L[i::1] for i in (0,)][0]
    per = -(-len(chunks) // 8)
    def bump(r, T):
        if pat >= 3:
            A(f"s_xor_b32 s45, s46, {T+1}\ns_xor_b32 s44, s46, {T}\ns_sub_i32 s44, s45, s44\ns_lshl_b32 s44, s44, 18\ns_ashr_i32 s45, s44, 31")
            return A(f"s_add_u32 s{r}, s{r}, s44\ns_addc_u32 s{r+1}, s{r+1}, s45")
        if pat != 2: return addbase(r, 262144)
        A(f"s_and_b32 s44, s{sJ}, 3\ns_xor_b32 s45, s44, {T+1}\ns_xor_b32 s44, s44, {T}\ns_sub_u32 s44, s45, s44\ns_add_u32 s44, s44, 16\ns_lshl_b32 s44, s44, 14")
        addbase(r, "s44")
    cnt = [0]
    def after():
        cnt[0] += 1
        n = cnt[0]
        if n == head: setup2()
        if n == 13: A(f"s_waitcnt lgkmcnt(0)\ns_load_dword s{sT}, s[{sWS}:{sWS+1}], 0")
        if n == trig: A(f"ds_write_b32 v14, v15 offset:{L_FT}")
        if 4 <= n < 12:
            for line in chunks[(n-4)*per:(n-3)*per]: A(line)
        p = paceK if n <= 16 else (paceV if n - 16 <= paceVUntil else 0)
        if dip and trig - 2 <= n < trig - 2 + dip: p -= dipw
        if p and n + (2 if coop and n < p else 0) >= p and n < 32:
            if n <= boost: A(f"s_waitcnt vmcnt({p-1+bw})\ns_cbranch_vccnz L_b{n}\ns_waitcnt vmcnt({p-1})\nL_b{n}:")
            else: A(f"s_waitcnt vmcnt({p-1})")
        if coop and n == paceK - 1:
            assert n >= head
            A(f"ds_write_b32 v14, v15 offset:{L_FW+16}")
        if n == 16: stamp("Kiss")
    for T in range(4):
        A(f"s_mov_b32 m0, s36\ns_add_u32 s36, s36, 4096")
        for i in range(4):
            A(f"global_load_lds_dwordx4 v{KO+i}, s[{sK}:{sK+1}] offset:{1024*i} {nt}"); after()
        if T < 3: bump(sK, T)
    for n in range(16):
        A(f"global_load_dwordx4 {v(VV+4*n,4)}, v3, s[{sV}:{sV+1}] offset:{1024*(n&3)} {nt}"); after()
        if n == kpos: A(f"s_waitcnt vmcnt({n+1})\nds_write_b32 v14, v15 offset:{L_FK}")
        if n == fvpos and not woTrig: A(f"ds_write_b32 v14, v15 offset:{L_FV}")
        if n & 3 == 3 and n < 15: bump(sV, n >> 2)
    stamp("issued")
    get_tag()
    A(f"v_mov_b32 v{EA+7}, s{sT}\ns_mov_b32 s36, {LOG2E}")
    waitflag("L_wfP", L_FP, 1, 4, 14)
    A(f"s_mov_b32 s40, s52\nds_read_b128 v[4:7], v{EA+1} offset:{L_P}\ns_waitcnt lgkmcnt(0)")
    for T in range(4):
        for i in range(4):
            for j in range(2):
                A(f"v_and_b32_dpp v{XP+2*(4*T+i)+j}, v{4+T}, v{PM+j} quad_perm:[{i},{i},{i},{i}] row_mask:0xf bank_mask:0xf")
    stamp("pready")
    for n in range(16):
        if opt and n == wpos:
            A("v_mov_b32 v8, 0")
            waitflag("L_wfP4", L_FP, 4, 4, 8)
            A(f"ds_read_b128 v[16:19], v{EA+6} offset:{L_MX}\nds_read_b128 v[20:23], v{EA+6} offset:{L_LW}\ns_waitcnt lgkmcnt(1)")
            A(f"v_max3_f32 v24, v16, v17, v18\nv_max_f32 v24, v24, v19\nv_mul_f32 v25, {LOG2E ^ 0x80000000}, v24")
            for i in range(4): A(f"v_fma_f32 v{16+i}, v{16+i}, s36, v25")
            for i in range(4): A(f"v_exp_f32 v{8+2*i}, v{16+i}")
            A("s_waitcnt lgkmcnt(0)\nv_mul_f32 v25, v20, v8\nv_fmac_f32 v25, v21, v10\nv_fmac_f32 v25, v22, v12\nv_fmac_f32 v25, v23, v14")
        A(f"s_waitcnt vmcnt({15-n})")
        if woTrig == n + 1: A(f"ds_write_b32 v14, v15 offset:{L_FV}")
        A(f"v_mfma_f32_16x16x16_bf16 {v(A1,4)}, {v(XP+2*n,2)}, {v(VV+4*n,2)}, {v(A1,4) if n else 0}")
        A(f"v_mfma_f32_16x16x16_bf16 {v(A2,4)}, {v(XP+2*n,2)}, {v(VV+4*n+2,2)}, {v(A2,4) if n else 0}")
    stamp("PVdone")
    if hack == 4:
        for i in range(2): A(f"v_cndmask_b32 v{A1+i}, v{24+i}, v{A1+i}, s[42:43]")
        tag(A1, 4, EA+7)
        A("s_mov_b32 exec_hi, 1"); store(EA+4, A1, 4, sWS); A("s_barrier\ns_endpgm")
    A(f"ds_write_b128 v{EA+2}, {v(A1,4)} offset:{L_O}\nds_write_b128 v{EA+2}, {v(A2,4)} offset:{L_O+1024}")
    A("s_waitcnt lgkmcnt(0)\ns_barrier")
    stamp("barC")
    if opt:
        for i in range(4): A(f"ds_read_b128 {v(KF+4*i,4)}, v{EA+3} offset:{L_O+2048*i}")
        A("s_waitcnt lgkmcnt(3)")
        for i in (0, 2): A(f"v_pk_mul_f32 {v(KF+i,2)}, {v(KF+i,2)}, v[8:9] op_sel_hi:[1,0]")
        for k in range(1, 4):
            A(f"s_waitcnt lgkmcnt({3-k})")
            for i in (0, 2): A(f"v_pk_fma_f32 {v(KF+i,2)}, {v(KF+4*k+i,2)}, {v(8+2*k,2)}, {v(KF+i,2)} op_sel_hi:[1,0,1]")
    else:
        A(f"ds_read_b128 v[16:19], v{EA+6} offset:{L_MX}\nds_read_b128 v[20:23], v{EA+6} offset:{L_LW}")
        for i in range(4): A(f"ds_read_b128 {v(KF+4*i,4)}, v{EA+3} offset:{L_O+2048*i}")
        A("s_waitcnt lgkmcnt(5)")
        A(f"v_max3_f32 v24, v16, v17, v18\nv_max_f32 v24, v24, v19\nv_mul_f32 v25, {LOG2E ^ 0x80000000}, v24")
        for i in range(4): A(f"v_fma_f32 v{16+i}, v{16+i}, s36, v25")
        for i in range(4): A(f"v_exp_f32 v{16+i}, v{16+i}")
        A("s_waitcnt lgkmcnt(3)")
        A("v_mul_f32 v25, v20, v16")
        for i in range(4): A(f"v_mul_f32 v{KF+i}, v{KF+i}, v16")
        A("v_fmac_f32 v25, v21, v17\nv_fmac_f32 v25, v22, v18\nv_fmac_f32 v25, v23, v19")
        for k in range(1, 4):
            A(f"s_waitcnt lgkmcnt({3-k})")
            for i in range(4): A(f"v_fmac_f32 v{KF+i}, v{KF+4*k+i}, v{16+k}")
    for i in range(2): A(f"v_cndmask_b32 v{KF+i}, v{24+i}, v{KF+i}, s[42:43]")
    tag(KF, 4, EA+7)
    A("s_mov_b32 exec_hi, 1")
    store(EA+4, KF, 4, sWS, ost)
    stamp("pub")
    A("s_cmp_eq_u32 s40, 1\ns_cbranch_scc1 L_Snob")
    store(EA+9, KF, 4, sWSB, "sc1")
    A("L_Snob:")
    dump()
    A("L_end:\ns_endpgm")
    A.L = entry + A.L + cpart
    if cpf: A(".fill 640, 4, 0xbf800000")
    for h in range(hops):
        A(f".p2align 10\nL_hop{h}:\ns_branch {'L_hop%d' % (h+1) if h + 1 < hops else 'L_hopback'}")

    head = (hdr or "") + DOC + f"; @launch grid=(256,1,1) block=(512,1,1) lds={LDS_BYTES + (16384 if coop else 0) + (8192 if tr else 0)}\n"
    head += f'.amdgcn_target "amdgcn-amd-amdhsa--gfx950"\n.text\n.globl {K}\n.p2align 8\n.type {K},@function\n'
    tail = f""".section .rodata,"a"
.p2align 6
.amdhsa_kernel {K}
  .amdhsa_next_free_vgpr 216
  .amdhsa_next_free_sgpr 102
  .amdhsa_accum_offset 216
  .amdhsa_group_segment_fixed_size 0
  .amdhsa_kernarg_size 104
  .amdhsa_user_sgpr_count 2
  .amdhsa_user_sgpr_kernarg_segment_ptr 1
  .amdhsa_system_sgpr_workgroup_id_x 1
  .amdhsa_float_denorm_mode_32 3
.end_amdhsa_kernel
"""
    return head + A.finish() + tail

def header():
    ref = open(f"cdna_kernels/{NAME}.s.ref").read().split("\n")
    return "\n".join(l for l in ref if l.startswith(";") and "@launch" not in l and not l.startswith("; Override") and not l.startswith("; grid=")) + "\n"

if __name__ == "__main__":
    out = sys.argv[1] if len(sys.argv) > 1 else f"cdna_kernels/{NAME}.s"
    open(out, "w").write(gen(hdr=header()))
```

```python
import sys, os
sys.path.insert(0, os.path.dirname(os.path.abspath(__file__)))
from asmlib import Asm
NAME = "recurrent_scan__sliding_block_cached__dense_activation_squared_relu__decode"

FLG = 0x300000
IDS = 0x1000
QP, HP, OP, ML, SPS, SPF, STAMP = 0x10000, 0x50000, 0x100000, 0x180000, 0x200000, 0x250000, 0x400000
SPSTR = 1152
DELTA = 0x800000
L_K, L_Q, L_MX, L_LW, L_O, L_RED = 18432, 0, 1280, 1344, 1536, 9728
L_QSTR = 272
L_FT, L_FV, L_FQ, L_FK, L_FP = 1408, 1424, 1440, 1456, 1472
L_FW = 1488
L_W = 83968
L_W1 = L_W + 16384
L_XN = L_O + 2048
L_P = L_RED
LDS_BYTES = 83968
TAGM = 0x3ff
LOG2E = 0x3fb8aa3b
SCALE = 0x3db504f3

CNAMES = ["start", "issued", "LNdone", "pub1", "FT", "qgath", "FK", "pready", "FV", "first", "barC", "wohere", "gathO", "pubS", "gathS", "end"]
SNAMES = ["start", "first", "Kiss", "issued", "pready", "PVdone", "barC", "pub"]
DOC = """; One launch, 256 workgroups of 8 waves, one per CU.  Hand-offs between workgroups go through d_ws: every 32-bit word
; carries a per-launch tag in its low bits (tag = word 0 of d_ws at entry + 1, stored back at the end), readers spin until
; plain stores (visible through the die's L2) and, unless all 32 members have reported the same die id, a second time
"""
def v(a, n=1): return f"v{a}" if n == 1 else f"v[{a}:{a+n-1}]"

def gen(diag=False, nt="nt", limit=200000, hdr=None, hops=0, trig=19, paceK=7, paceV=7, kpos=5, warmLN=False,
        wofirst=False, pretouch=True, fbmask=31, prioC=0, diagwo=True, woTrig=0, spin=1, pat=0, owait=2, ackwait=True, head=3, lite=False, paceVUntil=16, fvpos=15, dirty=0, fsleep=0, lx="first", cpf=244, sfirst=True, probe=False, smtest=False, qst="", qld="sc1 nt", noq=False, noh=False, preQ=0, hlate=True, tlb=0, chain=0, echo=0, flag2=0, dfl="", ost="", hack=0, swap=False, opt=1, wpos=10, jx=0, jq=3, jk=0, wpat=0, boost=0, bw=1, pipeS=2, stagS=2, pipeO=0, stagO=1, spre="", sst="sc1", outfl="", ptpos=0, ptfl="sc1 nt", fall=False, fdelay=0, merge=True, mstr=2304, coop=True, latetag=True, eskew=0, tr=True, g2=True, kfirst=True, dip=0, dipw=2, k2top=True, q2=True, idst="", xfl="", pfl="sc1", ofl="sc1", cfl=""):
    A = Asm()
    sX, sK, sV, sWQ, sWO, sW1, sB1, sW2, sB2, sOUT, sWS = 4, 6, 8, 10, 12, 16, 18, 20, 22, 24, 26
    sT, sWAVE, sXC, sJ = 28, 29, 30, 31
    sCNT, sWSB, sID, sT8 = 46, 48, 50, 51
    role = ["C"]
    def stamp(k):
        names = SNAMES if role[0] == "S" else CNAMES
        if diag or ((lite or echo) and role[0] == "C" and k in ("start", "end", lx)): A(f"s_memrealtime s[{64+2*names.index(k)}:{65+2*names.index(k)}]")
    def addbase(r, off):
        A(f"s_add_u32 s{r}, s{r}, {off}\ns_addc_u32 s{r+1}, s{r+1}, 0")
    DPP = {0: "quad_perm:[1,0,3,2]", 1: "quad_perm:[2,3,0,1]", 2: "row_half_mirror", 3: "row_mirror"}
    def allred(regs, op, bits, tmp):
        for b in bits:
            for r in regs:
                if b < 4:
                    A(f"{op}_dpp v{r}, v{r}, v{r} {DPP[b]} row_mask:0xf bank_mask:0xf")
                else:
                    A(f"v_mov_b32 v{tmp}, v{r}")
                    A(f"v_permlane{16 if b == 4 else 32}_swap_b32 v{r}, v{tmp}")
                    A(f"{op} v{r}, v{r}, v{tmp}")
    def bf16r(dst, src):
        A(f"v_cvt_pk_bf16_f32 v{dst}, 0, v{src}")
    def unpack(dst, src, n):
        for i in range(n):
            A(f"v_lshlrev_b32 v{dst+2*i}, 16, v{src+i}\nv_and_b32 v{dst+2*i+1}, 0xffff0000, v{src+i}")
    def delta(dst, val, masks, n, tmp):
        A(f"v_cvt_pk_bf16_f32 v{tmp}, v{val}, v{val}")
        for j in range(n): A(f"v_and_b32 v{dst+j}, v{tmp}, v{masks+j}")
    def tag(r, n, vT):
        for i in range(n): A(f"v_bfi_b32 v{r+i}, v{vT+1}, v{vT}, v{r+i}")
    def issue(loads, base, fl="sc1"):
        for (d, n, a, off) in loads:
            A(f"global_load_dword{'x%d' % n if n > 1 else ''} {v(d, n)}, v{a}, s[{base}:{base+1}] offset:{off} {fl}")
    def check(dws, tmp, spare):
        parts = []
        for k in range(0, len(dws), 4):
            a, b, c, d = dws[k:k+4]
            u, w = spare + k // 2, spare + k // 2 + 1
            A(f"v_bitop3_b32 v{u}, v{a}, v{b}, v{c} bitop3:0x7e\nv_bitop3_b32 v{w}, v{c}, v{d}, s{sT} bitop3:0x7e")
            parts += [u, w]
        while len(parts) > 2:
            if len(parts) == 3: A(f"v_or_b32 v{parts[0]}, v{parts[0]}, v{parts[1]}"); parts = [parts[0], parts[2]]
            else: A(f"v_or3_b32 v{parts[0]}, v{parts[0]}, v{parts[1]}, v{parts[2]}"); parts = [parts[0]] + parts[3:]
        A(f"v_bitop3_b32 v{tmp}, v{parts[0]}, v{parts[1]}, v15 bitop3:0xa8\nv_cmp_ne_u32 vcc, 0, v{tmp}")
    def poll(name, loads, tmp, loadsB=None, first=None, narrow=False, strip=True, spare=None):
        A(f"s_mov_b32 s{sCNT}, 0")
        if first == 0: A(f"s_branch {name}_c")
        elif first is not None: A(f"s_waitcnt vmcnt({first})\ns_branch {name}_f")
        A(f"{name}:")
        if diag and name[-1] in "OS": A("s_memtime s[58:59]")
        issue(loads, sWS, ofl if name[-1] == "O" else qld if name[-1] in "QH" else pfl)
        dws = [r for (d, n, a, off) in loads for r in range(d, d + n)]
        A(f"{name}_c:\ns_waitcnt vmcnt(0)")
        A(f"{name}_f:")
        if diag and name[-1] in "OS":
            r = 60 if name[-1] == "O" else 62
            A(f"s_memtime s[100:101]\ns_waitcnt lgkmcnt(0)\ns_sub_u32 s{r+1}, s100, s58\ns_cmp_eq_u32 s{sCNT}, 2\ns_cselect_b32 s{r}, s{r+1}, s{r}")
        if strip:
            for d in dws: A(f"v_xor_b32 v{d}, s{sT8 if narrow else sT}, v{d}")
            A(f"v_or3_b32 v{tmp}, v{dws[0]}, v{dws[1]}, v{dws[2]}")
            for k in range(3, len(dws) - 1, 2): A(f"v_or3_b32 v{tmp}, v{tmp}, v{dws[k]}, v{dws[k+1]}")
            if len(dws) % 2 == 0: A(f"v_or_b32 v{tmp}, v{tmp}, v{dws[-1]}")
            A(f"v_and_b32 v{tmp}, {0xff if narrow else TAGM}, v{tmp}\nv_cmp_ne_u32 vcc, 0, v{tmp}")
        else: check(dws, tmp, 32)
        A(f"s_and_b64 exec, exec, vcc\ns_cbranch_scc0 {name}_x")
        A(f"s_add_u32 s{sCNT}, s{sCNT}, 1\ns_cmp_gt_u32 s{sCNT}, {limit}\ns_cbranch_scc1 {name}_x")
        if spare is not None:
            A(f"s_cmp_eq_u32 s{sCNT}, 1\ns_cbranch_scc0 {name}_n\ns_waitcnt vmcnt(0)")
            for k, d in enumerate(dws): A(f"v_mov_b32 v{d}, v{spare+k}")
            A(f"s_branch {name}_f\n{name}_n:")
        if loadsB:
            A(f"s_cmp_eq_u32 s53, 1\ns_cbranch_scc1 {name}\ns_and_b32 s52, s{sCNT}, 1\ns_cbranch_scc0 {name}")
            issue(loadsB, sWSB)
            A(f"s_branch {name}_c")
        else:
            A(f"s_branch {name}")
        A(f"{name}_x:\ns_mov_b64 exec, -1")
        if diag: A(f"s_mov_b32 s{ {'H':96,'Q':96,'O':97,'S':98}[name[-1]] }, s{sCNT}")
    def pollpipe(name, addrs, sets, final, tmp, stag, loadsB=None):
        nl = len(addrs); R = len(sets)
        def iss(r): issue([(sets[r] + 4*k, 4, a, off) for k, (a, off) in enumerate(addrs)], sWS, pfl)
        A(f"s_mov_b32 s{sCNT}, 0\ns_mov_b64 s[54:55], -1")
        for r in range(R):
            iss(r)
            if r < R - 1 and stag: A(f"s_sleep {stag}")
        A(f"{name}:")
        for r in range(R):
            dws = list(range(sets[r], sets[r] + 4*nl))
            A(f"s_waitcnt vmcnt({nl*(R-1)})")
            check(dws, tmp, 32)
            A("s_andn2_b64 exec, exec, vcc")
            for k, d in enumerate(dws): A(f"v_xor_b32 v{final+k}, s{sT}, v{d}")
            A(f"s_and_b64 exec, s[54:55], vcc\ns_cbranch_scc0 {name}_x\ns_mov_b64 s[54:55], exec")
            iss(r)
        A(f"s_add_u32 s{sCNT}, s{sCNT}, 1\ns_cmp_lt_u32 s{sCNT}, {limit}\ns_cbranch_scc1 {name}")
        A(f"{name}_x:\ns_mov_b64 exec, -1")
        if diag: A(f"s_mov_b32 s{ {'O':97,'S':98}[name[-1]] }, s{sCNT}")
    def store(addr, data, n, base, fl=""):
        A(f"global_store_dwordx{n} v{addr}, {v(data,n)}, s[{base}:{base+1}] {fl}")
    def waitflag(name, off, n, t, addr):
        A(f"{name}:\nds_read_b{32*n} {v(t,n)}, v{addr} offset:{off}\ns_waitcnt lgkmcnt(0)")
        if n == 4: A(f"v_and_b32 v{t}, v{t}, v{t+1}\nv_and_b32 v{t+2}, v{t+2}, v{t+3}\nv_and_b32 v{t}, v{t}, v{t+2}")
        A(f"v_readfirstlane_b32 s52, v{t}\ns_cmp_lg_u32 s52, 0\ns_cbranch_scc1 {name}_x\ns_sleep {spin}\ns_branch {name}\n{name}_x:")
    def wsb():
        A(f"s_add_u32 s{sWSB}, s{sWS}, {DELTA}\ns_addc_u32 s{sWSB+1}, s{sWS+1}, 0")
    def get_tag(b=True):
        if b: wsb()
        A(f"s_waitcnt lgkmcnt(0)\ns_add_u32 s{sT}, s{sT}, 1\ns_and_b32 s{sT}, s{sT}, {TAGM}\ns_and_b32 s{sT8}, s{sT}, 0xff")
        A(f"s_getreg_b32 s{sID}, hwreg(HW_REG_XCC_ID)\ns_lshl_b32 s{sID}, s{sID}, 10\ns_or_b32 s{sID}, s{sID}, s{sT}")
    def pr(k):
        if probe: A(f"s_memrealtime s[{96+2*k}:{97+2*k}]")
    def dump():
        if probe:
            A(f"s_waitcnt lgkmcnt(0)\ns_lshl_b32 s40, s2, 3\ns_add_u32 s40, s40, s{sWAVE}\ns_lshl_b32 s40, s40, 4\ns_add_u32 s40, s40, {STAMP+0x10000}")
            A(f"s_mov_b64 exec, 1\nv_mov_b32 v5, s40\nv_mov_b32 v6, s64\nv_mov_b32 v7, s96\nv_mov_b32 v8, s98\nglobal_store_dwordx3 v5, v[6:8], s[{sWS}:{sWS+1}]")
        if lite and role[0] == "C":
            A(f"s_waitcnt lgkmcnt(0)\ns_lshl_b32 s40, s2, 2\ns_add_u32 s40, s40, s{sWAVE}\ns_lshl_b32 s40, s40, 4\ns_add_u32 s40, s40, {STAMP}")
            A(f"s_mov_b64 exec, 1\nv_mov_b32 v5, s40\nv_mov_b32 v6, s64\nv_mov_b32 v7, s94\nv_mov_b32 v8, s{64+2*CNAMES.index(lx)}\nglobal_store_dwordx3 v5, v[6:8], s[{sWS}:{sWS+1}]")
        if not diag: return
        A("s_waitcnt lgkmcnt(0)")
        A(f"s_lshl_b32 s40, s2, 3\ns_add_u32 s40, s40, s{sWAVE}\ns_lshl_b32 s40, s40, 7\ns_add_u32 s40, s40, {STAMP}")
        A("s_mov_b64 exec, 1\nv_mov_b32 v5, s40")
        for k in range(16):
            A(f"v_mov_b32 v6, s{64+2*k}\nglobal_store_dword v5, v6, s[{sWS}:{sWS+1}] offset:{4*k}")
        for k in range(4):
            A(f"v_mov_b32 v6, s{60+k}\nglobal_store_dword v5, v6, s[{sWS}:{sWS+1}] offset:{80+4*k}")
        A(f"s_getreg_b32 s40, hwreg(HW_REG_HW_ID)\nv_mov_b32 v6, s40\nglobal_store_dword v5, v6, s[{sWS}:{sWS+1}] offset:96")
        for k in range(4):
            A(f"v_mov_b32 v6, s{96+k}\nglobal_store_dword v5, v6, s[{sWS}:{sWS+1}] offset:{64+4*k}")

    K = NAME + "_kernel"
    A(f"{K}:")
    stamp("start")
    A("s_load_dwordx16 s[4:19], s[0:1], 0")
    if cpf:
        A(f"s_getpc_b64 s[40:41]\nv_mul_u32_u24 v5, 20, v0\nglobal_load_dword v211, v5, s[40:41] offset:{cpf} {cfl}")
    def karg2(top=False):
        if top == k2top: A("s_load_dwordx4 s[20:23], s[0:1], 64\ns_load_dwordx2 s[24:25], s[0:1], 80\ns_load_dwordx2 s[26:27], s[0:1], 96")
    karg2(True)
    A("v_lshrrev_b32 v1, 6, v0\nv_and_b32 v0, 63, v0")
    A(f"s_lshr_b32 s{sJ}, s2, 3\ns_and_b32 s{sXC}, s2, 7")
    if jx: A(f"s_xor_b32 s{sJ}, s{sJ}, {jx}")
    A(f"v_readfirstlane_b32 s{sWAVE}, v1")
    A(f"s_cmp_ge_u32 s{sJ}, 32\ns_cbranch_scc1 L_end")
    if swap: A(f"s_xor_b32 s{sWAVE}, s{sWAVE}, 4")
    A("v_and_b32 v1, 15, v0\nv_lshrrev_b32 v2, 4, v0")
    if diag:
        for k in range(1, 18): A(f"s_mov_b64 s[{64+2*k}:{65+2*k}], 0")
        A("s_mov_b64 s[60:61], 0\ns_mov_b64 s[62:63], 0")
    if coop:
        if tr:
            A(f"s_and_b32 s40, s{sJ}, 7\ns_lshl_b32 s41, s{sXC}, 3\ns_add_u32 s40, s40, s41\ns_lshl_b32 s40, s40, 7")
            A(f"s_and_b32 s41, s{sJ}, 24\ns_add_u32 s41, s41, s{sWAVE}\ns_lshl_b32 s41, s41, 17\ns_add_u32 s40, s40, s41")
            A("v_and_b32 v4, 7, v0\nv_lshrrev_b32 v6, 3, v0\nv_and_b32 v7, 2, v6\nv_xor_b32 v7, v7, v4\nv_lshlrev_b32 v7, 4, v7")
            A("v_lshl_add_u32 v8, v6, 13, v7\nv_xor_b32 v9, 64, v8\nv_add_u32 v9, 64512, v9")
            A(f"s_lshl_b32 s41, s{sWAVE}, 11\ns_add_u32 m0, s41, {L_W}")
            A("v_and_b32 v3, 1, v6\nv_lshl_add_u32 v5, v2, 3, v4\nv_lshlrev_b32 v5, 5, v5\nv_lshl_add_u32 v5, v3, 10, v5")
        else:
            A(f"s_xor_b32 s40, s{sJ}, {jq}\ns_lshr_b32 s41, s40, 2\ns_and_b32 s40, s40, 3\ns_lshl_b32 s42, s{sXC}, 2\ns_add_u32 s40, s40, s42\ns_lshl_b32 s40, s40, 8")
            A(f"s_lshl_b32 s41, s41, 5\ns_add_u32 s41, s41, s{sWAVE}\ns_lshl_b32 s41, s41, 14\ns_add_u32 s40, s40, s41")
            A("v_lshlrev_b32 v8, 17, v2\nv_lshl_add_u32 v8, v1, 4, v8\nv_add_u32 v9, 7168, v8")
            A(f"s_lshl_b32 s41, s{sWAVE}, 11\ns_add_u32 m0, s41, {L_W}")
            A("v_bfe_u32 v3, v0, 3, 1\nv_and_b32 v4, 7, v0\nv_lshl_add_u32 v5, v2, 3, v4\nv_lshlrev_b32 v5, 5, v5\nv_lshl_add_u32 v5, v3, 10, v5")
        A(f"s_cmp_lt_u32 s{sWAVE}, 2\ns_waitcnt lgkmcnt(0)\ns_cbranch_scc0 L_nox")
        A(f"global_load_dwordx4 v[16:19], v5, s[{sX}:{sX+1}] {xfl}\nglobal_load_dwordx4 v[20:23], v5, s[{sX}:{sX+1}] offset:16 {xfl}\nL_nox:")
        addbase(sWQ, "s40")
        if lite or echo: stamp("first")
        A(f"global_load_lds_dwordx4 v8, s[{sWQ}:{sWQ+1}] {nt}\nglobal_load_lds_dwordx4 v9, s[{sWQ}:{sWQ+1}] offset:1024 {nt}")
    A(f"s_cmp_lt_u32 s{sWAVE}, 4\ns_cbranch_scc1 L_C")
    entry = A.L; A.L = []
    A(".p2align 8\nL_C:")
    if not coop: A("v_bfe_u32 v3, v0, 3, 1\nv_and_b32 v4, 7, v0")
    A(f"s_cmp_ge_u32 s{sWAVE}, 2\ns_cbranch_scc1 L_Cnoffn")

    MASK = 10; vTG = 14
    XS, XR, F, XO, W, ACC = 16, 24, 32, 48, 112, 176
    B1R = 180
    XF = 184
    FIN = 200
    def masks():
        A("v_and_b32 v5, 3, v0\nv_lshlrev_b32 v5, 4, v5\nv_mov_b32 v6, 0xffff\nv_mov_b32 v7, 0\nv_lshlrev_b64 v[6:7], v5, v[6:7]")
        A("v_cmp_gt_u32 vcc, 4, v4")
        A(f"v_cndmask_b32 v{MASK}, 0, v6, vcc\nv_cndmask_b32 v{MASK+1}, 0, v7, vcc")
        A(f"v_cndmask_b32 v{MASK+2}, v6, 0, vcc\nv_cndmask_b32 v{MASK+3}, v7, 0, vcc")
    if tr:
        A(f"s_cmp_eq_u32 s{sWAVE}, 0\ns_cbranch_scc1 L_Cwdone\ns_cmp_eq_u32 s{sXC}, 7\ns_cbranch_scc1 L_Cnoffn")
        A(f"s_lshr_b32 s40, s{sJ}, 2\ns_mul_i32 s39, s40, {64*3584}\ns_and_b32 s41, s{sJ}, 3\ns_lshl_b32 s42, s{sXC}, 2\ns_add_u32 s41, s41, s42\ns_lshl_b32 s42, s41, 7\ns_add_u32 s39, s39, s42")
        A(f"v_mul_u32_u24 v8, 3584, v6\nv_xor_b32 v9, 64, v7\nv_add_u32 v9, v9, v8\nv_add_u32 v9, {8*3584-1024}, v9\nv_add_u32 v8, v8, v7")
        addbase(sW1, "s39")
        for t in range(0, 8, 2):
            A(f"s_mov_b32 m0, {L_W1 + 1024*t}")
            if t: addbase(sW1, 16*3584)
            A(f"global_load_lds_dwordx4 v8, s[{sW1}:{sW1+1}] {nt}\nglobal_load_lds_dwordx4 v9, s[{sW1}:{sW1+1}] offset:1024 {nt}")
        A("L_Cwdone:")
        karg2()
        if k2top: A(f"s_load_dword s{sT}, s[{sWS}:{sWS+1}], 0")
        pr(0)
        A("s_barrier")
        stamp("issued")
        A(f"v_mov_b32 v{XF}, v5")
        A(f"s_cmp_eq_u32 s{sWAVE}, 1\ns_cbranch_scc1 L_Cp1")
        A(f"s_lshr_b32 s40, s{sJ}, 3\ns_lshl_b32 s34, s40, 8\ns_mov_b32 s35, {L_W}")
        A(f"s_bfe_u32 s41, s{sJ}, 0x20001\ns_lshl_b32 s42, s{sXC}, 2\ns_add_u32 s41, s41, s42\ns_lshl_b32 s41, s41, 2\ns_add_u32 s41, s41, s40\ns_lshl_b32 s41, s41, 1")
        A(f"s_and_b32 s42, s{sJ}, 1\ns_add_u32 s41, s41, s42\ns_lshl_b32 s37, s41, 8\ns_add_u32 s37, s37, {QP}\ns_mov_b32 s38, {32*4*512}\ns_branch L_Cpa")
        A(f"L_Cp1:\ns_lshl_b32 s34, s40, 7\ns_mov_b32 s35, {L_W1}\ns_mul_i32 s37, s40, 7168\ns_lshl_b32 s41, s41, 8\ns_add_u32 s37, s37, s41\ns_add_u32 s37, s37, {HP}\ns_mov_b32 s38, {8*7168}")
        A("L_Cpa:")
        A("v_bfe_u32 v5, v0, 1, 2\nv_lshl_add_u32 v5, v5, 2, v2\nv_lshl_add_u32 v9, v5, 4, s37\nv_and_b32 v5, 1, v0\nv_mad_u32_u24 v9, v5, s38, v9")
        if preQ: A(f"global_load_dword v210, v9, s[{sWS}:{sWS+1}] sc1")
        A(f"v_lshl_add_u32 v6, v2, 3, v4\nv_lshlrev_b32 v6, 3, v6\nv_lshl_add_u32 v{XF+1}, v3, 10, v6\nv_add_u32 v{XF+1}, s34, v{XF+1}")
        A(f"s_lshl_b32 s40, s{sWAVE}, 9\nv_lshl_add_u32 v{XF+2}, v3, 8, v6\nv_add_u32 v{XF+2}, s40, v{XF+2}")
        A(f"v_lshlrev_b32 v{XF+3}, 8, v5\nv_lshl_add_u32 v{XF+3}, v2, 4, v{XF+3}\nv_add_u32 v{XF+3}, s40, v{XF+3}")
        A(f"v_bfe_u32 v5, v0, 2, 2\nv_and_b32 v6, 3, v0\nv_lshlrev_b32 v6, 3, v6\nv_lshl_add_u32 v6, v5, 7, v6\nv_lshl_add_u32 v6, v2, 10, v6")
        A(f"v_and_b32 v5, 2, v5\nv_lshl_add_u32 v6, v5, 4, v6\nv_and_b32 v5, 1, v2\nv_lshl_add_u32 v6, v5, 6, v6")
        for cg in range(4): A(f"v_xor_b32 v7, {32*cg}, v6\nv_add_u32 v{XF+4+cg}, s35, v7")
        A("v_and_b32 v5, 2, v0\nv_cmp_ne_u32 s[54:55], 0, v5\nv_and_b32 v5, 4, v0\nv_cmp_ne_u32 s[56:57], 0, v5")
        masks()
        A(f"s_cmp_eq_u32 s{sWAVE}, 1\ns_cbranch_scc1 L_Cw8\ns_waitcnt vmcnt({2+preQ})\nL_Cw8:\ns_waitcnt vmcnt({10+preQ})\nL_Cw:")
        A(f"ds_write_b128 v{XF}, {v(XS,4)} offset:{L_O}\nds_write_b128 v{XF}, {v(XS+4,4)} offset:{L_O+16}")
        A(f"ds_read_b64 {v(XR,2)}, v{XF+1} offset:{L_O}")
    else:
        if jq: A(f"s_xor_b32 s{sJ}, s{sJ}, {jq}")
        A(f"s_sub_u32 s33, 2, s{sWAVE}\ns_lshr_b32 s40, s{sJ}, s33\ns_lshl_b32 s41, s40, s33\ns_sub_u32 s41, s{sJ}, s41\ns_lshl_b32 s42, s{sXC}, s33\ns_add_u32 s41, s41, s42")
        if jq: A(f"s_xor_b32 s{sJ}, s{sJ}, {jq}")
        A(f"s_movk_i32 s32, 8192\ns_cmp_eq_u32 s{sWAVE}, 1\ns_cmovk_i32 s32, 3584")
        if wpat == 1:
            A("s_add_u32 s34, s33, 4\ns_lshl_b32 s39, s32, s34\ns_mul_i32 s39, s40, s39\ns_lshl_b32 s35, s32, 3\ns_lshl_b32 s42, s41, 8\ns_add_u32 s39, s39, s42")
            A("v_lshl_add_u32 v5, v2, 3, v4\nv_lshlrev_b32 v5, 5, v5\nv_lshl_add_u32 v5, v3, 10, v5")
            A("s_add_u32 s34, s33, 5\ns_lshl_b32 s34, s40, s34\nv_lshl_add_u32 v6, v2, 4, s34\nv_lshl_add_u32 v6, v3, 10, v6")
            A("s_sub_u32 s36, s33, 1\ns_lshl_b32 s36, s36, 6\nv_add_u32 v7, s36, v6")
        else:
            A("s_add_u32 s34, s33, 2\ns_lshl_b32 s35, s32, s34\ns_mul_i32 s39, s40, s35\ns_lshl_b32 s39, s39, 2\ns_lshl_b32 s42, s41, 8\ns_add_u32 s39, s39, s42")
            A("v_lshl_add_u32 v5, v2, 3, v4\nv_lshlrev_b32 v5, 5, v5\nv_lshl_add_u32 v5, v3, 10, v5")
            A("v_lshl_add_u32 v6, s40, 2, v2\ns_add_u32 s34, s33, 3\nv_lshlrev_b32 v6, s34, v6\nv_lshl_add_u32 v6, v3, 10, v6")
            A("s_sub_u32 s36, s33, 1\ns_lshl_b32 s36, s36, 4\nv_add_u32 v7, s36, v6")
        A("v_mul_lo_u32 v8, v2, s35\nv_lshl_add_u32 v8, v1, 4, v8")
        A(f"s_mul_i32 s44, s{sXC}, s{sWAVE}\ns_cmp_eq_u32 s44, 7\ns_cbranch_scc1 L_Cnoffn")
        if coop:
            A(f"v_mov_b32 v{XF}, v5\nv_mov_b32 v{XF+1}, v6\nv_mov_b32 v{XF+2}, v7")
            A(f"s_cmp_eq_u32 s{sWAVE}, 0\ns_cbranch_scc1 L_Cwdone")
            addbase(sW1, "s39")
            for t in range(8):
                A(f"global_load_dwordx4 {v(W+4*t,4)}, v8, s[{sW1}:{sW1+1}] {nt}")
                if t != 7: addbase(sW1, "s32")
        else:
            A(f"s_cmp_eq_u32 s{sWAVE}, 1\ns_waitcnt lgkmcnt(0)")
            if not ackwait or lite or echo: stamp("first")
            pr(1)
            A(f"global_load_dwordx4 {v(XS,4)}, v5, s[{sX}:{sX+1}]\nglobal_load_dwordx4 {v(XS+4,4)}, v5, s[{sX}:{sX+1}] offset:16")
            A(f"s_cselect_b64 s[42:43], s[{sW1}:{sW1+1}], s[{sWQ}:{sWQ+1}]")
            A(f"global_load_dwordx4 {v(XR,4)}, v6, s[{sX}:{sX+1}]\nglobal_load_dwordx4 {v(XR+4,4)}, v7, s[{sX}:{sX+1}]")
            addbase(42, "s39")
            for t in range(16):
                if t == 8: A(f"s_cmp_eq_u32 s{sWAVE}, 1\ns_cbranch_scc1 L_Cwdone")
                A(f"global_load_dwordx4 {v(W+4*t,4)}, v8, s[42:43] {nt}")
                if t == 7 and wpat == 1: addbase(42, 25*8192)
                elif t != 15: addbase(42, "s32")
        A("L_Cwdone:")
        karg2()
        pr(0)
        A("s_barrier")
        stamp("issued")
        if not latetag: A(f"s_waitcnt lgkmcnt(0)\ns_load_dword s{sT}, s[{sWS}:{sWS+1}], 0")
        if prioC: A(f"s_setprio {prioC}")
        A(f"s_lshl_b32 s37, s41, 3\ns_add_u32 s37, s37, s40\ns_lshl_b32 s37, s37, 9\ns_add_u32 s37, s37, {QP}\ns_mov_b32 s38, {32*8*512}")
        A(f"s_cmp_eq_u32 s{sWAVE}, 0\ns_cbranch_scc1 L_Cpa")
        A(f"s_mul_i32 s37, s40, 7168\ns_lshl_b32 s42, s41, 9\ns_add_u32 s37, s37, s42\ns_add_u32 s37, s37, {HP}\ns_mov_b32 s38, {16*7168}")
        A("L_Cpa:")
        A("v_and_b32 v5, 1, v2\nv_lshl_add_u32 v9, v5, 4, s37\nv_lshl_add_u32 v9, v1, 5, v9\nv_lshrrev_b32 v5, 1, v2\nv_mad_u32_u24 v9, v5, s38, v9")
        if preQ: A(f"global_load_dwordx4 {v(XF,4)}, v9, s[{sWS}:{sWS+1}] sc1")
        A("L_Cmask:")
        masks()
        if not latetag:
            get_tag()
            A(f"v_mov_b32 v{vTG}, s{sT}\nv_mov_b32 v{vTG+1}, {TAGM}")
        if coop: A(f"s_cmp_eq_u32 s{sWAVE}, 1\ns_cbranch_scc1 L_Cw8\ns_waitcnt vmcnt(2)\nL_Cw8:\ns_waitcnt vmcnt(10)\nL_Cw:")
        if coop:
            A(f"ds_write_b128 v{XF}, {v(XS,4)} offset:{L_O}\nds_write_b128 v{XF}, {v(XS+4,4)} offset:{L_O+16}")
            A(f"ds_read_b128 {v(XR,4)}, v{XF+1} offset:{L_O}\nds_read_b128 {v(XR+4,4)}, v{XF+2} offset:{L_O}")
        if not coop: A(f"s_cmp_eq_u32 s{sWAVE}, 1\ns_cbranch_scc1 L_Cw8\ns_waitcnt vmcnt({16+preQ})\ns_branch L_Cw\nL_Cw8:\ns_waitcnt vmcnt({8+preQ})\nL_Cw:")
    unpack(F, XS, 8)
    A(f"v_add_f32 v5, v{F}, v{F+1}\nv_add_f32 v6, v{F+2}, v{F+3}")
    for i in range(4, 16, 2): A(f"v_add_f32 v5, v5, v{F+i}\nv_add_f32 v6, v6, v{F+i+1}")
    A("v_add_f32 v5, v5, v6")
    allred([5], "v_add_f32", [0, 1, 2, 4, 5], 6)
    A("v_mul_f32 v5, 0x3b000000, v5")
    for i in range(16): A(f"v_sub_f32 v{F+i}, v{F+i}, v5")
    A(f"v_mul_f32 v6, v{F}, v{F}\nv_mul_f32 v7, v{F+1}, v{F+1}")
    for i in range(2, 16, 2): A(f"v_fmac_f32 v6, v{F+i}, v{F+i}\nv_fmac_f32 v7, v{F+i+1}, v{F+i+1}")
    A("v_add_f32 v6, v6, v7")
    allred([6], "v_add_f32", [0, 1, 2, 4, 5], 7)
    A("v_mul_f32 v6, 0x3b000000, v6")
    bf16r(5, 5); bf16r(6, 6)
    A("v_add_f32 v6, 0x3727c5ac, v6"); bf16r(6, 6)
    A("v_sqrt_f32 v6, v6"); bf16r(6, 6)
    A("v_rcp_f32 v6, v6")
    if coop or latetag: A("s_waitcnt lgkmcnt(0)")
    if latetag and not (tr and k2top): A(f"s_load_dword s{sT}, s[{sWS}:{sWS+1}], 0")
    if tr:
        unpack(F, XR, 2)
        for i in range(4): A(f"v_sub_f32 v{F+i}, v{F+i}, v5")
        for i in range(4): bf16r(F+i, F+i)
        for i in range(4): A(f"v_mul_f32 v{F+i}, v{F+i}, v6")
        A(f"v_cvt_pk_bf16_f32 v{XR}, v{F}, v{F+1}\nv_cvt_pk_bf16_f32 v{XR+1}, v{F+2}, v{F+3}\nds_write_b64 v{XF+2}, {v(XR,2)} offset:{L_XN}")
        for k in range(4): A(f"ds_read_b128 {v(XO+4*k,4)}, v{XF+3} offset:{L_XN+64*k}")
        stamp("LNdone")
        get_tag()
        A(f"v_mov_b32 v{vTG}, s{sT}\nv_mov_b32 v{vTG+1}, {TAGM}")
        A(f"s_lshl_b32 s40, s{sWAVE}, 2\nv_mov_b32 v7, s40\nv_mov_b32 v8, 1\ns_waitcnt vmcnt({8+preQ})")
        A(f"s_cmp_eq_u32 s{sWAVE}, 1\ns_cbranch_scc0 L_Cl1\nds_write_b32 v7, v8 offset:{L_FW}\ns_waitcnt vmcnt({preQ})\ns_branch L_Cl0")
        A(f"L_Cl1:\ns_waitcnt vmcnt({preQ})\nds_write_b32 v7, v8 offset:{L_FW}")
        waitflag("L_wfW0", L_FW, 4, F, 7); waitflag("L_wfW1", L_FW+16, 4, F, 7)
        A("L_Cl0:")
        AC4 = XO + 16
        for k in range(4):
            if k == 2: A(f"s_cmp_eq_u32 s{sWAVE}, 1\ns_cbranch_scc1 L_Cm8")
            for cg in range(4):
                for h in range(2): A(f"ds_read_b64_tr_b16 {v(W+16*k+4*cg+2*h,2)}, v{XF+4+cg} offset:{4096*k+512*h}")
            for cg in range(4):
                A(f"s_waitcnt lgkmcnt({6-2*cg})")
                A(f"v_mfma_f32_16x16x32_bf16 {v(AC4+4*cg,4)}, {v(W+16*k+4*cg,4)}, {v(XO+4*k,4)}, {v(AC4+4*cg,4) if k else 0}")
        A("L_Cm8:\ns_nop 7")
        for i in range(4): A(f"v_cndmask_b32 v{AC4+i}, v{AC4+i}, v{AC4+4+i}, s[54:55]\nv_cndmask_b32 v{AC4+8+i}, v{AC4+8+i}, v{AC4+12+i}, s[54:55]")
        for i in range(4): A(f"v_cndmask_b32 v{ACC+i}, v{AC4+i}, v{AC4+8+i}, s[56:57]")
    else:
        unpack(F, XR, 8)
        for i in range(16): A(f"v_sub_f32 v{F+i}, v{F+i}, v5")
        for i in range(16): bf16r(F+i, F+i)
        for i in range(16): A(f"v_mul_f32 v{F+i}, v{F+i}, v6")
        for t in range(16):
            if t == 8: A(f"s_cmp_eq_u32 s{sWAVE}, 1\ns_cbranch_scc1 L_Cd8")
            delta(XO + 4*t, F + t, MASK, 4, 5)
        A("L_Cd8:")
        if warmLN: A(f"s_cmp_ge_u32 s{sWAVE}, 2\ns_cbranch_scc1 L_C23b")
        stamp("LNdone")
        if latetag:
            get_tag()
            A(f"v_mov_b32 v{vTG}, s{sT}\nv_mov_b32 v{vTG+1}, {TAGM}")
        if coop:
            A(f"s_lshl_b32 s40, s{sWAVE}, 2\nv_mov_b32 v7, s40\nv_mov_b32 v8, 1\ns_waitcnt vmcnt(8)")
            A(f"s_cmp_eq_u32 s{sWAVE}, 1\ns_cbranch_scc0 L_Cl1\nds_write_b32 v7, v8 offset:{L_FW}\ns_branch L_Cl0")
            A(f"L_Cl1:\ns_waitcnt vmcnt(0)\nds_write_b32 v7, v8 offset:{L_FW}")
            waitflag("L_wfW0", L_FW, 4, F, 7); waitflag("L_wfW1", L_FW+16, 4, F, 7)
            A("v_lshlrev_b32 v7, 4, v0\nv_add_u32 v7, %d, v7" % L_W)
            for t in range(16): A(f"ds_read_b128 {v(W+4*t,4)}, v7 offset:{1024*t}")
            A("L_Cl0:\ns_waitcnt vmcnt(0)")
            for t in range(16):
                if t == 8: A(f"s_cmp_eq_u32 s{sWAVE}, 1\ns_cbranch_scc1 L_Cm8")
                if t % 4 == 0: A(f"s_waitcnt lgkmcnt({12 - t})")
                A(f"v_mfma_f32_16x16x32_bf16 {v(ACC,4)}, {v(XO+4*t,4)}, {v(W+4*t,4)}, {v(ACC,4) if t else 0}")
        else:
            A(f"s_cmp_eq_u32 s{sWAVE}, 1\ns_cbranch_scc0 L_Cl0\ns_waitcnt vmcnt({preQ})\nL_Cl0:")
            for t in range(16):
                if t == 8: A(f"s_cmp_eq_u32 s{sWAVE}, 1\ns_cbranch_scc1 L_Cm8")
                if t % 4 == 0: A(f"s_waitcnt vmcnt({12 - t + preQ})")
                A(f"v_mfma_f32_16x16x32_bf16 {v(ACC,4)}, {v(XO+4*t,4)}, {v(W+4*t,4)}, {v(ACC,4) if t else 0}")
        A("L_Cm8:\ns_nop 7")
    A("v_mov_b32 v5, 0xff")
    for i in range(4): A(f"v_add_u32 v{ACC+i}, 0x80, v{ACC+i}")
    for i in range(4): A(f"v_bfi_b32 v{ACC+i}, v5, v{vTG}, v{ACC+i}")
    if tr: A("s_mov_b32 exec_lo, 0x00ff00ff\ns_mov_b32 exec_hi, 0x00ff00ff")
    store(9, ACC, 4, sWS, qst)
    if tr: A("s_mov_b64 exec, -1")
    A(f"v_mov_b32 v{B1R+2}, v9")
    stamp("pub1")
    if not trig:
        A(f"s_cmp_eq_u32 s{sWAVE}, 0\ns_cbranch_scc0 L_Cmid\nv_mov_b32 v5, 0\nv_mov_b32 v6, 1\nds_write_b32 v5, v6 offset:{L_FT}")
    A("s_branch L_Cmid")

    A(f"L_Cnoffn:\nv_mov_b32 v9, 0\nv_mov_b32 v{B1R+2}, 0")
    karg2()
    A(f"v_mov_b32 v5, 0\nv_and_b32 v6, 31, v0\nv_lshlrev_b32 v6, 2, v6\nds_write_b32 v6, v5 offset:{L_FT}")
    A("s_waitcnt lgkmcnt(0)"); pr(1); pr(0)
    A(f"s_load_dword s{sT}, s[{sWS}:{sWS+1}], 0\ns_barrier")
    wsb()
    if warmLN:
        A(f"s_cmp_eq_u32 s{sWAVE}, 2\ns_cbranch_scc1 L_Cw\nL_C23b:")
    get_tag(False)
    A(f"v_mov_b32 v{vTG}, s{sT}\nv_mov_b32 v{vTG+1}, {TAGM}")
    if coop: A(f"s_lshl_b32 s40, s{sWAVE}, 2\nv_mov_b32 v7, s40\nv_mov_b32 v8, 1")
    A(f"s_cmp_eq_u32 s{sWAVE}, 3\ns_cbranch_scc1 L_Cid")
    if coop: A("s_waitcnt vmcnt(0)")
    A("s_branch L_Cnoid\nL_Cid:")
    A(f"s_lshl_b32 s40, s{sXC}, 5\ns_add_u32 s40, s40, s{sJ}\ns_lshl_b32 s40, s40, 2\ns_add_u32 s40, s40, {IDS}")
    A(f"v_mov_b32 v5, s40\nv_mov_b32 v6, s{sID}\ns_mov_b64 exec, 1\nglobal_store_dword v5, v6, s[{sWS}:{sWS+1}] {idst}\ns_mov_b64 exec, -1")
    if eskew:
        A(f"s_cmp_eq_u32 s{sJ}, 0\ns_cbranch_scc0 L_nosk\ns_lshl_b32 s40, s{sXC}, 2\ns_add_u32 s40, s40, 0x2000\nv_mov_b32 v5, s40\nv_mov_b32 v6, s64")
        A(f"s_mov_b64 exec, 1\nglobal_store_dword v5, v6, s[{sWS}:{sWS+1}] sc1\ns_mov_b64 exec, -1\nL_nosk:")
    if tlb:
        A(f"s_lshr_b32 s40, s2, 7\ns_lshl_b32 s40, s40, 3\ns_add_u32 s40, s40, s{sXC}\ns_lshl_b32 s40, s40, 23\ns_and_b32 s41, s{sJ}, 15\ns_lshl_b32 s41, s41, 14\ns_add_u32 s40, s40, s41\ns_add_u32 s40, s40, {28672*256}")
        A("v_lshlrev_b32 v5, 18, v0\nv_add_u32 v5, s40, v5\ns_mov_b64 exec, 15")
        A(f"global_load_dword v210, v5, s[{sV}:{sV+1}] nt")
        if tlb > 1: A(f"global_load_dword v210, v5, s[{sK}:{sK+1}] nt")
        A(f"s_mov_b64 exec, 1\ns_lshl_b32 s40, s{sXC}, 3\ns_lshr_b32 s41, s{sJ}, 2\ns_add_u32 s40, s40, s41\ns_lshl_b32 s41, s40, 16\nv_mov_b32 v5, s41")
        A(f"global_load_dword v210, v5, s[{sWO}:{sWO+1}] nt\ns_min_u32 s40, s40, 55\ns_lshl_b32 s41, s40, 15\nv_mov_b32 v5, s41\nglobal_load_dword v210, v5, s[{sW2}:{sW2+1}] nt")
        A(f"v_mov_b32 v5, {SPF + 0x4c000}\nglobal_load_dword v210, v5, s[{sWS}:{sWS+1}] nt\nv_mov_b32 v5, 0")
        A(f"global_load_dword v210, v5, s[{sB1}:{sB1+1}]\nglobal_load_dword v210, v5, s[{sOUT}:{sOUT+1}] nt\ns_mov_b64 exec, -1")
    if dirty:
        A("s_lshl_b32 s40, s2, 15\ns_add_u32 s40, s40, 0x1000000\nv_lshl_add_u32 v5, v0, 4, s40")
        for k in range(dirty): A(f"global_store_dwordx4 v5, v[16:19], s[{sWS}:{sWS+1}] {dfl}\nv_add_u32 v5, 1024, v5")
    A("L_Cnoid:")
    if coop: A(f"s_waitcnt vmcnt(1)\nds_write_b32 v7, v8 offset:{L_FW}")
    masks()

    A("L_Cmid:")
    QG, QF, SC, KA, MA, KF = XO, XO + 16, XO + 32, XO + 48, XO + 52, W
    A(f"s_cmp_lt_u32 s{sXC}, 7\ns_cselect_b32 s45, 2, 0\ns_cmp_lt_u32 s{sWAVE}, s45\ns_cselect_b32 s45, 1, 0")
    A(f"s_lshr_b32 s40, s{sJ}, 4\ns_lshl_b32 s40, s40, 5\ns_lshl_b32 s41, s{sXC}, 2\ns_add_u32 s40, s40, s41\ns_add_u32 s40, s40, s{sWAVE}")
    A(f"s_lshl_b32 s40, s40, {11 if tr else 12}\ns_add_u32 s40, s40, {QP}\nv_lshl_add_u32 v{MA}, v0, 4, s40")
    if not trig: A(f"s_add_u32 s58, s{sWS}, s40\ns_addc_u32 s59, s{sWS+1}, 0")
    A(f"s_mul_i32 s40, s{sWAVE}, {L_QSTR}\nv_and_b32 v5, 31, v0\nv_lshl_add_u32 v{MA+1}, v5, 3, s40\nv_lshrrev_b32 v6, 5, v0\nv_lshl_add_u32 v{MA+1}, v6, 2, v{MA+1}")
    A(f"s_lshl_b32 s40, s{sXC}, 7\ns_add_u32 s40, s40, {IDS}\nv_lshl_add_u32 v{MA+2}, v5, 2, s40")
    A(f"v_and_b32 v5, 3, v1\nv_lshlrev_b32 v5, 10, v5\nv_lshrrev_b32 v6, 2, v1\nv_lshl_add_u32 v5, v6, 8, v5\ns_lshl_b32 s40, s{sWAVE}, 14\ns_add_u32 s40, s40, {L_K}\nv_add_u32 v5, s40, v5")
    for u in range(4):
        A(f"v_add_u32 v7, {4*u}, v2\nv_xor_b32 v7, v7, v1\nv_lshl_add_u32 v{KA+u}, v7, 4, v5")
    A(f"v_mul_u32_u24 v{MA+3}, {L_QSTR}, v6\nv_lshl_add_u32 v{MA+3}, v2, 4, v{MA+3}")
    A(f"s_lshl_b32 s40, s{sWAVE}, 2\nv_lshl_add_u32 v{MA+4}, v6, 4, s40\nv_mov_b32 v{MA+7}, s40\nv_mov_b32 v{MA+6}, 0")
    A(f"s_lshl_b32 s40, s{sWAVE}, 10\nv_lshl_add_u32 v{MA+5}, v0, 4, s40")
    A("v_and_b32 v5, 1, v0\nv_cmp_ne_u32 s[54:55], 0, v5\nv_and_b32 v5, 2, v0\nv_cmp_ne_u32 s[56:57], 0, v5")
    A(f"s_lshl_b32 s40, s{sXC}, 3\ns_lshr_b32 s41, s{sJ}, 2\ns_add_u32 s40, s40, s41\ns_lshl_b32 s40, s40, 1\ns_add_u32 s40, s40, s{sWAVE}")
    A(f"s_lshl_b32 s41, s40, 6\ns_add_u32 s41, s41, {HP}\nv_mul_u32_u24 v6, 7168, v4\nv_lshl_add_u32 v6, v2, 4, v6\nv_add_u32 v6, s41, v6")
    A(f"v_mul_u32_u24 v8, {(8 if tr else 16)*7168}, v3\nv_add_u32 v{MA+9}, v6, v8\nv_add_u32 v{MA+10}, {8*7168}, v{MA+9}")
    A(f"s_lshl_b32 s41, s40, 5\nv_lshl_add_u32 v{MA+8}, v2, 3, s41")
    A(f"s_lshl_b32 s40, s{sXC}, 5\ns_add_u32 s40, s40, s{sJ}")
    A("s_lshr_b32 s41, s40, 6\ns_lshl_b32 s41, s41, 7\ns_and_b32 s42, s40, 15\ns_lshl_b32 s42, s42, 3\ns_add_u32 s41, s41, s42")
    A("s_bfe_u32 s42, s40, 0x10004\ns_lshl_b32 s42, s42, 2\ns_add_u32 s41, s41, s42")
    A("s_bfe_u32 s42, s40, 0x10005\ns_lshl_b32 s42, s42, 9\ns_add_u32 s42, s42, s41")
    if g2:
        A(f"s_and_b32 s43, s{sWAVE}, 1\nv_lshrrev_b32 v6, 5, v0\nv_lshl_add_u32 v6, s43, 1, v6\nv_add_lshl_u32 v{FIN+2}, v6, s42, 1\nv_add_lshl_u32 v7, v6, s41, 1")
    else: A(f"v_add_lshl_u32 v{FIN+2}, v2, s42, 1\nv_add_lshl_u32 v7, v2, s41, 1")
    A(f"global_load_ushort v{FIN}, v{FIN+2}, s[{sX}:{sX+1}] {xfl}\nglobal_load_ushort v{FIN+1}, v7, s[{sB2}:{sB2+1}] {xfl}")
    W2R, WOR, G = W, W + 16, W + 32
    A(f"s_and_b32 s40, s{sJ}, 3\ns_lshl_b32 s40, s40, 8\ns_lshr_b32 s41, s{sJ}, 2")
    A(f"s_lshl_b32 s42, s{sXC}, 3\ns_add_u32 s47, s42, s41")
    A(f"s_lshl_b32 s42, s47, 1\ns_add_u32 s42, s42, s{sWAVE}\ns_lshl_b32 s42, s42, 14\ns_add_u32 s42, s42, s40")
    addbase(sW2, "s42")
    A(f"s_lshl_b32 s42, s47, 2\ns_add_u32 s42, s42, s{sWAVE}\ns_lshl_b32 s43, s42, 14\ns_add_u32 s43, s43, s40")
    addbase(sWO, "s43")
    A(f"v_lshlrev_b32 v{FIN+5}, 12, v2\nv_lshl_add_u32 v{FIN+5}, v1, 4, v{FIN+5}")
    A(f"s_lshl_b32 s42, s42, 11\ns_add_u32 s42, s42, {OP}\nv_lshl_add_u32 v{XR}, v0, 4, s42")
    A(f"s_lshr_b32 s42, s47, 1\ns_lshl_b32 s42, s42, 9\ns_add_u32 s42, s42, {ML}\nv_lshl_add_u32 v{XR+2}, v1, 4, s42")
    A(f"s_lshl_b32 s42, s{sXC}, 16\ns_bfe_u32 s43, s{sJ}, 0x30002\ns_lshl_b32 s43, s43, 8\ns_add_u32 s42, s42, s43\ns_lshl_b32 s43, s{sWAVE}, 6\ns_add_u32 s42, s42, s43\ns_add_u32 s42, s42, {OP}")
    A(f"v_lshl_add_u32 v7, v3, 4, v4\nv_lshlrev_b32 v7, 11, v7\nv_lshl_add_u32 v7, v2, 4, v7\nv_add_u32 v{FIN+3}, s42, v7\nv_add_u32 v{FIN+4}, {8*2048}, v{FIN+3}")
    if merge:
        A(f"s_and_b32 s40, s{sJ}, 3\ns_lshl_b32 s40, s40, 6\ns_add_u32 s40, s40, s47\ns_mul_i32 s40, s40, {mstr}")
        A(f"s_lshl_b32 s41, s{sWAVE}, 10\ns_add_u32 s40, s40, s41\ns_add_u32 s40, s40, {SPS}\nv_lshl_add_u32 v{XR+3}, v0, 4, s40")
        A(f"s_lshl_b32 s40, s{sXC}, 5\ns_add_u32 s40, s40, s{sJ}\ns_lshr_b32 s41, s40, 6\ns_mul_i32 s41, s41, {64*mstr}\ns_and_b32 s40, s40, 63\ns_lshl_b32 s40, s40, 5")
        A(f"s_add_u32 s40, s40, s41\ns_add_u32 s40, s40, {SPS}\nv_mul_u32_u24 v{XR+4}, {mstr}, v0\nv_add_u32 v{XR+4}, s40, v{XR+4}\nv_add_u32 v{XR+5}, 16, v{XR+4}")
        if g2: A(f"s_lshl_b32 s40, s{sWAVE}, 4\nv_add_u32 v{XR+4}, s40, v{XR+4}")
    else:
        A(f"s_and_b32 s40, s{sJ}, 3\ns_lshl_b32 s40, s40, 6\ns_add_u32 s40, s40, s47\ns_mul_i32 s40, s40, {SPSTR}")
        A(f"s_cmp_eq_u32 s{sWAVE}, 0\ns_cselect_b32 s41, 0, {SPF-SPS}\ns_add_u32 s40, s40, s41\ns_add_u32 s40, s40, {SPS}\nv_lshl_add_u32 v{XR+3}, v0, 4, s40")
        A(f"s_lshl_b32 s40, s{sXC}, 5\ns_add_u32 s40, s40, s{sJ}\ns_lshr_b32 s41, s40, 6\ns_mul_i32 s41, s41, {64*SPSTR}\ns_and_b32 s40, s40, 63\ns_lshl_b32 s40, s40, 4")
        A(f"s_add_u32 s40, s40, s41\ns_add_u32 s40, s40, {SPS}\nv_mul_u32_u24 v{XR+4}, {SPSTR}, v0\nv_add_u32 v{XR+4}, s40, v{XR+4}\nv_add_u32 v{XR+5}, {SPF-SPS}, v{XR+4}")
    if flag2:
        A(f"s_and_b32 s40, s{sJ}, 3\ns_lshl_b32 s40, s40, 6\ns_add_u32 s40, s40, s47\ns_lshl_b32 s40, s40, 7\ns_add_u32 s40, s40, {FLG}\nv_mov_b32 v{FIN+6}, s40")
        if fall: A(f"s_mov_b32 s40, {FLG}\nv_lshl_add_u32 v{FIN+7}, v0, 7, s40")
        else: A(f"s_lshr_b32 s40, s{sXC}, 1\ns_lshl_b32 s40, s40, 13\ns_add_u32 s40, s40, {FLG}\nv_lshl_add_u32 v{FIN+7}, v0, 7, s40")
        A(f"s_cmp_eq_u32 s{sWAVE}, 3\ns_cselect_b32 s62, 1, 0\ns_mov_b32 s63, 0")
    A(f"s_lshl_b32 s40, s{sWAVE}, 10\nv_lshl_add_u32 v{XR+6}, v0, 4, s40\nv_lshlrev_b32 v{XR+7}, 4, v0")
    if g2: A(f"s_lshl_b32 s40, s{sWAVE}, 9\ns_add_u32 s40, s40, {L_RED}\nv_lshl_add_u32 v{XR+7}, v0, 3, s40")
    elif merge: A(f"s_lshl_b32 s40, s{sWAVE}, 9\nv_lshrrev_b32 v7, 1, v0\nv_lshl_add_u32 v{XR+7}, v7, 4, s40\nv_and_b32 v7, 1, v0\nv_lshl_add_u32 v{XR+7}, v7, 12, v{XR+7}")
    if trig: waitflag("L_wfT", L_FT, 4, F, MA+6)
    else:
        waitflag("L_wfT", L_FT, 1, F, MA+6)
        A(f"s_mov_b32 s{sCNT}, 0\nL_sq:")
        for k in range(8): A(f"s_load_dword s{32+k}, s[58:59], {512*k} glc")
        A(f"s_add_u32 s{sCNT}, s{sCNT}, 1\ns_waitcnt lgkmcnt(0)")
        A(f"s_xor_b32 s40, s32, s{sT8}")
        for k in range(1, 8): A(f"s_xor_b32 s41, s{32+k}, s{sT8}\ns_or_b32 s40, s40, s41")
        A(f"s_and_b32 s40, s40, 0xff\ns_cbranch_scc0 L_sq_x\ns_cmp_lt_u32 s{sCNT}, 64\ns_cbranch_scc1 L_sq\nL_sq_x:")
        if diag: A(f"s_mov_b32 s99, s{sCNT}")
    stamp("FT")
    if smtest:
        A(f"s_lshl_b32 s41, s2, 9\ns_add_u32 s41, s41, {QP}\ns_add_u32 s42, s{sWS}, s41\ns_addc_u32 s43, s{sWS+1}, 0")
        A("s_waitcnt lgkmcnt(0)\ns_memtime s[58:59]\ns_waitcnt lgkmcnt(0)\ns_load_dword s41, s[42:43], 0 glc\ns_waitcnt lgkmcnt(0)\ns_memtime s[100:101]\ns_waitcnt lgkmcnt(0)\ns_sub_u32 s99, s100, s58")
        A("s_memtime s[58:59]\ns_waitcnt lgkmcnt(0)\ns_load_dword s41, s[42:43], 0 glc\ns_waitcnt lgkmcnt(0)\ns_memtime s[100:101]\ns_waitcnt lgkmcnt(0)\ns_sub_u32 s41, s100, s58\ns_lshl_b32 s41, s41, 16\ns_or_b32 s99, s99, s41")
    QLD = [(QG + 4*k, 4, MA, 1024*k) for k in range(2 if hack == 9 or tr else 4)]
    HLD = [(XS, 4, MA+9, 0), (XS+4, 4, MA+10, 0)][:1 if tr else 2]
    A(f"global_load_dword v{MA+11}, v{MA+2}, s[{sWS}:{sWS+1}] {qld}")
    if not noq: issue(QLD, sWS, qld)
    def hissue(lab):
        A(f"s_cmp_eq_u32 s45, 0\ns_cbranch_scc1 {lab}")
        if not noh: issue(HLD, sWS, qld)
        A(f"global_load_dwordx2 {v(B1R,2)}, v{MA+8}, s[{sB1}:{sB1+1}] {xfl}")
        if hack == 2:
            for i in range(4): A(f"global_load_dwordx4 {v(XF+4*i,4)}, v{FIN+5}, s[{sW2}:{sW2+1}] offset:{1024*i} {nt}")
    def kreads():
        waitflag("L_wfK", L_FK, 1, F, MA+7)
        stamp("FK")
        for T in range(4):
            for u in range(4): A(f"ds_read_b128 {v(KF+16*T+4*u,4)}, v{KA+u} offset:{4096*T}")
    if kfirst: kreads()
    if q2:
        assert kfirst and tr and hlate
        issue([(d + 8, n, a, off) for (d, n, a, off) in QLD], sWS, qld)
        A("s_waitcnt vmcnt(2)")
    elif hlate: A("s_waitcnt vmcnt(0)")
    else:
        hissue("L_Cnoh")
        A("s_waitcnt vmcnt(3)\ns_branch L_Cnoh1\nL_Cnoh:\ns_waitcnt vmcnt(0)\nL_Cnoh1:")
    A(f"v_cmp_ne_u32 vcc, s{sID}, v{MA+11}\ns_mov_b32 s53, 1\ns_cbranch_vccz L_Cnob\ns_mov_b32 s53, 3")
    A(f"s_cmp_eq_u32 s{sWAVE}, 0\ns_cselect_b32 s40, 1, s45\ns_cmp_eq_u32 s40, 0\ns_cbranch_scc1 L_Cnob")
    if tr: A("s_mov_b32 exec_lo, 0x00ff00ff\ns_mov_b32 exec_hi, 0x00ff00ff")
    store(B1R+2, ACC, 4, sWSB, "sc1")
    if tr: A("s_mov_b64 exec, -1")
    A("L_Cnob:")
    if not noq: poll("L_pollQ", QLD, 7, QLD, first=63, narrow=True, spare=QG+8 if q2 else None)
    stamp("qgath")
    if tr:
        for i in range(4): A(f"v_add_f32 v{QG+i}, v{QG+i}, v{QG+4+i}")
    else:
        for i in range(4): A(f"v_add_f32 v{QG+i}, v{QG+i}, v{QG+4+i}\nv_add_f32 v{QG+8+i}, v{QG+8+i}, v{QG+12+i}")
        for i in range(4): A(f"v_add_f32 v{QG+i}, v{QG+i}, v{QG+8+i}")
    for i in range(2): A(f"v_permlane32_swap_b32 v{QG+i}, v{QG+2+i}")
    for i in range(2): A(f"v_add_f32 v{QG+i}, v{QG+i}, v{QG+2+i}")
    A(f"v_cvt_pk_bf16_f32 v5, v{QG}, v{QG+1}\nds_write_b32 v{MA+1}, v5 offset:{L_Q}\nv_mov_b32 v6, s53")
    A(f"s_waitcnt lgkmcnt(0)\nds_write_b32 v{MA+7}, v6 offset:{L_FQ}")
    for i in range(4): A(f"v_mov_b32 v{ACC+i}, 0")
    if hlate: hissue("L_Cnoh"); A("L_Cnoh:")
    if pretouch and ptpos == 2: issue([(208, 1, XR+2, 0), (208, 1, XR+2, 256), (208, 1, XR, 0), (208, 1, XR, 1024)], sWS, ptfl)
    if pretouch and ptpos == 3:
        A(f"s_and_b32 s40, s{sJ}, 3\ns_lshl_b32 s40, s40, 9\nv_lshlrev_b32 v5, 4, v0\nv_sub_u32 v5, v{XR}, v5\nv_lshl_add_u32 v5, v0, 7, v5\nv_add_u32 v5, s40, v5")
        A(f"s_mov_b64 exec, 15\nglobal_load_dword v208, v5, s[{sWS}:{sWS+1}] {ptfl}")
        A(f"v_lshlrev_b32 v5, 4, v1\nv_sub_u32 v5, v{XR+2}, v5\nv_lshl_add_u32 v5, v0, 7, v5\nglobal_load_dword v208, v5, s[{sWS}:{sWS+1}] {ptfl}\ns_mov_b64 exec, -1")
    if not kfirst: kreads()
    waitflag("L_wfq", L_FQ, 4, F, MA+6)
    for u in range(4): A(f"ds_read_b128 {v(QF+4*u,4)}, v{MA+3} offset:{L_Q+64*u}")
    for u in range(4):
        A(f"s_waitcnt lgkmcnt({3-u})")
        for T in range(4):
            A(f"v_mfma_f32_16x16x32_bf16 {v(SC+4*T,4)}, {v(KF+16*T+4*u,4)}, {v(QF+4*u,4)}, {v(SC+4*T,4) if u else 0}")
    E = F
    for T in range(4):
        A(f"v_cndmask_b32 v{SC+4*T}, v{SC+4*T}, v{SC+4*T+1}, s[54:55]\nv_cndmask_b32 v{SC+4*T+2}, v{SC+4*T+2}, v{SC+4*T+3}, s[54:55]")
    for T in range(4): A(f"v_cndmask_b32 v{E+T}, v{SC+4*T}, v{SC+4*T+2}, s[56:57]")
    for i in range(4): bf16r(E+i, E+i)
    for i in range(4): A(f"v_mul_f32 v{E+i}, {SCALE}, v{E+i}")
    for i in range(4): bf16r(E+i, E+i)
    A(f"v_max3_f32 v8, v{E}, v{E+1}, v{E+2}\nv_max_f32 v8, v8, v{E+3}")
    allred([8], "v_max_f32", [0, 1, 4, 5], 9)
    A(f"ds_write_b32 v{MA+4}, v8 offset:{L_MX}")
    A(f"v_mul_f32 v9, {LOG2E ^ 0x80000000}, v8\ns_mov_b32 s40, {LOG2E}")
    for i in range(4): A(f"v_fma_f32 v{E+i}, v{E+i}, s40, v9")
    for i in range(4): A(f"v_exp_f32 v{E+i}, v{E+i}")
    for i in range(4): A(f"v_cvt_pk_bf16_f32 v{SC+i}, v{E+i}, v{E+i}")
    A(f"ds_write_b128 v{MA+5}, {v(SC,4)} offset:{L_P}")
    A(f"v_add_f32 v8, v{E}, v{E+1}\nv_add_f32 v9, v{E+2}, v{E+3}\nv_add_f32 v8, v8, v9")
    allred([8], "v_add_f32", [0, 1, 4, 5], 9)
    A(f"ds_write_b32 v{MA+4}, v8 offset:{L_LW}")
    A(f"s_waitcnt lgkmcnt(0)\nds_write_b32 v{MA+7}, v6 offset:{L_FP}")
    stamp("pready")
    A(f"v_lshlrev_b32 v{FIN}, 16, v{FIN}\nv_lshlrev_b32 v{FIN+1}, 16, v{FIN+1}")
    waitflag("L_wfV", L_FV, 4, F, MA+6)
    stamp("FV")
    OLD = [(G+8, 4, XR+2, 0), (G+12, 4, XR+2, 256), (G, 4, XR, 0), (G+4, 4, XR, 1024)]
    if spre:
        A(f"s_cmp_ge_u32 s{sWAVE}, 2\ns_cbranch_scc1 L_nospre\nglobal_load_dwordx4 {v(F,4)}, v{XR+3}, s[{sWS}:{sWS+1}] {spre.replace('plain', '')}\nL_nospre:")
    if pretouch and ptpos == 0: issue(OLD, sWS, ptfl)
    def ldwo():
        for i in range(0 if hack == 3 else 2 if hack == 5 else 4): A(f"global_load_dwordx4 {v(WOR+4*i,4)}, v{FIN+5}, s[{sWO}:{sWO+1}] offset:{1024*i} {nt}")
    if wofirst: ldwo()
    A("s_cmp_eq_u32 s45, 0\ns_cbranch_scc1 L_Cnow2")
    if hack != 2:
        for i in range(4): A(f"global_load_dwordx4 {v(W2R+4*i,4)}, v{FIN+5}, s[{sW2}:{sW2+1}] offset:{1024*i} {nt}")
    A("L_Cnow2:")
    if not wofirst: ldwo()
    if pretouch and ptpos == 1: issue(OLD, sWS, ptfl)
    A("s_cmp_eq_u32 s45, 0\ns_cbranch_scc1 L_Cnoh2")
    if not noh: poll("L_pollH", HLD, 7, HLD, first=(4 if hack in (2, 3) else 6 if hack == 5 else 8) + 4*bool(pretouch and ptpos < 2), narrow=True)
    if not tr:
        for i in range(4): A(f"v_add_f32 v{XS+i}, v{XS+i}, v{XS+4+i}")
    allred([XS, XS+1, XS+2, XS+3], "v_add_f32", [0, 1, 2], 7)
    for i in range(4): bf16r(XS+i, XS+i)
    unpack(XS+4, B1R, 2)
    for i in range(4): A(f"v_add_f32 v{XS+i}, v{XS+i}, v{XS+4+i}")
    for i in range(4): bf16r(XS+i, XS+i)
    for i in range(4): A(f"v_max_f32 v{XS+i}, 0, v{XS+i}")
    for i in range(4): A(f"v_mul_f32 v{XS+i}, v{XS+i}, v{XS+i}")
    for i in range(4): delta(XF + 4*i, XS + i, MASK, 4, 5)

    A("L_Cnoh2:")
    A("s_waitcnt lgkmcnt(0)\ns_barrier")
    stamp("barC")
    def raise2():
        A(f"s_cmp_eq_u32 s62, 0\ns_cbranch_scc1 L_nf2\ns_mov_b64 exec, 1\nglobal_store_dword v{FIN+6}, v{vTG}, s[{sWS}:{sWS+1}] sc1\ns_mov_b64 exec, -1\nL_nf2:")
    if flag2 == 3: raise2()
    A("s_cmp_eq_u32 s45, 0\ns_cbranch_scc1 L_Cnoffn2")
    A(f"s_waitcnt vmcnt({(0 if wofirst or hack == 3 else 2 if hack == 5 else 4) + 4*(ptpos == 1)})")
    for i in range(4): A(f"v_mfma_f32_16x16x32_bf16 {v(ACC,4)}, {v(XF+4*i,4)}, {v(W2R+4*i,4)}, {v(ACC,4)}")
    A("L_Cnoffn2:")
    if owait is not None: A(f"s_waitcnt vmcnt({0 if ptpos == 1 else owait + (flag2 == 3)})")
    if flag2 == 2: raise2()
    stamp("wohere")
    if pipeO: pollpipe("L_pollO", [(XR, 0), (XR, 1024), (XR+2, 0), (XR+2, 256)], [XO + 16*r for r in range(pipeO)], G, 7, stagO)
    else:
        issue(OLD[2:] if hack == 6 else OLD, sWS, ofl)
        A(f"ds_write_b128 v{XR+6}, {v(ACC,4)} offset:{L_RED+4096}")
        poll("L_pollO", OLD[2:] if hack == 6 else OLD, 7, [(G+8, 4, XR+2, 0), (G+12, 4, XR+2, 256), (G, 4, FIN+3, 0), (G+4, 4, FIN+4, 0)], strip=not opt, first=0)
    if flag2 == 1: raise2()
    stamp("gathO")
    if pipeO: A(f"ds_write_b128 v{XR+6}, {v(ACC,4)} offset:{L_RED+4096}")
    m0, l0, m1, l1 = G+8, G+9, G+12, G+13
    if opt:
        X = (lambda r: "") if pipeO else (lambda r: f"v_xor_b32 v{r}, s{sT}, v{r}")
        D = lambda op, r, b: f"{op}_dpp v{r}, v{r}, v{r} {DPP[b]} row_mask:0xf bank_mask:0xf"
        if hack == 6: A("\n".join(X(G+i) for i in range(8)))
        else: A("\n".join([X(m0), X(m1), f"v_max_f32 v5, v{m0}, v{m1}", X(G), X(G+1), D("v_max_f32", 5, 0), X(G+2), X(G+3), D("v_max_f32", 5, 1),
                     X(G+4), X(G+5), D("v_max_f32", 5, 2), X(G+6), f"v_sub_f32 v{m0}, v{m0}, v5", f"v_sub_f32 v{m1}, v{m1}, v5",
                     f"v_mul_f32 v6, {LOG2E}, v{m0}", f"v_mul_f32 v8, {LOG2E}, v{m1}", "v_exp_f32 v6, v6", "v_exp_f32 v8, v8", X(G+7), X(l0), X(l1)]))
        if hack != 6: A(f"v_mul_f32 v{l0}, v{l0}, v6")
        for i in (0, 2): A(f"v_pk_mul_f32 {v(G+i,2)}, {v(G+i,2)}, v[6:7] op_sel_hi:[1,0]")
        if hack != 6: A(f"v_fmac_f32 v{l0}, v{l1}, v8")
        for i in (0, 2): A(f"v_pk_fma_f32 {v(G+i,2)}, {v(G+4+i,2)}, v[8:9], {v(G+i,2)} op_sel_hi:[1,0,1]")
        for b in (0, 1, 2):
            if hack != 6: A(D("v_add_f32", l0, b))
            if b == 2:
                A(D("v_add_f32", G, b))
                if hack != 6: A(f"v_rcp_f32 v6, v{l0}")
            for r in range(G + (b == 2), G + 4): A(D("v_add_f32", r, b))
        for i in (0, 2):
            if hack != 6: A(f"v_pk_mul_f32 {v(G+i,2)}, {v(G+i,2)}, v[6:7] op_sel_hi:[1,0]")
        M = lambda i: A(f"v_mfma_f32_16x16x32_bf16 {v(F,4)}, {v(XO+4*i,4)}, {v(WOR+4*i,4)}, {v(F,4) if i else 0}")
        if pipeO: XO = XO + 32
        delta(XO, G, MASK, 4, 5); delta(XO+4, G+1, MASK, 4, 8)
        M(0); delta(XO+8, G+2, MASK, 4, 5); M(1); delta(XO+12, G+3, MASK, 4, 8); M(2); M(3)
    else:
        A(f"v_max_f32 v5, v{m0}, v{m1}")
        allred([5], "v_max_f32", [0, 1, 2], 7)
        A(f"v_sub_f32 v{m0}, v{m0}, v5\nv_sub_f32 v{m1}, v{m1}, v5\nv_mul_f32 v{m0}, {LOG2E}, v{m0}\nv_mul_f32 v{m1}, {LOG2E}, v{m1}")
        A(f"v_exp_f32 v{m0}, v{m0}\nv_exp_f32 v{m1}, v{m1}")
        A(f"v_mul_f32 v{l0}, v{l0}, v{m0}")
        for i in range(4): A(f"v_mul_f32 v{G+i}, v{G+i}, v{m0}")
        A(f"v_fmac_f32 v{l0}, v{l1}, v{m1}")
        for i in range(4): A(f"v_fmac_f32 v{G+i}, v{G+4+i}, v{m1}")
        allred([l0, G, G+1, G+2, G+3], "v_add_f32", [0, 1, 2], 7)
        A(f"v_rcp_f32 v{l0}, v{l0}")
        for i in range(4): A(f"v_mul_f32 v{G+i}, v{G+i}, v{l0}")
        for i in range(4): delta(XO + 4*i, G + i, MASK, 4, 5 + (i & 1))
        for i in range(4): A(f"v_mfma_f32_16x16x32_bf16 {v(F,4)}, {v(XO+4*i,4)}, {v(WOR+4*i,4)}, {v(F,4) if i else 0}")
    if hack == 8:
        A(f"s_cmp_ge_u32 s{sWAVE}, 2\ns_cbranch_scc1 L_Cdone\ns_nop 5")
        for i in range(4): A(f"v_mov_b32 v{G+i}, v{F+i}")
        A("s_branch L_h8")
    A(f"ds_write_b128 v{XR+6}, {v(F,4)} offset:{L_RED}")
    if g2 and not diag and not lite: A(f"s_cmp_ge_u32 s{sWAVE}, 2\ns_cbranch_scc1 L_Cbar")
    A("s_waitcnt lgkmcnt(0)\ns_barrier")
    if g2 and not diag and not lite: pass
    elif ackwait: A(f"s_cmp_ge_u32 s{sWAVE}, 2\ns_cbranch_scc1 L_Cdone")
    else: A(f"s_cmp_eq_u32 s{sWAVE}, 2\ns_cbranch_scc1 L_Cfin\ns_cmp_eq_u32 s{sWAVE}, 3\ns_cbranch_scc1 L_Cdone")
    if not merge: A(f"s_cmp_eq_u32 s{sWAVE}, 1\ns_cbranch_scc1 {'L_Cdone' if hack in (1, 2) else 'L_Cpubf'}")
    if g2:
        A(f"ds_read2st64_b64 {v(G+4,4)}, v{XR+7} offset0:0 offset1:2\nds_read2st64_b64 {v(G+8,4)}, v{XR+7} offset0:4 offset1:6\nds_read2st64_b64 {v(G+12,4)}, v{XR+7} offset0:8 offset1:10")
        A(f"s_waitcnt lgkmcnt(2)\nv_pk_add_f32 {v(G,2)}, {v(G+4,2)}, {v(G+6,2)}\ns_waitcnt lgkmcnt(1)\nv_pk_add_f32 {v(G+8,2)}, {v(G+8,2)}, {v(G+10,2)}")
        A(f"v_pk_add_f32 {v(G,2)}, {v(G,2)}, {v(G+8,2)}\ns_waitcnt lgkmcnt(0)\nv_pk_add_f32 {v(G+2,2)}, {v(G+12,2)}, {v(G+14,2)}")
    elif opt:
        PA = lambda a, b: A(f"v_pk_add_f32 {v(a,2)}, {v(a,2)}, {v(b,2)}\nv_pk_add_f32 {v(a+2,2)}, {v(a+2,2)}, {v(b+2,2)}")
        for i in range(4): A(f"ds_read_b128 {v(G+4*i,4)}, v{XR+7} offset:{L_RED+1024*i}")
        A("s_waitcnt lgkmcnt(2)"); PA(G, G+4)
        A("s_waitcnt lgkmcnt(1)"); PA(G, G+8)
        if not merge:
            A("s_branch L_Cpub\nL_Cpubf:")
            A(f"ds_read_b128 {v(G,4)}, v{XR+7} offset:{L_RED+4096}\nds_read_b128 {v(G+12,4)}, v{XR+7} offset:{L_RED+4096+1024}")
        A("L_Cpub:\ns_waitcnt lgkmcnt(0)"); PA(G, G+12)
    else:
        for i in range(4): A(f"ds_read_b128 {v(G+4*i,4)}, v{XR+7} offset:{L_RED+1024*i}")
        A("s_waitcnt lgkmcnt(0)")
        for i in range(4): A(f"v_add_f32 v{G+i}, v{G+i}, v{G+8+i}\nv_add_f32 v{G+4+i}, v{G+4+i}, v{G+12+i}")
        A("s_branch L_Cpub")
        A("L_Cpubf:")
        for i in range(2): A(f"ds_read_b128 {v(G+4*i,4)}, v{XR+7} offset:{L_RED+4096+1024*i}")
        A("s_waitcnt lgkmcnt(0)")
        A("L_Cpub:")
        for i in range(4): A(f"v_add_f32 v{G+i}, v{G+i}, v{G+4+i}")
    if hack == 8: A("L_h8:")
    tag(G, 4, vTG)
    store(XR+3, G, 4, sWS, sst)
    stamp("pubS")
    if g2: A("s_waitcnt vmcnt(0)")
    elif ackwait: A(f"s_cmp_eq_u32 s{sWAVE}, 1\ns_cbranch_scc1 L_Cdone\ns_waitcnt vmcnt(0)")
    else: A("s_branch L_Cdone")
    A("L_Cfin:")
    if fsleep: A(f"s_sleep {fsleep}")
    if flag2:
        nf = 4 if fall else 1
        for k in range(1, nf): A(f"v_add_u32 v{F+8+k}, {8192*k}, v{FIN+7}")
        A(f"s_mov_b32 s{sCNT}, 0\nL_pf:")
        for k in range(nf): A(f"global_load_dword v{F+k}, v{F+8+k if k else FIN+7}, s[{sWS}:{sWS+1}] sc1")
        A(f"s_add_u32 s{sCNT}, s{sCNT}, 1\ns_waitcnt vmcnt(0)")
        if fall: A(f"v_bitop3_b32 v5, v{F}, v{F+1}, s{sT} bitop3:0x7e\nv_bitop3_b32 v5, v5, v{F+2}, s{sT} bitop3:0xf6\nv_bitop3_b32 v5, v5, v{F+3}, s{sT} bitop3:0xf6\nv_cmp_ne_u32 vcc, 0, v5")
        else: A(f"v_cmp_ne_u32 vcc, s{sT}, v{F}")
        A(f"s_and_b64 exec, exec, vcc\ns_cbranch_scc0 L_pf_x\ns_cmp_lt_u32 s{sCNT}, 4096\ns_cbranch_scc1 L_pf\nL_pf_x:\ns_mov_b64 exec, -1")
        if fdelay: A(f"s_sleep {fdelay}")
    if pipeS: pollpipe("L_pollS", [(XR+4, 0), (XR+5, 0)][:1 if g2 else 2], [160 + 8*r for r in range(pipeS)], G, 7, stagS)
    else: poll("L_pollS", [(G, 4, XR+4, 0), (G+4, 4, XR+5, 0)][:1 if hack in (1, 2) else 2], 7)
    stamp("gathS")
    if hack == 7: A("s_branch L_h7")
    D2 = lambda r, b: f"v_add_f32_dpp v{r}, v{r}, v{r} {DPP[b]} row_mask:0xf bank_mask:0xf"
    if g2:
        f_, s_ = G + 2, G
        for a in (f_, s_): A(f"v_permlane32_swap_b32 v{a}, v{a+1}")
        for a in (f_, s_): A(f"v_add_f32 v{a}, v{a}, v{a+1}")
        for a in (f_, s_): A(f"v_mov_b32 v{a+1}, v{a}")
        for a in (f_, s_): A(f"v_permlane16_swap_b32 v{a}, v{a+1}")
        for a in (f_, s_): A(f"v_add_f32 v{a}, v{a}, v{a+1}")
    else:
        f_, s_ = G + 4, G
        for a in (f_, f_+1, s_, s_+1): A(f"v_permlane32_swap_b32 v{a}, v{a+2}")
        for a in (f_, s_): A(f"v_pk_add_f32 {v(a,2)}, {v(a,2)}, {v(a+2,2)}")
        for a in (f_, s_): A(f"v_permlane16_swap_b32 v{a}, v{a+1}")
        for a in (f_, s_): A(f"v_add_f32 v{a}, v{a}, v{a+1}")
    for b in range(4): A(D2(f_, b) + ("\n" + D2(s_, b) if b < 3 else ""))
    bf16r(6, f_)
    A(f"v_add_f32 v6, v6, v{FIN+1}"); bf16r(6, 6)
    A(f"v_mul_f32 v7, {LOG2E ^ 0x80000000}, v6\nv_exp_f32 v7, v7\n{D2(s_, 3)}\nv_add_f32 v7, 1.0, v7\nv_rcp_f32 v7, v7")
    bf16r(5, s_)
    A("v_mul_f32 v6, v6, v7"); bf16r(6, 6)
    A("v_mul_f32 v5, v5, v6"); bf16r(5, 5)
    A(f"v_add_f32 v5, v5, v{FIN}\nv_cvt_pk_bf16_f32 v5, v5, v5")
    if hack == 7: A("L_h7:")
    if hops: A("s_branch L_hop0\nL_hopback:")
    if echo:
        r = 64 + 2*CNAMES.index(lx)
        A(f"s_cmp_eq_u32 s2, 0\ns_cbranch_scc0 L_noecho\ns_memrealtime s[58:59]\ns_waitcnt lgkmcnt(0)\ns_sub_u32 s40, s{r}, s64")
        if eskew:
            A(f"s_load_dwordx8 s[32:39], s[{sWS}:{sWS+1}], 0x2000 glc\ns_waitcnt lgkmcnt(0)")
            if eskew == 1:
                A("s_mov_b32 s40, s32\ns_mov_b32 s41, s32")
                for k in range(1, 8): A(f"s_max_u32 s40, s40, s{32+k}\ns_min_u32 s41, s41, s{32+k}")
                A("s_sub_u32 s40, s40, s41")
            elif eskew == 2:
                A("s_add_u32 s40, s36, s37\ns_add_u32 s40, s40, s38\ns_add_u32 s40, s40, s39\ns_sub_u32 s40, s40, s32\ns_sub_u32 s40, s40, s33\ns_sub_u32 s40, s40, s34\ns_sub_u32 s40, s40, s35\ns_add_u32 s40, s40, 600\ns_lshr_b32 s40, s40, 2")
            else:
                A("s_mov_b32 s41, s32")
                for k in range(1, 8): A(f"s_min_u32 s41, s41, s{32+k}")
                A(f"s_sub_u32 s40, s{32+eskew-10}, s41")
        A(f"s_mul_i32 s40, s40, {echo}\ns_min_u32 s40, s40, 20000")
        A("L_echo:\ns_memrealtime s[60:61]\ns_waitcnt lgkmcnt(0)\ns_sub_u32 s41, s60, s58\ns_cmp_lt_u32 s41, s40\ns_cbranch_scc1 L_echo\nL_noecho:")
    if chain:
        A("s_cmp_eq_u32 s2, 0\ns_cbranch_scc0 L_nochain\nv_mov_b32 v6, 0")
        for k in range(chain):
            A(f"global_load_dword v7, v6, s[{sK if k % 2 else sV}:{(sK if k % 2 else sV)+1}] nt\ns_waitcnt vmcnt(0)\nv_add_u32 v6, {(k % 2) << 23}, v6")
        A("L_nochain:")
    A("s_mov_b32 exec_lo, 1\ns_mov_b32 exec_hi, 1" if g2 else "s_mov_b32 exec_lo, 0x00010001\ns_mov_b32 exec_hi, 0x00010001")
    A(f"global_store_short v{FIN+2}, v5, s[{sOUT}:{sOUT+1}] {outfl}")
    A(f"s_or_b32 s40, s2, s{sWAVE}\ns_cbranch_scc1 L_Cdone")
    A(f"s_mov_b64 exec, 1\nv_mov_b32 v5, 0\nglobal_store_dword v5, v{vTG}, s[{sWS}:{sWS+1}]")
    A("L_Cdone:")
    stamp("end")
    dump()
    A("s_endpgm")
    if g2 and not diag and not lite: A("L_Cbar:\ns_waitcnt lgkmcnt(0)\ns_barrier\ns_endpgm")

    cpart = A.L; A.L = []
    role[0] = "S"
    KO, PM = 4, 12
    VV, KF, XP, A1, A2 = 32, 96, 112, 144, 148
    EA = 152
    sW = 33
    if jk: A(f"s_xor_b32 s{sJ}, s{sJ}, {jk}")
    A(f"s_lshr_b32 s34, s2, 7\ns_lshl_b32 s34, s34, 3\ns_add_u32 s34, s34, s{sXC}\ns_lshl_b32 s34, s34, 23\ns_and_b32 s35, s{sJ}, 15")
    if pat >= 3:
        R = {3: "s_and_b32 s46, s2, 3", 4: f"s_and_b32 s46, s{sJ}, 3", 5: f"s_lshr_b32 s46, s{sJ}, 2\ns_add_u32 s46, s46, s2\ns_and_b32 s46, s46, 3",
             6: f"s_bfe_u32 s46, s{sJ}, 0x20002", 7: f"s_and_b32 s46, s{sWAVE}, 3", 8: f"s_add_u32 s46, s2, s{sJ}\ns_and_b32 s46, s46, 3",
             9: "s_bfe_u32 s46, s2, 0x20001", 10: f"s_lshr_b32 s46, s2, 6\ns_and_b32 s46, s46, 2\ns_xor_b32 s46, s46, s2\ns_and_b32 s46, s46, 3",
             11: f"s_add_u32 s46, s2, s{sWAVE}\ns_and_b32 s46, s46, 3",
             12: f"s_add_u32 s46, s2, s{sJ}\ns_add_u32 s46, s46, s{sWAVE}\ns_and_b32 s46, s46, 3",
             13: f"s_lshr_b32 s46, s{sJ}, 2\ns_add_u32 s46, s46, s{sJ}\ns_add_u32 s46, s46, s2\ns_and_b32 s46, s46, 3",
             14: f"s_lshr_b32 s46, s2, 2\ns_add_u32 s46, s46, s2\ns_and_b32 s46, s46, 3",
             15: f"s_lshr_b32 s46, s{sJ}, 4\ns_add_u32 s46, s46, s{sJ}\ns_add_u32 s46, s46, s2\ns_and_b32 s46, s46, 3"}[pat]
        A(R + "\ns_lshl_b32 s36, s46, 18\ns_add_u32 s34, s34, s36")
    if pat != 1:
        A(f"s_lshl_b32 s35, s35, 2\ns_add_u32 s35, s35, s{sWAVE}\ns_lshl_b32 s35, s35, 12\ns_add_u32 s34, s34, s35\ns_add_u32 s34, s34, {28672*256 - 4*4096}")
    else:
        A(f"s_lshl_b32 s36, s{sWAVE}, 4\ns_add_u32 s35, s35, s36\ns_lshl_b32 s35, s35, 12\ns_add_u32 s34, s34, s35\ns_add_u32 s34, s34, {28672*256 - 64*4096}")
    A(f"v_lshlrev_b32 v14, 2, v2\nv_xor_b32 v14, v14, v1\nv_lshlrev_b32 v14, 4, v14\nv_lshl_add_u32 v{KO}, v2, 8, v14")
    for i in range(1, 4): A(f"v_xor_b32 v{KO+i}, {16*i}, v{KO}")
    A(f"s_lshl_b32 s36, s{sWAVE}, 14\ns_sub_u32 s36, s36, {4*16384 - L_K}")
    if not coop: A("s_waitcnt lgkmcnt(0)")
    pr(1)
    addbase(sK, "s34")
    def setup2():
        karg2()
        addbase(sV, "s34")
        A(f"s_sub_u32 s{sW}, s{sWAVE}, 4\nv_lshlrev_b32 v3, 4, v0\ns_lshl_b32 s37, s{sW}, 2\nv_mov_b32 v14, s37\nv_mov_b32 v15, 1")
        if boost: A(f"s_xor_b32 s38, s{sJ}, {jq ^ 1}\ns_and_b32 s38, s38, 3\ns_cselect_b64 vcc, 0, -1")
        pr(0)
        A("s_barrier")
    if not head: setup2()
    stamp("first")
    later = Asm()
    B = later
    B(f"v_and_b32 v26, 3, v0\nv_lshlrev_b32 v26, 4, v26\nv_mov_b32 v{PM}, 0xffff\nv_mov_b32 v{PM+1}, 0\nv_lshlrev_b64 v[{PM}:{PM+1}], v26, v[{PM}:{PM+1}]")
    B(f"s_lshl_b32 s38, s{sW}, 10\nv_lshl_add_u32 v{EA+1}, v0, 4, s38")
    B(f"s_lshl_b32 s38, s{sW}, 11\nv_lshl_add_u32 v{EA+2}, v0, 4, s38")
    B(f"v_and_b32 v24, 1, v0\nv_lshlrev_b32 v24, 10, v24\nv_bfe_u32 v25, v0, 1, 4\nv_lshl_add_u32 v24, v25, 4, v24\ns_lshl_b32 s38, s{sW}, 8\nv_add_u32 v{EA+3}, s38, v24")
    B(f"s_lshl_b32 s38, s{sXC}, 2\ns_add_u32 s38, s38, s{sW}\ns_lshr_b32 s39, s{sJ}, 4\ns_and_b32 s40, s{sJ}, 7\ns_bfe_u32 s41, s{sJ}, 0x10003")
    B(f"s_lshl_b32 s39, s39, 7\ns_lshl_b32 s40, s40, 4\ns_add_u32 s39, s39, s40")
    B(f"s_lshl_b32 s40, s38, 14\ns_lshl_b32 s42, s41, 10\ns_add_u32 s40, s40, s42\ns_add_u32 s40, s40, s39\ns_add_u32 s40, s40, {OP}")
    B(f"v_bfe_u32 v24, v0, 2, 3\nv_lshlrev_b32 v24, 11, v24\nv_and_b32 v25, 3, v0\nv_lshl_add_u32 v24, v25, 8, v24\nv_add_u32 v{EA+4}, s40, v24")
    B(f"s_lshl_b32 s38, s38, 9\ns_lshl_b32 s41, s41, 8\ns_add_u32 s38, s38, s41\ns_add_u32 s38, s38, s39\ns_add_u32 s38, s38, {ML}\nv_mov_b32 v25, s38")
    B(f"s_mov_b32 s42, -1\ns_mov_b32 s43, 0\ns_lshl_b32 s38, s{sXC}, 5\ns_add_u32 s38, s38, s{sJ}\nv_cndmask_b32 v{EA+4}, v25, v{EA+4}, s[42:43]")
    B(f"s_lshl_b32 s38, s38, 2\ns_add_u32 s38, s38, s{sW}\ns_lshl_b32 s38, s38, 9\ns_add_u32 s38, s38, {OP}\nv_lshl_add_u32 v{EA+9}, v0, 4, s38\nv_cndmask_b32 v{EA+9}, v25, v{EA+9}, s[42:43]")
    B(f"s_lshl_b32 s38, s{sW}, 4\nv_mov_b32 v{EA+6}, s38\nv_mov_b32 v{EA+8}, {TAGM}")
    chunks = [later.L[i::1] for i in (0,)][0]
    per = -(-len(chunks) // 8)
    def bump(r, T):
        if pat >= 3:
            A(f"s_xor_b32 s45, s46, {T+1}\ns_xor_b32 s44, s46, {T}\ns_sub_i32 s44, s45, s44\ns_lshl_b32 s44, s44, 18\ns_ashr_i32 s45, s44, 31")
            return A(f"s_add_u32 s{r}, s{r}, s44\ns_addc_u32 s{r+1}, s{r+1}, s45")
        if pat != 2: return addbase(r, 262144)
        A(f"s_and_b32 s44, s{sJ}, 3\ns_xor_b32 s45, s44, {T+1}\ns_xor_b32 s44, s44, {T}\ns_sub_u32 s44, s45, s44\ns_add_u32 s44, s44, 16\ns_lshl_b32 s44, s44, 14")
        addbase(r, "s44")
    cnt = [0]
    def after():
        cnt[0] += 1
        n = cnt[0]
        if n == head: setup2()
        if n == 13: A(f"s_waitcnt lgkmcnt(0)\ns_load_dword s{sT}, s[{sWS}:{sWS+1}], 0")
        if n == trig: A(f"ds_write_b32 v14, v15 offset:{L_FT}")
        if 4 <= n < 12:
            for line in chunks[(n-4)*per:(n-3)*per]: A(line)
        p = paceK if n <= 16 else (paceV if n - 16 <= paceVUntil else 0)
        if dip and trig - 2 <= n < trig - 2 + dip: p -= dipw
        if p and n + (2 if coop and n < p else 0) >= p and n < 32:
            if n <= boost: A(f"s_waitcnt vmcnt({p-1+bw})\ns_cbranch_vccnz L_b{n}\ns_waitcnt vmcnt({p-1})\nL_b{n}:")
            else: A(f"s_waitcnt vmcnt({p-1})")
        if coop and n == paceK - 1:
            assert n >= head
            A(f"ds_write_b32 v14, v15 offset:{L_FW+16}")
        if n == 16: stamp("Kiss")
    for T in range(4):
        A(f"s_mov_b32 m0, s36\ns_add_u32 s36, s36, 4096")
        for i in range(4):
            A(f"global_load_lds_dwordx4 v{KO+i}, s[{sK}:{sK+1}] offset:{1024*i} {nt}"); after()
        if T < 3: bump(sK, T)
    for n in range(16):
        A(f"global_load_dwordx4 {v(VV+4*n,4)}, v3, s[{sV}:{sV+1}] offset:{1024*(n&3)} {nt}"); after()
        if n == kpos: A(f"s_waitcnt vmcnt({n+1})\nds_write_b32 v14, v15 offset:{L_FK}")
        if n == fvpos and not woTrig: A(f"ds_write_b32 v14, v15 offset:{L_FV}")
        if n & 3 == 3 and n < 15: bump(sV, n >> 2)
    stamp("issued")
    get_tag()
    A(f"v_mov_b32 v{EA+7}, s{sT}\ns_mov_b32 s36, {LOG2E}")
    waitflag("L_wfP", L_FP, 1, 4, 14)
    A(f"s_mov_b32 s40, s52\nds_read_b128 v[4:7], v{EA+1} offset:{L_P}\ns_waitcnt lgkmcnt(0)")
    for T in range(4):
        for i in range(4):
            for j in range(2):
                A(f"v_and_b32_dpp v{XP+2*(4*T+i)+j}, v{4+T}, v{PM+j} quad_perm:[{i},{i},{i},{i}] row_mask:0xf bank_mask:0xf")
    stamp("pready")
    for n in range(16):
        if opt and n == wpos:
            A("v_mov_b32 v8, 0")
            waitflag("L_wfP4", L_FP, 4, 4, 8)
            A(f"ds_read_b128 v[16:19], v{EA+6} offset:{L_MX}\nds_read_b128 v[20:23], v{EA+6} offset:{L_LW}\ns_waitcnt lgkmcnt(1)")
            A(f"v_max3_f32 v24, v16, v17, v18\nv_max_f32 v24, v24, v19\nv_mul_f32 v25, {LOG2E ^ 0x80000000}, v24")
            for i in range(4): A(f"v_fma_f32 v{16+i}, v{16+i}, s36, v25")
            for i in range(4): A(f"v_exp_f32 v{8+2*i}, v{16+i}")
            A("s_waitcnt lgkmcnt(0)\nv_mul_f32 v25, v20, v8\nv_fmac_f32 v25, v21, v10\nv_fmac_f32 v25, v22, v12\nv_fmac_f32 v25, v23, v14")
        A(f"s_waitcnt vmcnt({15-n})")
        if woTrig == n + 1: A(f"ds_write_b32 v14, v15 offset:{L_FV}")
        A(f"v_mfma_f32_16x16x16_bf16 {v(A1,4)}, {v(XP+2*n,2)}, {v(VV+4*n,2)}, {v(A1,4) if n else 0}")
        A(f"v_mfma_f32_16x16x16_bf16 {v(A2,4)}, {v(XP+2*n,2)}, {v(VV+4*n+2,2)}, {v(A2,4) if n else 0}")
    stamp("PVdone")
    if hack == 4:
        for i in range(2): A(f"v_cndmask_b32 v{A1+i}, v{24+i}, v{A1+i}, s[42:43]")
        tag(A1, 4, EA+7)
        A("s_mov_b32 exec_hi, 1"); store(EA+4, A1, 4, sWS); A("s_barrier\ns_endpgm")
    A(f"ds_write_b128 v{EA+2}, {v(A1,4)} offset:{L_O}\nds_write_b128 v{EA+2}, {v(A2,4)} offset:{L_O+1024}")
    A("s_waitcnt lgkmcnt(0)\ns_barrier")
    stamp("barC")
    if opt:
        for i in range(4): A(f"ds_read_b128 {v(KF+4*i,4)}, v{EA+3} offset:{L_O+2048*i}")
        A("s_waitcnt lgkmcnt(3)")
        for i in (0, 2): A(f"v_pk_mul_f32 {v(KF+i,2)}, {v(KF+i,2)}, v[8:9] op_sel_hi:[1,0]")
        for k in range(1, 4):
            A(f"s_waitcnt lgkmcnt({3-k})")
            for i in (0, 2): A(f"v_pk_fma_f32 {v(KF+i,2)}, {v(KF+4*k+i,2)}, {v(8+2*k,2)}, {v(KF+i,2)} op_sel_hi:[1,0,1]")
    else:
        A(f"ds_read_b128 v[16:19], v{EA+6} offset:{L_MX}\nds_read_b128 v[20:23], v{EA+6} offset:{L_LW}")
        for i in range(4): A(f"ds_read_b128 {v(KF+4*i,4)}, v{EA+3} offset:{L_O+2048*i}")
        A("s_waitcnt lgkmcnt(5)")
        A(f"v_max3_f32 v24, v16, v17, v18\nv_max_f32 v24, v24, v19\nv_mul_f32 v25, {LOG2E ^ 0x80000000}, v24")
        for i in range(4): A(f"v_fma_f32 v{16+i}, v{16+i}, s36, v25")
        for i in range(4): A(f"v_exp_f32 v{16+i}, v{16+i}")
        A("s_waitcnt lgkmcnt(3)")
        A("v_mul_f32 v25, v20, v16")
        for i in range(4): A(f"v_mul_f32 v{KF+i}, v{KF+i}, v16")
        A("v_fmac_f32 v25, v21, v17\nv_fmac_f32 v25, v22, v18\nv_fmac_f32 v25, v23, v19")
        for k in range(1, 4):
            A(f"s_waitcnt lgkmcnt({3-k})")
            for i in range(4): A(f"v_fmac_f32 v{KF+i}, v{KF+4*k+i}, v{16+k}")
    for i in range(2): A(f"v_cndmask_b32 v{KF+i}, v{24+i}, v{KF+i}, s[42:43]")
    tag(KF, 4, EA+7)
    A("s_mov_b32 exec_hi, 1")
    store(EA+4, KF, 4, sWS, ost)
    stamp("pub")
    A("s_cmp_eq_u32 s40, 1\ns_cbranch_scc1 L_Snob")
    store(EA+9, KF, 4, sWSB, "sc1")
    A("L_Snob:")
    dump()
    A("L_end:\ns_endpgm")
    A.L = entry + A.L + cpart
    if cpf: A("; never executed: keeps the code-prefetch loads at the entry inside this section\n.fill 416, 4, 0xbf810000")
    for h in range(hops):
        A(f".p2align 10\nL_hop{h}:\ns_branch {'L_hop%d' % (h+1) if h + 1 < hops else 'L_hopback'}")

    head = (hdr or "") + DOC + f"; @launch grid=(256,1,1) block=(512,1,1) lds={LDS_BYTES + (16384 if coop else 0) + (8192 if tr else 0)}\n"
    head += f'.amdgcn_target "amdgcn-amd-amdhsa--gfx950"\n.text\n.globl {K}\n.p2align 8\n.type {K},@function\n'
    tail = f""".section .rodata,"a"
.p2align 6
.amdhsa_kernel {K}
  .amdhsa_next_free_vgpr 216
  .amdhsa_next_free_sgpr 102
  .amdhsa_accum_offset 216
  .amdhsa_group_segment_fixed_size 0
  .amdhsa_kernarg_size 104
  .amdhsa_user_sgpr_count 2
  .amdhsa_user_sgpr_kernarg_segment_ptr 1
  .amdhsa_system_sgpr_workgroup_id_x 1
  .amdhsa_float_denorm_mode_32 3
.end_amdhsa_kernel
"""
    return head + A.finish() + tail

def header():
    ref = open(f"cdna_kernels/{NAME}.s.ref").read().split("\n")
    return "\n".join(l for l in ref if l.startswith(";") and "@launch" not in l and not l.startswith("; Override") and not l.startswith("; grid=")) + "\n"

if __name__ == "__main__":
    out = sys.argv[1] if len(sys.argv) > 1 else f"cdna_kernels/{NAME}.s"
    open(out, "w").write(gen(hdr=header()))
```

```python
import sys, os
sys.path.insert(0, os.path.dirname(os.path.abspath(__file__)))
from asmlib import Asm
NAME = "recurrent_scan__sliding_block_cached__dense_activation_squared_relu__decode"

FLG = 0x300000
IDS = 0x1000
QP, HP, OP, ML, SPS, SPF, STAMP = 0x10000, 0x50000, 0x100000, 0x180000, 0x200000, 0x250000, 0x400000
SPSTR = 1152
DELTA = 0x800000
L_K, L_Q, L_MX, L_LW, L_O, L_RED = 18432, 0, 1280, 1344, 1536, 9728
L_QSTR = 272
L_FT, L_FV, L_FQ, L_FK, L_FP = 1408, 1424, 1440, 1456, 1472
L_FW = 1488
L_W = 83968
L_W1 = L_W + 16384
L_XN = L_O + 2048
L_P = L_RED
LDS_BYTES = 83968
TAGM = 0x3ff
LOG2E = 0x3fb8aa3b
SCALE = 0x3db504f3

CNAMES = ["start", "issued", "LNdone", "pub1", "FT", "qgath", "FK", "pready", "FV", "first", "barC", "wohere", "gathO", "pubS", "gathS", "end"]
SNAMES = ["start", "first", "Kiss", "issued", "pready", "PVdone", "barC", "pub"]
DOC = """; One launch, 256 workgroups of 8 waves, one per CU.  Hand-offs between workgroups go through d_ws: every 32-bit word
; carries a per-launch tag in its low bits (tag = word 0 of d_ws at entry + 1, stored back at the end), readers spin until
; plain stores (visible through the die's L2) and, unless all 32 members have reported the same die id, a second time
"""
def v(a, n=1): return f"v{a}" if n == 1 else f"v[{a}:{a+n-1}]"

def gen(diag=False, nt="nt", limit=200000, hdr=None, hops=0, trig=19, paceK=8, paceV=7, kpos=5, warmLN=False,
        wofirst=False, pretouch=True, fbmask=31, prioC=0, diagwo=True, woTrig=0, spin=0, pat=8, owait=2, ackwait=True, head=3, lite=False, paceVUntil=16, fvpos=15, dirty=0, fsleep=0, lx="first", cpf=244, sfirst=True, probe=False, smtest=False, qst="", qld="sc1 nt", noq=False, noh=False, preQ=0, hlate=True, tlb=0, chain=0, echo=0, flag2=0, dfl="", ost="", hack=0, swap=False, opt=1, wpos=10, jx=0, jq=3, jk=0, wpat=0, boost=0, bw=1, pipeS=2, stagS=0, pipeO=0, stagO=1, spre="", sst="sc1", outfl="", ptpos=0, ptfl="sc1 nt", fall=False, fdelay=0, merge=True, mstr=2304, coop=True, latetag=True, eskew=0, tr=True, g2=True, kfirst=True, dip=0, dipw=2, k2top=True, q2=True, idst="", xfl="", pfl="sc1", ofl="sc1", cfl=""):
    A = Asm()
    sX, sK, sV, sWQ, sWO, sW1, sB1, sW2, sB2, sOUT, sWS = 4, 6, 8, 10, 12, 16, 18, 20, 22, 24, 26
    sT, sWAVE, sXC, sJ = 28, 29, 30, 31
    sCNT, sWSB, sID, sT8 = 46, 48, 50, 51
    role = ["C"]
    def stamp(k):
        names = SNAMES if role[0] == "S" else CNAMES
        if diag or ((lite or echo) and role[0] == "C" and k in ("start", "end", lx)): A(f"s_memrealtime s[{64+2*names.index(k)}:{65+2*names.index(k)}]")
    def addbase(r, off):
        A(f"s_add_u32 s{r}, s{r}, {off}\ns_addc_u32 s{r+1}, s{r+1}, 0")
    DPP = {0: "quad_perm:[1,0,3,2]", 1: "quad_perm:[2,3,0,1]", 2: "row_half_mirror", 3: "row_mirror"}
    def allred(regs, op, bits, tmp):
        for b in bits:
            for r in regs:
                if b < 4:
                    A(f"{op}_dpp v{r}, v{r}, v{r} {DPP[b]} row_mask:0xf bank_mask:0xf")
                else:
                    A(f"v_mov_b32 v{tmp}, v{r}")
                    A(f"v_permlane{16 if b == 4 else 32}_swap_b32 v{r}, v{tmp}")
                    A(f"{op} v{r}, v{r}, v{tmp}")
    def bf16r(dst, src):
        A(f"v_cvt_pk_bf16_f32 v{dst}, 0, v{src}")
    def unpack(dst, src, n):
        for i in range(n):
            A(f"v_lshlrev_b32 v{dst+2*i}, 16, v{src+i}\nv_and_b32 v{dst+2*i+1}, 0xffff0000, v{src+i}")
    def delta(dst, val, masks, n, tmp):
        A(f"v_cvt_pk_bf16_f32 v{tmp}, v{val}, v{val}")
        for j in range(n): A(f"v_and_b32 v{dst+j}, v{tmp}, v{masks+j}")
    def tag(r, n, vT):
        for i in range(n): A(f"v_bfi_b32 v{r+i}, v{vT+1}, v{vT}, v{r+i}")
    def issue(loads, base, fl="sc1"):
        for (d, n, a, off) in loads:
            A(f"global_load_dword{'x%d' % n if n > 1 else ''} {v(d, n)}, v{a}, s[{base}:{base+1}] offset:{off} {fl}")
    def check(dws, tmp, spare):
        parts = []
        for k in range(0, len(dws), 4):
            a, b, c, d = dws[k:k+4]
            u, w = spare + k // 2, spare + k // 2 + 1
            A(f"v_bitop3_b32 v{u}, v{a}, v{b}, v{c} bitop3:0x7e\nv_bitop3_b32 v{w}, v{c}, v{d}, s{sT} bitop3:0x7e")
            parts += [u, w]
        while len(parts) > 2:
            if len(parts) == 3: A(f"v_or_b32 v{parts[0]}, v{parts[0]}, v{parts[1]}"); parts = [parts[0], parts[2]]
            else: A(f"v_or3_b32 v{parts[0]}, v{parts[0]}, v{parts[1]}, v{parts[2]}"); parts = [parts[0]] + parts[3:]
        A(f"v_bitop3_b32 v{tmp}, v{parts[0]}, v{parts[1]}, v15 bitop3:0xa8\nv_cmp_ne_u32 vcc, 0, v{tmp}")
    def poll(name, loads, tmp, loadsB=None, first=None, narrow=False, strip=True, spare=None):
        A(f"s_mov_b32 s{sCNT}, 0")
        if first == 0: A(f"s_branch {name}_c")
        elif first is not None: A(f"s_waitcnt vmcnt({first})\ns_branch {name}_f")
        A(f"{name}:")
        if diag and name[-1] in "OS": A("s_memtime s[58:59]")
        issue(loads, sWS, ofl if name[-1] == "O" else qld if name[-1] in "QH" else pfl)
        dws = [r for (d, n, a, off) in loads for r in range(d, d + n)]
        A(f"{name}_c:\ns_waitcnt vmcnt(0)")
        A(f"{name}_f:")
        if diag and name[-1] in "OS":
            r = 60 if name[-1] == "O" else 62
            A(f"s_memtime s[100:101]\ns_waitcnt lgkmcnt(0)\ns_sub_u32 s{r+1}, s100, s58\ns_cmp_eq_u32 s{sCNT}, 2\ns_cselect_b32 s{r}, s{r+1}, s{r}")
        if strip:
            for d in dws: A(f"v_xor_b32 v{d}, s{sT8 if narrow else sT}, v{d}")
            A(f"v_or3_b32 v{tmp}, v{dws[0]}, v{dws[1]}, v{dws[2]}")
            for k in range(3, len(dws) - 1, 2): A(f"v_or3_b32 v{tmp}, v{tmp}, v{dws[k]}, v{dws[k+1]}")
            if len(dws) % 2 == 0: A(f"v_or_b32 v{tmp}, v{tmp}, v{dws[-1]}")
            A(f"v_and_b32 v{tmp}, {0xff if narrow else TAGM}, v{tmp}\nv_cmp_ne_u32 vcc, 0, v{tmp}")
        else: check(dws, tmp, 32)
        A(f"s_and_b64 exec, exec, vcc\ns_cbranch_scc0 {name}_x")
        A(f"s_add_u32 s{sCNT}, s{sCNT}, 1\ns_cmp_gt_u32 s{sCNT}, {limit}\ns_cbranch_scc1 {name}_x")
        if spare is not None:
            A(f"s_cmp_eq_u32 s{sCNT}, 1\ns_cbranch_scc0 {name}_n\ns_waitcnt vmcnt(0)")
            for k, d in enumerate(dws): A(f"v_mov_b32 v{d}, v{spare+k}")
            A(f"s_branch {name}_f\n{name}_n:")
        if loadsB:
            A(f"s_cmp_eq_u32 s53, 1\ns_cbranch_scc1 {name}\ns_and_b32 s52, s{sCNT}, 1\ns_cbranch_scc0 {name}")
            issue(loadsB, sWSB)
            A(f"s_branch {name}_c")
        else:
            A(f"s_branch {name}")
        A(f"{name}_x:\ns_mov_b64 exec, -1")
        if diag: A(f"s_mov_b32 s{ {'H':96,'Q':96,'O':97,'S':98}[name[-1]] }, s{sCNT}")
    def pollpipe(name, addrs, sets, final, tmp, stag, loadsB=None):
        nl = len(addrs); R = len(sets)
        def iss(r): issue([(sets[r] + 4*k, 4, a, off) for k, (a, off) in enumerate(addrs)], sWS, pfl)
        A(f"s_mov_b32 s{sCNT}, 0\ns_mov_b64 s[54:55], -1")
        for r in range(R):
            iss(r)
            if r < R - 1 and stag: A(f"s_sleep {stag}")
        A(f"{name}:")
        for r in range(R):
            dws = list(range(sets[r], sets[r] + 4*nl))
            A(f"s_waitcnt vmcnt({nl*(R-1)})")
            check(dws, tmp, 32)
            A("s_andn2_b64 exec, exec, vcc")
            for k, d in enumerate(dws): A(f"v_xor_b32 v{final+k}, s{sT}, v{d}")
            A(f"s_and_b64 exec, s[54:55], vcc\ns_cbranch_scc0 {name}_x\ns_mov_b64 s[54:55], exec")
            iss(r)
        A(f"s_add_u32 s{sCNT}, s{sCNT}, 1\ns_cmp_lt_u32 s{sCNT}, {limit}\ns_cbranch_scc1 {name}")
        A(f"{name}_x:\ns_mov_b64 exec, -1")
        if diag: A(f"s_mov_b32 s{ {'O':97,'S':98}[name[-1]] }, s{sCNT}")
    def store(addr, data, n, base, fl=""):
        A(f"global_store_dwordx{n} v{addr}, {v(data,n)}, s[{base}:{base+1}] {fl}")
    def waitflag(name, off, n, t, addr):
        A(f"{name}:\nds_read_b{32*n} {v(t,n)}, v{addr} offset:{off}\ns_waitcnt lgkmcnt(0)")
        if n == 4: A(f"v_and_b32 v{t}, v{t}, v{t+1}\nv_and_b32 v{t+2}, v{t+2}, v{t+3}\nv_and_b32 v{t}, v{t}, v{t+2}")
        A(f"v_readfirstlane_b32 s52, v{t}\ns_cmp_lg_u32 s52, 0\n" + (f"s_cbranch_scc1 {name}_x\ns_sleep {spin}\ns_branch {name}\n{name}_x:" if spin else f"s_cbranch_scc0 {name}"))
    def wsb():
        A(f"s_add_u32 s{sWSB}, s{sWS}, {DELTA}\ns_addc_u32 s{sWSB+1}, s{sWS+1}, 0")
    def get_tag(b=True):
        if b: wsb()
        A(f"s_waitcnt lgkmcnt(0)\ns_add_u32 s{sT}, s{sT}, 1\ns_and_b32 s{sT}, s{sT}, {TAGM}\ns_and_b32 s{sT8}, s{sT}, 0xff")
        A(f"s_getreg_b32 s{sID}, hwreg(HW_REG_XCC_ID)\ns_lshl_b32 s{sID}, s{sID}, 10\ns_or_b32 s{sID}, s{sID}, s{sT}")
    def pr(k):
        if probe: A(f"s_memrealtime s[{96+2*k}:{97+2*k}]")
    def dump():
        if probe:
            A(f"s_waitcnt lgkmcnt(0)\ns_lshl_b32 s40, s2, 3\ns_add_u32 s40, s40, s{sWAVE}\ns_lshl_b32 s40, s40, 4\ns_add_u32 s40, s40, {STAMP+0x10000}")
            A(f"s_mov_b64 exec, 1\nv_mov_b32 v5, s40\nv_mov_b32 v6, s64\nv_mov_b32 v7, s96\nv_mov_b32 v8, s98\nglobal_store_dwordx3 v5, v[6:8], s[{sWS}:{sWS+1}]")
        if lite and role[0] == "C":
            A(f"s_waitcnt lgkmcnt(0)\ns_lshl_b32 s40, s2, 2\ns_add_u32 s40, s40, s{sWAVE}\ns_lshl_b32 s40, s40, 4\ns_add_u32 s40, s40, {STAMP}")
            A(f"s_mov_b64 exec, 1\nv_mov_b32 v5, s40\nv_mov_b32 v6, s64\nv_mov_b32 v7, s94\nv_mov_b32 v8, s{64+2*CNAMES.index(lx)}\nglobal_store_dwordx3 v5, v[6:8], s[{sWS}:{sWS+1}]")
        if not diag: return
        A("s_waitcnt lgkmcnt(0)")
        A(f"s_lshl_b32 s40, s2, 3\ns_add_u32 s40, s40, s{sWAVE}\ns_lshl_b32 s40, s40, 7\ns_add_u32 s40, s40, {STAMP}")
        A("s_mov_b64 exec, 1\nv_mov_b32 v5, s40")
        for k in range(16):
            A(f"v_mov_b32 v6, s{64+2*k}\nglobal_store_dword v5, v6, s[{sWS}:{sWS+1}] offset:{4*k}")
        for k in range(4):
            A(f"v_mov_b32 v6, s{60+k}\nglobal_store_dword v5, v6, s[{sWS}:{sWS+1}] offset:{80+4*k}")
        A(f"s_getreg_b32 s40, hwreg(HW_REG_HW_ID)\nv_mov_b32 v6, s40\nglobal_store_dword v5, v6, s[{sWS}:{sWS+1}] offset:96")
        for k in range(4):
            A(f"v_mov_b32 v6, s{96+k}\nglobal_store_dword v5, v6, s[{sWS}:{sWS+1}] offset:{64+4*k}")

    K = NAME + "_kernel"
    A(f"{K}:")
    stamp("start")
    A("s_load_dwordx16 s[4:19], s[0:1], 0")
    if cpf:
        A(f"s_getpc_b64 s[40:41]\nv_mul_u32_u24 v5, 20, v0\nglobal_load_dword v211, v5, s[40:41] offset:{cpf} {cfl}")
    def karg2(top=False):
        if top == k2top: A("s_load_dwordx4 s[20:23], s[0:1], 64\ns_load_dwordx2 s[24:25], s[0:1], 80\ns_load_dwordx2 s[26:27], s[0:1], 96")
    karg2(True)
    A("v_lshrrev_b32 v1, 6, v0\nv_and_b32 v0, 63, v0")
    A(f"s_lshr_b32 s{sJ}, s2, 3\ns_and_b32 s{sXC}, s2, 7")
    if jx: A(f"s_xor_b32 s{sJ}, s{sJ}, {jx}")
    A(f"v_readfirstlane_b32 s{sWAVE}, v1")
    A(f"s_cmp_ge_u32 s{sJ}, 32\ns_cbranch_scc1 L_end")
    if swap: A(f"s_xor_b32 s{sWAVE}, s{sWAVE}, 4")
    A("v_and_b32 v1, 15, v0\nv_lshrrev_b32 v2, 4, v0")
    if diag:
        for k in range(1, 18): A(f"s_mov_b64 s[{64+2*k}:{65+2*k}], 0")
        A("s_mov_b64 s[60:61], 0\ns_mov_b64 s[62:63], 0")
    if coop:
        if tr:
            A(f"s_and_b32 s40, s{sJ}, 7\ns_lshl_b32 s41, s{sXC}, 3\ns_add_u32 s40, s40, s41\ns_lshl_b32 s40, s40, 7")
            A(f"s_and_b32 s41, s{sJ}, 24\ns_add_u32 s41, s41, s{sWAVE}\ns_lshl_b32 s41, s41, 17\ns_add_u32 s40, s40, s41")
            A("v_and_b32 v4, 7, v0\nv_lshrrev_b32 v6, 3, v0\nv_and_b32 v7, 2, v6\nv_xor_b32 v7, v7, v4\nv_lshlrev_b32 v7, 4, v7")
            A("v_lshl_add_u32 v8, v6, 13, v7\nv_xor_b32 v9, 64, v8\nv_add_u32 v9, 64512, v9")
            A(f"s_lshl_b32 s41, s{sWAVE}, 11\ns_add_u32 m0, s41, {L_W}")
            A("v_and_b32 v3, 1, v6\nv_lshl_add_u32 v5, v2, 3, v4\nv_lshlrev_b32 v5, 5, v5\nv_lshl_add_u32 v5, v3, 10, v5")
        else:
            A(f"s_xor_b32 s40, s{sJ}, {jq}\ns_lshr_b32 s41, s40, 2\ns_and_b32 s40, s40, 3\ns_lshl_b32 s42, s{sXC}, 2\ns_add_u32 s40, s40, s42\ns_lshl_b32 s40, s40, 8")
            A(f"s_lshl_b32 s41, s41, 5\ns_add_u32 s41, s41, s{sWAVE}\ns_lshl_b32 s41, s41, 14\ns_add_u32 s40, s40, s41")
            A("v_lshlrev_b32 v8, 17, v2\nv_lshl_add_u32 v8, v1, 4, v8\nv_add_u32 v9, 7168, v8")
            A(f"s_lshl_b32 s41, s{sWAVE}, 11\ns_add_u32 m0, s41, {L_W}")
            A("v_bfe_u32 v3, v0, 3, 1\nv_and_b32 v4, 7, v0\nv_lshl_add_u32 v5, v2, 3, v4\nv_lshlrev_b32 v5, 5, v5\nv_lshl_add_u32 v5, v3, 10, v5")
        A(f"s_cmp_lt_u32 s{sWAVE}, 2\ns_waitcnt lgkmcnt(0)\ns_cbranch_scc0 L_nox")
        A(f"global_load_dwordx4 v[16:19], v5, s[{sX}:{sX+1}] {xfl}\nglobal_load_dwordx4 v[20:23], v5, s[{sX}:{sX+1}] offset:16 {xfl}\nL_nox:")
        addbase(sWQ, "s40")
        if lite or echo: stamp("first")
        A(f"global_load_lds_dwordx4 v8, s[{sWQ}:{sWQ+1}] {nt}\nglobal_load_lds_dwordx4 v9, s[{sWQ}:{sWQ+1}] offset:1024 {nt}")
    A(f"s_cmp_lt_u32 s{sWAVE}, 4\ns_cbranch_scc1 L_C")
    entry = A.L; A.L = []
    A(".p2align 8\nL_C:")
    if not coop: A("v_bfe_u32 v3, v0, 3, 1\nv_and_b32 v4, 7, v0")
    A(f"s_cmp_ge_u32 s{sWAVE}, 2\ns_cbranch_scc1 L_Cnoffn")

    MASK = 10; vTG = 14
    XS, XR, F, XO, W, ACC = 16, 24, 32, 48, 112, 176
    B1R = 180
    XF = 184
    FIN = 200
    def masks():
        A("v_and_b32 v5, 3, v0\nv_lshlrev_b32 v5, 4, v5\nv_mov_b32 v6, 0xffff\nv_mov_b32 v7, 0\nv_lshlrev_b64 v[6:7], v5, v[6:7]")
        A("v_cmp_gt_u32 vcc, 4, v4")
        A(f"v_cndmask_b32 v{MASK}, 0, v6, vcc\nv_cndmask_b32 v{MASK+1}, 0, v7, vcc")
        A(f"v_cndmask_b32 v{MASK+2}, v6, 0, vcc\nv_cndmask_b32 v{MASK+3}, v7, 0, vcc")
    if tr:
        A(f"s_cmp_eq_u32 s{sWAVE}, 0\ns_cbranch_scc1 L_Cwdone\ns_cmp_eq_u32 s{sXC}, 7\ns_cbranch_scc1 L_Cnoffn")
        A(f"s_lshr_b32 s40, s{sJ}, 2\ns_mul_i32 s39, s40, {64*3584}\ns_and_b32 s41, s{sJ}, 3\ns_lshl_b32 s42, s{sXC}, 2\ns_add_u32 s41, s41, s42\ns_lshl_b32 s42, s41, 7\ns_add_u32 s39, s39, s42")
        A(f"v_mul_u32_u24 v8, 3584, v6\nv_xor_b32 v9, 64, v7\nv_add_u32 v9, v9, v8\nv_add_u32 v9, {8*3584-1024}, v9\nv_add_u32 v8, v8, v7")
        addbase(sW1, "s39")
        for t in range(0, 8, 2):
            A(f"s_mov_b32 m0, {L_W1 + 1024*t}")
            if t: addbase(sW1, 16*3584)
            A(f"global_load_lds_dwordx4 v8, s[{sW1}:{sW1+1}] {nt}\nglobal_load_lds_dwordx4 v9, s[{sW1}:{sW1+1}] offset:1024 {nt}")
        A("L_Cwdone:")
        karg2()
        if k2top: A(f"s_load_dword s{sT}, s[{sWS}:{sWS+1}], 0")
        pr(0)
        A("s_barrier")
        stamp("issued")
        A(f"v_mov_b32 v{XF}, v5")
        A(f"s_cmp_eq_u32 s{sWAVE}, 1\ns_cbranch_scc1 L_Cp1")
        A(f"s_lshr_b32 s40, s{sJ}, 3\ns_lshl_b32 s34, s40, 8\ns_mov_b32 s35, {L_W}")
        A(f"s_bfe_u32 s41, s{sJ}, 0x20001\ns_lshl_b32 s42, s{sXC}, 2\ns_add_u32 s41, s41, s42\ns_lshl_b32 s41, s41, 2\ns_add_u32 s41, s41, s40\ns_lshl_b32 s41, s41, 1")
        A(f"s_and_b32 s42, s{sJ}, 1\ns_add_u32 s41, s41, s42\ns_lshl_b32 s37, s41, 8\ns_add_u32 s37, s37, {QP}\ns_mov_b32 s38, {32*4*512}\ns_branch L_Cpa")
        A(f"L_Cp1:\ns_lshl_b32 s34, s40, 7\ns_mov_b32 s35, {L_W1}\ns_mul_i32 s37, s40, 7168\ns_lshl_b32 s41, s41, 8\ns_add_u32 s37, s37, s41\ns_add_u32 s37, s37, {HP}\ns_mov_b32 s38, {8*7168}")
        A("L_Cpa:")
        A("v_bfe_u32 v5, v0, 1, 2\nv_lshl_add_u32 v5, v5, 2, v2\nv_lshl_add_u32 v9, v5, 4, s37\nv_and_b32 v5, 1, v0\nv_mad_u32_u24 v9, v5, s38, v9")
        if preQ: A(f"global_load_dword v210, v9, s[{sWS}:{sWS+1}] sc1")
        A(f"v_lshl_add_u32 v6, v2, 3, v4\nv_lshlrev_b32 v6, 3, v6\nv_lshl_add_u32 v{XF+1}, v3, 10, v6\nv_add_u32 v{XF+1}, s34, v{XF+1}")
        A(f"s_lshl_b32 s40, s{sWAVE}, 9\nv_lshl_add_u32 v{XF+2}, v3, 8, v6\nv_add_u32 v{XF+2}, s40, v{XF+2}")
        A(f"v_lshlrev_b32 v{XF+3}, 8, v5\nv_lshl_add_u32 v{XF+3}, v2, 4, v{XF+3}\nv_add_u32 v{XF+3}, s40, v{XF+3}")
        A(f"v_bfe_u32 v5, v0, 2, 2\nv_and_b32 v6, 3, v0\nv_lshlrev_b32 v6, 3, v6\nv_lshl_add_u32 v6, v5, 7, v6\nv_lshl_add_u32 v6, v2, 10, v6")
        A(f"v_and_b32 v5, 2, v5\nv_lshl_add_u32 v6, v5, 4, v6\nv_and_b32 v5, 1, v2\nv_lshl_add_u32 v6, v5, 6, v6")
        for cg in range(4): A(f"v_xor_b32 v7, {32*cg}, v6\nv_add_u32 v{XF+4+cg}, s35, v7")
        A("v_and_b32 v5, 2, v0\nv_cmp_ne_u32 s[54:55], 0, v5\nv_and_b32 v5, 4, v0\nv_cmp_ne_u32 s[56:57], 0, v5")
        masks()
        A(f"s_cmp_eq_u32 s{sWAVE}, 1\ns_cbranch_scc1 L_Cw8\ns_waitcnt vmcnt({2+preQ})\nL_Cw8:\ns_waitcnt vmcnt({10+preQ})\nL_Cw:")
        A(f"ds_write_b128 v{XF}, {v(XS,4)} offset:{L_O}\nds_write_b128 v{XF}, {v(XS+4,4)} offset:{L_O+16}")
        A(f"ds_read_b64 {v(XR,2)}, v{XF+1} offset:{L_O}")
    else:
        if jq: A(f"s_xor_b32 s{sJ}, s{sJ}, {jq}")
        A(f"s_sub_u32 s33, 2, s{sWAVE}\ns_lshr_b32 s40, s{sJ}, s33\ns_lshl_b32 s41, s40, s33\ns_sub_u32 s41, s{sJ}, s41\ns_lshl_b32 s42, s{sXC}, s33\ns_add_u32 s41, s41, s42")
        if jq: A(f"s_xor_b32 s{sJ}, s{sJ}, {jq}")
        A(f"s_movk_i32 s32, 8192\ns_cmp_eq_u32 s{sWAVE}, 1\ns_cmovk_i32 s32, 3584")
        if wpat == 1:
            A("s_add_u32 s34, s33, 4\ns_lshl_b32 s39, s32, s34\ns_mul_i32 s39, s40, s39\ns_lshl_b32 s35, s32, 3\ns_lshl_b32 s42, s41, 8\ns_add_u32 s39, s39, s42")
            A("v_lshl_add_u32 v5, v2, 3, v4\nv_lshlrev_b32 v5, 5, v5\nv_lshl_add_u32 v5, v3, 10, v5")
            A("s_add_u32 s34, s33, 5\ns_lshl_b32 s34, s40, s34\nv_lshl_add_u32 v6, v2, 4, s34\nv_lshl_add_u32 v6, v3, 10, v6")
            A("s_sub_u32 s36, s33, 1\ns_lshl_b32 s36, s36, 6\nv_add_u32 v7, s36, v6")
        else:
            A("s_add_u32 s34, s33, 2\ns_lshl_b32 s35, s32, s34\ns_mul_i32 s39, s40, s35\ns_lshl_b32 s39, s39, 2\ns_lshl_b32 s42, s41, 8\ns_add_u32 s39, s39, s42")
            A("v_lshl_add_u32 v5, v2, 3, v4\nv_lshlrev_b32 v5, 5, v5\nv_lshl_add_u32 v5, v3, 10, v5")
            A("v_lshl_add_u32 v6, s40, 2, v2\ns_add_u32 s34, s33, 3\nv_lshlrev_b32 v6, s34, v6\nv_lshl_add_u32 v6, v3, 10, v6")
            A("s_sub_u32 s36, s33, 1\ns_lshl_b32 s36, s36, 4\nv_add_u32 v7, s36, v6")
        A("v_mul_lo_u32 v8, v2, s35\nv_lshl_add_u32 v8, v1, 4, v8")
        A(f"s_mul_i32 s44, s{sXC}, s{sWAVE}\ns_cmp_eq_u32 s44, 7\ns_cbranch_scc1 L_Cnoffn")
        if coop:
            A(f"v_mov_b32 v{XF}, v5\nv_mov_b32 v{XF+1}, v6\nv_mov_b32 v{XF+2}, v7")
            A(f"s_cmp_eq_u32 s{sWAVE}, 0\ns_cbranch_scc1 L_Cwdone")
            addbase(sW1, "s39")
            for t in range(8):
                A(f"global_load_dwordx4 {v(W+4*t,4)}, v8, s[{sW1}:{sW1+1}] {nt}")
                if t != 7: addbase(sW1, "s32")
        else:
            A(f"s_cmp_eq_u32 s{sWAVE}, 1\ns_waitcnt lgkmcnt(0)")
            if not ackwait or lite or echo: stamp("first")
            pr(1)
            A(f"global_load_dwordx4 {v(XS,4)}, v5, s[{sX}:{sX+1}]\nglobal_load_dwordx4 {v(XS+4,4)}, v5, s[{sX}:{sX+1}] offset:16")
            A(f"s_cselect_b64 s[42:43], s[{sW1}:{sW1+1}], s[{sWQ}:{sWQ+1}]")
            A(f"global_load_dwordx4 {v(XR,4)}, v6, s[{sX}:{sX+1}]\nglobal_load_dwordx4 {v(XR+4,4)}, v7, s[{sX}:{sX+1}]")
            addbase(42, "s39")
            for t in range(16):
                if t == 8: A(f"s_cmp_eq_u32 s{sWAVE}, 1\ns_cbranch_scc1 L_Cwdone")
                A(f"global_load_dwordx4 {v(W+4*t,4)}, v8, s[42:43] {nt}")
                if t == 7 and wpat == 1: addbase(42, 25*8192)
                elif t != 15: addbase(42, "s32")
        A("L_Cwdone:")
        karg2()
        pr(0)
        A("s_barrier")
        stamp("issued")
        if not latetag: A(f"s_waitcnt lgkmcnt(0)\ns_load_dword s{sT}, s[{sWS}:{sWS+1}], 0")
        if prioC: A(f"s_setprio {prioC}")
        A(f"s_lshl_b32 s37, s41, 3\ns_add_u32 s37, s37, s40\ns_lshl_b32 s37, s37, 9\ns_add_u32 s37, s37, {QP}\ns_mov_b32 s38, {32*8*512}")
        A(f"s_cmp_eq_u32 s{sWAVE}, 0\ns_cbranch_scc1 L_Cpa")
        A(f"s_mul_i32 s37, s40, 7168\ns_lshl_b32 s42, s41, 9\ns_add_u32 s37, s37, s42\ns_add_u32 s37, s37, {HP}\ns_mov_b32 s38, {16*7168}")
        A("L_Cpa:")
        A("v_and_b32 v5, 1, v2\nv_lshl_add_u32 v9, v5, 4, s37\nv_lshl_add_u32 v9, v1, 5, v9\nv_lshrrev_b32 v5, 1, v2\nv_mad_u32_u24 v9, v5, s38, v9")
        if preQ: A(f"global_load_dwordx4 {v(XF,4)}, v9, s[{sWS}:{sWS+1}] sc1")
        A("L_Cmask:")
        masks()
        if not latetag:
            get_tag()
            A(f"v_mov_b32 v{vTG}, s{sT}\nv_mov_b32 v{vTG+1}, {TAGM}")
        if coop: A(f"s_cmp_eq_u32 s{sWAVE}, 1\ns_cbranch_scc1 L_Cw8\ns_waitcnt vmcnt(2)\nL_Cw8:\ns_waitcnt vmcnt(10)\nL_Cw:")
        if coop:
            A(f"ds_write_b128 v{XF}, {v(XS,4)} offset:{L_O}\nds_write_b128 v{XF}, {v(XS+4,4)} offset:{L_O+16}")
            A(f"ds_read_b128 {v(XR,4)}, v{XF+1} offset:{L_O}\nds_read_b128 {v(XR+4,4)}, v{XF+2} offset:{L_O}")
        if not coop: A(f"s_cmp_eq_u32 s{sWAVE}, 1\ns_cbranch_scc1 L_Cw8\ns_waitcnt vmcnt({16+preQ})\ns_branch L_Cw\nL_Cw8:\ns_waitcnt vmcnt({8+preQ})\nL_Cw:")
    unpack(F, XS, 8)
    A(f"v_add_f32 v5, v{F}, v{F+1}\nv_add_f32 v6, v{F+2}, v{F+3}")
    for i in range(4, 16, 2): A(f"v_add_f32 v5, v5, v{F+i}\nv_add_f32 v6, v6, v{F+i+1}")
    A("v_add_f32 v5, v5, v6")
    allred([5], "v_add_f32", [0, 1, 2, 4, 5], 6)
    A("v_mul_f32 v5, 0x3b000000, v5")
    for i in range(16): A(f"v_sub_f32 v{F+i}, v{F+i}, v5")
    A(f"v_mul_f32 v6, v{F}, v{F}\nv_mul_f32 v7, v{F+1}, v{F+1}")
    for i in range(2, 16, 2): A(f"v_fmac_f32 v6, v{F+i}, v{F+i}\nv_fmac_f32 v7, v{F+i+1}, v{F+i+1}")
    A("v_add_f32 v6, v6, v7")
    allred([6], "v_add_f32", [0, 1, 2, 4, 5], 7)
    A("v_mul_f32 v6, 0x3b000000, v6")
    bf16r(5, 5); bf16r(6, 6)
    A("v_add_f32 v6, 0x3727c5ac, v6"); bf16r(6, 6)
    A("v_sqrt_f32 v6, v6"); bf16r(6, 6)
    A("v_rcp_f32 v6, v6")
    if coop or latetag: A("s_waitcnt lgkmcnt(0)")
    if latetag and not (tr and k2top): A(f"s_load_dword s{sT}, s[{sWS}:{sWS+1}], 0")
    if tr:
        unpack(F, XR, 2)
        for i in range(4): A(f"v_sub_f32 v{F+i}, v{F+i}, v5")
        for i in range(4): bf16r(F+i, F+i)
        for i in range(4): A(f"v_mul_f32 v{F+i}, v{F+i}, v6")
        A(f"v_cvt_pk_bf16_f32 v{XR}, v{F}, v{F+1}\nv_cvt_pk_bf16_f32 v{XR+1}, v{F+2}, v{F+3}\nds_write_b64 v{XF+2}, {v(XR,2)} offset:{L_XN}")
        for k in range(4): A(f"ds_read_b128 {v(XO+4*k,4)}, v{XF+3} offset:{L_XN+64*k}")
        stamp("LNdone")
        get_tag()
        A(f"v_mov_b32 v{vTG}, s{sT}\nv_mov_b32 v{vTG+1}, {TAGM}")
        A(f"s_lshl_b32 s40, s{sWAVE}, 2\nv_mov_b32 v7, s40\nv_mov_b32 v8, 1\ns_waitcnt vmcnt({8+preQ})")
        A(f"s_cmp_eq_u32 s{sWAVE}, 1\ns_cbranch_scc0 L_Cl1\nds_write_b32 v7, v8 offset:{L_FW}\ns_waitcnt vmcnt({preQ})\ns_branch L_Cl0")
        A(f"L_Cl1:\ns_waitcnt vmcnt({preQ})\nds_write_b32 v7, v8 offset:{L_FW}")
        waitflag("L_wfW0", L_FW, 4, F, 7); waitflag("L_wfW1", L_FW+16, 4, F, 7)
        A("L_Cl0:")
        AC4 = XO + 16
        for k in range(4):
            if k == 2: A(f"s_cmp_eq_u32 s{sWAVE}, 1\ns_cbranch_scc1 L_Cm8")
            for cg in range(4):
                for h in range(2): A(f"ds_read_b64_tr_b16 {v(W+16*k+4*cg+2*h,2)}, v{XF+4+cg} offset:{4096*k+512*h}")
            for cg in range(4):
                A(f"s_waitcnt lgkmcnt({6-2*cg})")
                A(f"v_mfma_f32_16x16x32_bf16 {v(AC4+4*cg,4)}, {v(W+16*k+4*cg,4)}, {v(XO+4*k,4)}, {v(AC4+4*cg,4) if k else 0}")
        A("L_Cm8:\ns_nop 7")
        for i in range(4): A(f"v_cndmask_b32 v{AC4+i}, v{AC4+i}, v{AC4+4+i}, s[54:55]\nv_cndmask_b32 v{AC4+8+i}, v{AC4+8+i}, v{AC4+12+i}, s[54:55]")
        for i in range(4): A(f"v_cndmask_b32 v{ACC+i}, v{AC4+i}, v{AC4+8+i}, s[56:57]")
    else:
        unpack(F, XR, 8)
        for i in range(16): A(f"v_sub_f32 v{F+i}, v{F+i}, v5")
        for i in range(16): bf16r(F+i, F+i)
        for i in range(16): A(f"v_mul_f32 v{F+i}, v{F+i}, v6")
        for t in range(16):
            if t == 8: A(f"s_cmp_eq_u32 s{sWAVE}, 1\ns_cbranch_scc1 L_Cd8")
            delta(XO + 4*t, F + t, MASK, 4, 5)
        A("L_Cd8:")
        if warmLN: A(f"s_cmp_ge_u32 s{sWAVE}, 2\ns_cbranch_scc1 L_C23b")
        stamp("LNdone")
        if latetag:
            get_tag()
            A(f"v_mov_b32 v{vTG}, s{sT}\nv_mov_b32 v{vTG+1}, {TAGM}")
        if coop:
            A(f"s_lshl_b32 s40, s{sWAVE}, 2\nv_mov_b32 v7, s40\nv_mov_b32 v8, 1\ns_waitcnt vmcnt(8)")
            A(f"s_cmp_eq_u32 s{sWAVE}, 1\ns_cbranch_scc0 L_Cl1\nds_write_b32 v7, v8 offset:{L_FW}\ns_branch L_Cl0")
            A(f"L_Cl1:\ns_waitcnt vmcnt(0)\nds_write_b32 v7, v8 offset:{L_FW}")
            waitflag("L_wfW0", L_FW, 4, F, 7); waitflag("L_wfW1", L_FW+16, 4, F, 7)
            A("v_lshlrev_b32 v7, 4, v0\nv_add_u32 v7, %d, v7" % L_W)
            for t in range(16): A(f"ds_read_b128 {v(W+4*t,4)}, v7 offset:{1024*t}")
            A("L_Cl0:\ns_waitcnt vmcnt(0)")
            for t in range(16):
                if t == 8: A(f"s_cmp_eq_u32 s{sWAVE}, 1\ns_cbranch_scc1 L_Cm8")
                if t % 4 == 0: A(f"s_waitcnt lgkmcnt({12 - t})")
                A(f"v_mfma_f32_16x16x32_bf16 {v(ACC,4)}, {v(XO+4*t,4)}, {v(W+4*t,4)}, {v(ACC,4) if t else 0}")
        else:
            A(f"s_cmp_eq_u32 s{sWAVE}, 1\ns_cbranch_scc0 L_Cl0\ns_waitcnt vmcnt({preQ})\nL_Cl0:")
            for t in range(16):
                if t == 8: A(f"s_cmp_eq_u32 s{sWAVE}, 1\ns_cbranch_scc1 L_Cm8")
                if t % 4 == 0: A(f"s_waitcnt vmcnt({12 - t + preQ})")
                A(f"v_mfma_f32_16x16x32_bf16 {v(ACC,4)}, {v(XO+4*t,4)}, {v(W+4*t,4)}, {v(ACC,4) if t else 0}")
        A("L_Cm8:\ns_nop 7")
    A("v_mov_b32 v5, 0xff")
    for i in range(4): A(f"v_add_u32 v{ACC+i}, 0x80, v{ACC+i}")
    for i in range(4): A(f"v_bfi_b32 v{ACC+i}, v5, v{vTG}, v{ACC+i}")
    if tr: A("s_mov_b32 exec_lo, 0x00ff00ff\ns_mov_b32 exec_hi, 0x00ff00ff")
    store(9, ACC, 4, sWS, qst)
    if tr: A("s_mov_b64 exec, -1")
    A(f"v_mov_b32 v{B1R+2}, v9")
    stamp("pub1")
    if not trig:
        A(f"s_cmp_eq_u32 s{sWAVE}, 0\ns_cbranch_scc0 L_Cmid\nv_mov_b32 v5, 0\nv_mov_b32 v6, 1\nds_write_b32 v5, v6 offset:{L_FT}")
    A("s_branch L_Cmid")

    A(f"L_Cnoffn:\nv_mov_b32 v9, 0\nv_mov_b32 v{B1R+2}, 0")
    karg2()
    A(f"v_mov_b32 v5, 0\nv_and_b32 v6, 31, v0\nv_lshlrev_b32 v6, 2, v6\nds_write_b32 v6, v5 offset:{L_FT}")
    A("s_waitcnt lgkmcnt(0)"); pr(1); pr(0)
    A(f"s_load_dword s{sT}, s[{sWS}:{sWS+1}], 0\ns_barrier")
    wsb()
    if warmLN:
        A(f"s_cmp_eq_u32 s{sWAVE}, 2\ns_cbranch_scc1 L_Cw\nL_C23b:")
    get_tag(False)
    A(f"v_mov_b32 v{vTG}, s{sT}\nv_mov_b32 v{vTG+1}, {TAGM}")
    if coop: A(f"s_lshl_b32 s40, s{sWAVE}, 2\nv_mov_b32 v7, s40\nv_mov_b32 v8, 1")
    A(f"s_cmp_eq_u32 s{sWAVE}, 3\ns_cbranch_scc1 L_Cid")
    if coop: A("s_waitcnt vmcnt(0)")
    A("s_branch L_Cnoid\nL_Cid:")
    A(f"s_lshl_b32 s40, s{sXC}, 5\ns_add_u32 s40, s40, s{sJ}\ns_lshl_b32 s40, s40, 2\ns_add_u32 s40, s40, {IDS}")
    A(f"v_mov_b32 v5, s40\nv_mov_b32 v6, s{sID}\ns_mov_b64 exec, 1\nglobal_store_dword v5, v6, s[{sWS}:{sWS+1}] {idst}\ns_mov_b64 exec, -1")
    if eskew:
        A(f"s_cmp_eq_u32 s{sJ}, 0\ns_cbranch_scc0 L_nosk\ns_lshl_b32 s40, s{sXC}, 2\ns_add_u32 s40, s40, 0x2000\nv_mov_b32 v5, s40\nv_mov_b32 v6, s64")
        A(f"s_mov_b64 exec, 1\nglobal_store_dword v5, v6, s[{sWS}:{sWS+1}] sc1\ns_mov_b64 exec, -1\nL_nosk:")
    if tlb:
        A(f"s_lshr_b32 s40, s2, 7\ns_lshl_b32 s40, s40, 3\ns_add_u32 s40, s40, s{sXC}\ns_lshl_b32 s40, s40, 23\ns_and_b32 s41, s{sJ}, 15\ns_lshl_b32 s41, s41, 14\ns_add_u32 s40, s40, s41\ns_add_u32 s40, s40, {28672*256}")
        A("v_lshlrev_b32 v5, 18, v0\nv_add_u32 v5, s40, v5\ns_mov_b64 exec, 15")
        A(f"global_load_dword v210, v5, s[{sV}:{sV+1}] nt")
        if tlb > 1: A(f"global_load_dword v210, v5, s[{sK}:{sK+1}] nt")
        A(f"s_mov_b64 exec, 1\ns_lshl_b32 s40, s{sXC}, 3\ns_lshr_b32 s41, s{sJ}, 2\ns_add_u32 s40, s40, s41\ns_lshl_b32 s41, s40, 16\nv_mov_b32 v5, s41")
        A(f"global_load_dword v210, v5, s[{sWO}:{sWO+1}] nt\ns_min_u32 s40, s40, 55\ns_lshl_b32 s41, s40, 15\nv_mov_b32 v5, s41\nglobal_load_dword v210, v5, s[{sW2}:{sW2+1}] nt")
        A(f"v_mov_b32 v5, {SPF + 0x4c000}\nglobal_load_dword v210, v5, s[{sWS}:{sWS+1}] nt\nv_mov_b32 v5, 0")
        A(f"global_load_dword v210, v5, s[{sB1}:{sB1+1}]\nglobal_load_dword v210, v5, s[{sOUT}:{sOUT+1}] nt\ns_mov_b64 exec, -1")
    if dirty:
        A("s_lshl_b32 s40, s2, 15\ns_add_u32 s40, s40, 0x1000000\nv_lshl_add_u32 v5, v0, 4, s40")
        for k in range(dirty): A(f"global_store_dwordx4 v5, v[16:19], s[{sWS}:{sWS+1}] {dfl}\nv_add_u32 v5, 1024, v5")
    A("L_Cnoid:")
    if coop: A(f"s_waitcnt vmcnt(1)\nds_write_b32 v7, v8 offset:{L_FW}")
    masks()

    A("L_Cmid:")
    QG, QF, SC, KA, MA, KF = XO, XO + 16, XO + 32, XO + 48, XO + 52, W
    A(f"s_cmp_lt_u32 s{sXC}, 7\ns_cselect_b32 s45, 2, 0\ns_cmp_lt_u32 s{sWAVE}, s45\ns_cselect_b32 s45, 1, 0")
    A(f"s_lshr_b32 s40, s{sJ}, 4\ns_lshl_b32 s40, s40, 5\ns_lshl_b32 s41, s{sXC}, 2\ns_add_u32 s40, s40, s41\ns_add_u32 s40, s40, s{sWAVE}")
    A(f"s_lshl_b32 s40, s40, {11 if tr else 12}\ns_add_u32 s40, s40, {QP}\nv_lshl_add_u32 v{MA}, v0, 4, s40")
    if not trig: A(f"s_add_u32 s58, s{sWS}, s40\ns_addc_u32 s59, s{sWS+1}, 0")
    A(f"s_mul_i32 s40, s{sWAVE}, {L_QSTR}\nv_and_b32 v5, 31, v0\nv_lshl_add_u32 v{MA+1}, v5, 3, s40\nv_lshrrev_b32 v6, 5, v0\nv_lshl_add_u32 v{MA+1}, v6, 2, v{MA+1}")
    A(f"s_lshl_b32 s40, s{sXC}, 7\ns_add_u32 s40, s40, {IDS}\nv_lshl_add_u32 v{MA+2}, v5, 2, s40")
    A(f"v_and_b32 v5, 3, v1\nv_lshlrev_b32 v5, 10, v5\nv_lshrrev_b32 v6, 2, v1\nv_lshl_add_u32 v5, v6, 8, v5\ns_lshl_b32 s40, s{sWAVE}, 14\ns_add_u32 s40, s40, {L_K}\nv_add_u32 v5, s40, v5")
    for u in range(4):
        A(f"v_add_u32 v7, {4*u}, v2\nv_xor_b32 v7, v7, v1\nv_lshl_add_u32 v{KA+u}, v7, 4, v5")
    A(f"v_mul_u32_u24 v{MA+3}, {L_QSTR}, v6\nv_lshl_add_u32 v{MA+3}, v2, 4, v{MA+3}")
    A(f"s_lshl_b32 s40, s{sWAVE}, 2\nv_lshl_add_u32 v{MA+4}, v6, 4, s40\nv_mov_b32 v{MA+7}, s40\nv_mov_b32 v{MA+6}, 0")
    A(f"s_lshl_b32 s40, s{sWAVE}, 10\nv_lshl_add_u32 v{MA+5}, v0, 4, s40")
    A("v_and_b32 v5, 1, v0\nv_cmp_ne_u32 s[54:55], 0, v5\nv_and_b32 v5, 2, v0\nv_cmp_ne_u32 s[56:57], 0, v5")
    A(f"s_lshl_b32 s40, s{sXC}, 3\ns_lshr_b32 s41, s{sJ}, 2\ns_add_u32 s40, s40, s41\ns_lshl_b32 s40, s40, 1\ns_add_u32 s40, s40, s{sWAVE}")
    A(f"s_lshl_b32 s41, s40, 6\ns_add_u32 s41, s41, {HP}\nv_mul_u32_u24 v6, 7168, v4\nv_lshl_add_u32 v6, v2, 4, v6\nv_add_u32 v6, s41, v6")
    A(f"v_mul_u32_u24 v8, {(8 if tr else 16)*7168}, v3\nv_add_u32 v{MA+9}, v6, v8\nv_add_u32 v{MA+10}, {8*7168}, v{MA+9}")
    A(f"s_lshl_b32 s41, s40, 5\nv_lshl_add_u32 v{MA+8}, v2, 3, s41")
    A(f"s_lshl_b32 s40, s{sXC}, 5\ns_add_u32 s40, s40, s{sJ}")
    A("s_lshr_b32 s41, s40, 6\ns_lshl_b32 s41, s41, 7\ns_and_b32 s42, s40, 15\ns_lshl_b32 s42, s42, 3\ns_add_u32 s41, s41, s42")
    A("s_bfe_u32 s42, s40, 0x10004\ns_lshl_b32 s42, s42, 2\ns_add_u32 s41, s41, s42")
    A("s_bfe_u32 s42, s40, 0x10005\ns_lshl_b32 s42, s42, 9\ns_add_u32 s42, s42, s41")
    if g2:
        A(f"s_and_b32 s43, s{sWAVE}, 1\nv_lshrrev_b32 v6, 5, v0\nv_lshl_add_u32 v6, s43, 1, v6\nv_add_lshl_u32 v{FIN+2}, v6, s42, 1\nv_add_lshl_u32 v7, v6, s41, 1")
    else: A(f"v_add_lshl_u32 v{FIN+2}, v2, s42, 1\nv_add_lshl_u32 v7, v2, s41, 1")
    A(f"global_load_ushort v{FIN}, v{FIN+2}, s[{sX}:{sX+1}] {xfl}\nglobal_load_ushort v{FIN+1}, v7, s[{sB2}:{sB2+1}] {xfl}")
    W2R, WOR, G = W, W + 16, W + 32
    A(f"s_and_b32 s40, s{sJ}, 3\ns_lshl_b32 s40, s40, 8\ns_lshr_b32 s41, s{sJ}, 2")
    A(f"s_lshl_b32 s42, s{sXC}, 3\ns_add_u32 s47, s42, s41")
    A(f"s_lshl_b32 s42, s47, 1\ns_add_u32 s42, s42, s{sWAVE}\ns_lshl_b32 s42, s42, 14\ns_add_u32 s42, s42, s40")
    addbase(sW2, "s42")
    A(f"s_lshl_b32 s42, s47, 2\ns_add_u32 s42, s42, s{sWAVE}\ns_lshl_b32 s43, s42, 14\ns_add_u32 s43, s43, s40")
    addbase(sWO, "s43")
    A(f"v_lshlrev_b32 v{FIN+5}, 12, v2\nv_lshl_add_u32 v{FIN+5}, v1, 4, v{FIN+5}")
    A(f"s_lshl_b32 s42, s42, 11\ns_add_u32 s42, s42, {OP}\nv_lshl_add_u32 v{XR}, v0, 4, s42")
    A(f"s_lshr_b32 s42, s47, 1\ns_lshl_b32 s42, s42, 9\ns_add_u32 s42, s42, {ML}\nv_lshl_add_u32 v{XR+2}, v1, 4, s42")
    A(f"s_lshl_b32 s42, s{sXC}, 16\ns_bfe_u32 s43, s{sJ}, 0x30002\ns_lshl_b32 s43, s43, 8\ns_add_u32 s42, s42, s43\ns_lshl_b32 s43, s{sWAVE}, 6\ns_add_u32 s42, s42, s43\ns_add_u32 s42, s42, {OP}")
    A(f"v_lshl_add_u32 v7, v3, 4, v4\nv_lshlrev_b32 v7, 11, v7\nv_lshl_add_u32 v7, v2, 4, v7\nv_add_u32 v{FIN+3}, s42, v7\nv_add_u32 v{FIN+4}, {8*2048}, v{FIN+3}")
    if merge:
        A(f"s_and_b32 s40, s{sJ}, 3\ns_lshl_b32 s40, s40, 6\ns_add_u32 s40, s40, s47\ns_mul_i32 s40, s40, {mstr}")
        A(f"s_lshl_b32 s41, s{sWAVE}, 10\ns_add_u32 s40, s40, s41\ns_add_u32 s40, s40, {SPS}\nv_lshl_add_u32 v{XR+3}, v0, 4, s40")
        A(f"s_lshl_b32 s40, s{sXC}, 5\ns_add_u32 s40, s40, s{sJ}\ns_lshr_b32 s41, s40, 6\ns_mul_i32 s41, s41, {64*mstr}\ns_and_b32 s40, s40, 63\ns_lshl_b32 s40, s40, 5")
        A(f"s_add_u32 s40, s40, s41\ns_add_u32 s40, s40, {SPS}\nv_mul_u32_u24 v{XR+4}, {mstr}, v0\nv_add_u32 v{XR+4}, s40, v{XR+4}\nv_add_u32 v{XR+5}, 16, v{XR+4}")
        if g2: A(f"s_lshl_b32 s40, s{sWAVE}, 4\nv_add_u32 v{XR+4}, s40, v{XR+4}")
    else:
        A(f"s_and_b32 s40, s{sJ}, 3\ns_lshl_b32 s40, s40, 6\ns_add_u32 s40, s40, s47\ns_mul_i32 s40, s40, {SPSTR}")
        A(f"s_cmp_eq_u32 s{sWAVE}, 0\ns_cselect_b32 s41, 0, {SPF-SPS}\ns_add_u32 s40, s40, s41\ns_add_u32 s40, s40, {SPS}\nv_lshl_add_u32 v{XR+3}, v0, 4, s40")
        A(f"s_lshl_b32 s40, s{sXC}, 5\ns_add_u32 s40, s40, s{sJ}\ns_lshr_b32 s41, s40, 6\ns_mul_i32 s41, s41, {64*SPSTR}\ns_and_b32 s40, s40, 63\ns_lshl_b32 s40, s40, 4")
        A(f"s_add_u32 s40, s40, s41\ns_add_u32 s40, s40, {SPS}\nv_mul_u32_u24 v{XR+4}, {SPSTR}, v0\nv_add_u32 v{XR+4}, s40, v{XR+4}\nv_add_u32 v{XR+5}, {SPF-SPS}, v{XR+4}")
    if flag2:
        A(f"s_and_b32 s40, s{sJ}, 3\ns_lshl_b32 s40, s40, 6\ns_add_u32 s40, s40, s47\ns_lshl_b32 s40, s40, 7\ns_add_u32 s40, s40, {FLG}\nv_mov_b32 v{FIN+6}, s40")
        if fall: A(f"s_mov_b32 s40, {FLG}\nv_lshl_add_u32 v{FIN+7}, v0, 7, s40")
        else: A(f"s_lshr_b32 s40, s{sXC}, 1\ns_lshl_b32 s40, s40, 13\ns_add_u32 s40, s40, {FLG}\nv_lshl_add_u32 v{FIN+7}, v0, 7, s40")
        A(f"s_cmp_eq_u32 s{sWAVE}, 3\ns_cselect_b32 s62, 1, 0\ns_mov_b32 s63, 0")
    A(f"s_lshl_b32 s40, s{sWAVE}, 10\nv_lshl_add_u32 v{XR+6}, v0, 4, s40\nv_lshlrev_b32 v{XR+7}, 4, v0")
    if g2: A(f"s_lshl_b32 s40, s{sWAVE}, 9\ns_add_u32 s40, s40, {L_RED}\nv_lshl_add_u32 v{XR+7}, v0, 3, s40")
    elif merge: A(f"s_lshl_b32 s40, s{sWAVE}, 9\nv_lshrrev_b32 v7, 1, v0\nv_lshl_add_u32 v{XR+7}, v7, 4, s40\nv_and_b32 v7, 1, v0\nv_lshl_add_u32 v{XR+7}, v7, 12, v{XR+7}")
    if trig: waitflag("L_wfT", L_FT, 4, F, MA+6)
    else:
        waitflag("L_wfT", L_FT, 1, F, MA+6)
        A(f"s_mov_b32 s{sCNT}, 0\nL_sq:")
        for k in range(8): A(f"s_load_dword s{32+k}, s[58:59], {512*k} glc")
        A(f"s_add_u32 s{sCNT}, s{sCNT}, 1\ns_waitcnt lgkmcnt(0)")
        A(f"s_xor_b32 s40, s32, s{sT8}")
        for k in range(1, 8): A(f"s_xor_b32 s41, s{32+k}, s{sT8}\ns_or_b32 s40, s40, s41")
        A(f"s_and_b32 s40, s40, 0xff\ns_cbranch_scc0 L_sq_x\ns_cmp_lt_u32 s{sCNT}, 64\ns_cbranch_scc1 L_sq\nL_sq_x:")
        if diag: A(f"s_mov_b32 s99, s{sCNT}")
    stamp("FT")
    if smtest:
        A(f"s_lshl_b32 s41, s2, 9\ns_add_u32 s41, s41, {QP}\ns_add_u32 s42, s{sWS}, s41\ns_addc_u32 s43, s{sWS+1}, 0")
        A("s_waitcnt lgkmcnt(0)\ns_memtime s[58:59]\ns_waitcnt lgkmcnt(0)\ns_load_dword s41, s[42:43], 0 glc\ns_waitcnt lgkmcnt(0)\ns_memtime s[100:101]\ns_waitcnt lgkmcnt(0)\ns_sub_u32 s99, s100, s58")
        A("s_memtime s[58:59]\ns_waitcnt lgkmcnt(0)\ns_load_dword s41, s[42:43], 0 glc\ns_waitcnt lgkmcnt(0)\ns_memtime s[100:101]\ns_waitcnt lgkmcnt(0)\ns_sub_u32 s41, s100, s58\ns_lshl_b32 s41, s41, 16\ns_or_b32 s99, s99, s41")
    QLD = [(QG + 4*k, 4, MA, 1024*k) for k in range(2 if hack == 9 or tr else 4)]
    HLD = [(XS, 4, MA+9, 0), (XS+4, 4, MA+10, 0)][:1 if tr else 2]
    A(f"global_load_dword v{MA+11}, v{MA+2}, s[{sWS}:{sWS+1}] {qld}")
    if not noq: issue(QLD, sWS, qld)
    def hissue(lab):
        A(f"s_cmp_eq_u32 s45, 0\ns_cbranch_scc1 {lab}")
        if not noh: issue(HLD, sWS, qld)
        A(f"global_load_dwordx2 {v(B1R,2)}, v{MA+8}, s[{sB1}:{sB1+1}] {xfl}")
        if hack == 2:
            for i in range(4): A(f"global_load_dwordx4 {v(XF+4*i,4)}, v{FIN+5}, s[{sW2}:{sW2+1}] offset:{1024*i} {nt}")
    def kreads():
        waitflag("L_wfK", L_FK, 1, F, MA+7)
        stamp("FK")
        for T in range(4):
            for u in range(4): A(f"ds_read_b128 {v(KF+16*T+4*u,4)}, v{KA+u} offset:{4096*T}")
    if kfirst: kreads()
    if q2:
        assert kfirst and tr and hlate
        issue([(d + 8, n, a, off) for (d, n, a, off) in QLD], sWS, qld)
        A("s_waitcnt vmcnt(2)")
    elif hlate: A("s_waitcnt vmcnt(0)")
    else:
        hissue("L_Cnoh")
        A("s_waitcnt vmcnt(3)\ns_branch L_Cnoh1\nL_Cnoh:\ns_waitcnt vmcnt(0)\nL_Cnoh1:")
    A(f"v_cmp_ne_u32 vcc, s{sID}, v{MA+11}\ns_mov_b32 s53, 1\ns_cbranch_vccz L_Cnob\ns_mov_b32 s53, 3")
    A(f"s_cmp_eq_u32 s{sWAVE}, 0\ns_cselect_b32 s40, 1, s45\ns_cmp_eq_u32 s40, 0\ns_cbranch_scc1 L_Cnob")
    if tr: A("s_mov_b32 exec_lo, 0x00ff00ff\ns_mov_b32 exec_hi, 0x00ff00ff")
    store(B1R+2, ACC, 4, sWSB, "sc1")
    if tr: A("s_mov_b64 exec, -1")
    A("L_Cnob:")
    if not noq: poll("L_pollQ", QLD, 7, QLD, first=63, narrow=True, spare=QG+8 if q2 else None)
    stamp("qgath")
    if tr:
        for i in range(4): A(f"v_add_f32 v{QG+i}, v{QG+i}, v{QG+4+i}")
    else:
        for i in range(4): A(f"v_add_f32 v{QG+i}, v{QG+i}, v{QG+4+i}\nv_add_f32 v{QG+8+i}, v{QG+8+i}, v{QG+12+i}")
        for i in range(4): A(f"v_add_f32 v{QG+i}, v{QG+i}, v{QG+8+i}")
    for i in range(2): A(f"v_permlane32_swap_b32 v{QG+i}, v{QG+2+i}")
    for i in range(2): A(f"v_add_f32 v{QG+i}, v{QG+i}, v{QG+2+i}")
    A(f"v_cvt_pk_bf16_f32 v5, v{QG}, v{QG+1}\nds_write_b32 v{MA+1}, v5 offset:{L_Q}\nv_mov_b32 v6, s53")
    A(f"s_waitcnt lgkmcnt(0)\nds_write_b32 v{MA+7}, v6 offset:{L_FQ}")
    for i in range(4): A(f"v_mov_b32 v{ACC+i}, 0")
    if hlate: hissue("L_Cnoh"); A("L_Cnoh:")
    if pretouch and ptpos == 2: issue([(208, 1, XR+2, 0), (208, 1, XR+2, 256), (208, 1, XR, 0), (208, 1, XR, 1024)], sWS, ptfl)
    if pretouch and ptpos == 3:
        A(f"s_and_b32 s40, s{sJ}, 3\ns_lshl_b32 s40, s40, 9\nv_lshlrev_b32 v5, 4, v0\nv_sub_u32 v5, v{XR}, v5\nv_lshl_add_u32 v5, v0, 7, v5\nv_add_u32 v5, s40, v5")
        A(f"s_mov_b64 exec, 15\nglobal_load_dword v208, v5, s[{sWS}:{sWS+1}] {ptfl}")
        A(f"v_lshlrev_b32 v5, 4, v1\nv_sub_u32 v5, v{XR+2}, v5\nv_lshl_add_u32 v5, v0, 7, v5\nglobal_load_dword v208, v5, s[{sWS}:{sWS+1}] {ptfl}\ns_mov_b64 exec, -1")
    if not kfirst: kreads()
    waitflag("L_wfq", L_FQ, 4, F, MA+6)
    for u in range(4): A(f"ds_read_b128 {v(QF+4*u,4)}, v{MA+3} offset:{L_Q+64*u}")
    for u in range(4):
        A(f"s_waitcnt lgkmcnt({3-u})")
        for T in range(4):
            A(f"v_mfma_f32_16x16x32_bf16 {v(SC+4*T,4)}, {v(KF+16*T+4*u,4)}, {v(QF+4*u,4)}, {v(SC+4*T,4) if u else 0}")
    E = F
    for T in range(4):
        A(f"v_cndmask_b32 v{SC+4*T}, v{SC+4*T}, v{SC+4*T+1}, s[54:55]\nv_cndmask_b32 v{SC+4*T+2}, v{SC+4*T+2}, v{SC+4*T+3}, s[54:55]")
    for T in range(4): A(f"v_cndmask_b32 v{E+T}, v{SC+4*T}, v{SC+4*T+2}, s[56:57]")
    for i in range(4): bf16r(E+i, E+i)
    for i in range(4): A(f"v_mul_f32 v{E+i}, {SCALE}, v{E+i}")
    for i in range(4): bf16r(E+i, E+i)
    A(f"v_max3_f32 v8, v{E}, v{E+1}, v{E+2}\nv_max_f32 v8, v8, v{E+3}")
    allred([8], "v_max_f32", [0, 1, 4, 5], 9)
    A(f"ds_write_b32 v{MA+4}, v8 offset:{L_MX}")
    A(f"v_mul_f32 v9, {LOG2E ^ 0x80000000}, v8\ns_mov_b32 s40, {LOG2E}")
    for i in range(4): A(f"v_fma_f32 v{E+i}, v{E+i}, s40, v9")
    for i in range(4): A(f"v_exp_f32 v{E+i}, v{E+i}")
    for i in range(4): A(f"v_cvt_pk_bf16_f32 v{SC+i}, v{E+i}, v{E+i}")
    A(f"ds_write_b128 v{MA+5}, {v(SC,4)} offset:{L_P}")
    A(f"v_add_f32 v8, v{E}, v{E+1}\nv_add_f32 v9, v{E+2}, v{E+3}\nv_add_f32 v8, v8, v9")
    allred([8], "v_add_f32", [0, 1, 4, 5], 9)
    A(f"ds_write_b32 v{MA+4}, v8 offset:{L_LW}")
    A(f"s_waitcnt lgkmcnt(0)\nds_write_b32 v{MA+7}, v6 offset:{L_FP}")
    stamp("pready")
    A(f"v_lshlrev_b32 v{FIN}, 16, v{FIN}\nv_lshlrev_b32 v{FIN+1}, 16, v{FIN+1}")
    waitflag("L_wfV", L_FV, 4, F, MA+6)
    stamp("FV")
    OLD = [(G+8, 4, XR+2, 0), (G+12, 4, XR+2, 256), (G, 4, XR, 0), (G+4, 4, XR, 1024)]
    if spre:
        A(f"s_cmp_ge_u32 s{sWAVE}, 2\ns_cbranch_scc1 L_nospre\nglobal_load_dwordx4 {v(F,4)}, v{XR+3}, s[{sWS}:{sWS+1}] {spre.replace('plain', '')}\nL_nospre:")
    if pretouch and ptpos == 0: issue(OLD, sWS, ptfl)
    def ldwo():
        for i in range(0 if hack == 3 else 2 if hack == 5 else 4): A(f"global_load_dwordx4 {v(WOR+4*i,4)}, v{FIN+5}, s[{sWO}:{sWO+1}] offset:{1024*i} {nt}")
    if wofirst: ldwo()
    A("s_cmp_eq_u32 s45, 0\ns_cbranch_scc1 L_Cnow2")
    if hack != 2:
        for i in range(4): A(f"global_load_dwordx4 {v(W2R+4*i,4)}, v{FIN+5}, s[{sW2}:{sW2+1}] offset:{1024*i} {nt}")
    A("L_Cnow2:")
    if not wofirst: ldwo()
    if pretouch and ptpos == 1: issue(OLD, sWS, ptfl)
    A("s_cmp_eq_u32 s45, 0\ns_cbranch_scc1 L_Cnoh2")
    if not noh: poll("L_pollH", HLD, 7, HLD, first=(4 if hack in (2, 3) else 6 if hack == 5 else 8) + 4*bool(pretouch and ptpos < 2), narrow=True)
    if not tr:
        for i in range(4): A(f"v_add_f32 v{XS+i}, v{XS+i}, v{XS+4+i}")
    allred([XS, XS+1, XS+2, XS+3], "v_add_f32", [0, 1, 2], 7)
    for i in range(4): bf16r(XS+i, XS+i)
    unpack(XS+4, B1R, 2)
    for i in range(4): A(f"v_add_f32 v{XS+i}, v{XS+i}, v{XS+4+i}")
    for i in range(4): bf16r(XS+i, XS+i)
    for i in range(4): A(f"v_max_f32 v{XS+i}, 0, v{XS+i}")
    for i in range(4): A(f"v_mul_f32 v{XS+i}, v{XS+i}, v{XS+i}")
    for i in range(4): delta(XF + 4*i, XS + i, MASK, 4, 5)

    A("L_Cnoh2:")
    A("s_waitcnt lgkmcnt(0)\ns_barrier")
    stamp("barC")
    def raise2():
        A(f"s_cmp_eq_u32 s62, 0\ns_cbranch_scc1 L_nf2\ns_mov_b64 exec, 1\nglobal_store_dword v{FIN+6}, v{vTG}, s[{sWS}:{sWS+1}] sc1\ns_mov_b64 exec, -1\nL_nf2:")
    if flag2 == 3: raise2()
    A("s_cmp_eq_u32 s45, 0\ns_cbranch_scc1 L_Cnoffn2")
    A(f"s_waitcnt vmcnt({(0 if wofirst or hack == 3 else 2 if hack == 5 else 4) + 4*(ptpos == 1)})")
    for i in range(4): A(f"v_mfma_f32_16x16x32_bf16 {v(ACC,4)}, {v(XF+4*i,4)}, {v(W2R+4*i,4)}, {v(ACC,4)}")
    A("L_Cnoffn2:")
    if owait is not None: A(f"s_waitcnt vmcnt({0 if ptpos == 1 else owait + (flag2 == 3)})")
    if flag2 == 2: raise2()
    stamp("wohere")
    if pipeO: pollpipe("L_pollO", [(XR, 0), (XR, 1024), (XR+2, 0), (XR+2, 256)], [XO + 16*r for r in range(pipeO)], G, 7, stagO)
    else:
        issue(OLD[2:] if hack == 6 else OLD, sWS, ofl)
        A(f"ds_write_b128 v{XR+6}, {v(ACC,4)} offset:{L_RED+4096}")
        poll("L_pollO", OLD[2:] if hack == 6 else OLD, 7, [(G+8, 4, XR+2, 0), (G+12, 4, XR+2, 256), (G, 4, FIN+3, 0), (G+4, 4, FIN+4, 0)], strip=not opt, first=0)
    if flag2 == 1: raise2()
    stamp("gathO")
    if pipeO: A(f"ds_write_b128 v{XR+6}, {v(ACC,4)} offset:{L_RED+4096}")
    m0, l0, m1, l1 = G+8, G+9, G+12, G+13
    if opt:
        X = (lambda r: "") if pipeO else (lambda r: f"v_xor_b32 v{r}, s{sT}, v{r}")
        D = lambda op, r, b: f"{op}_dpp v{r}, v{r}, v{r} {DPP[b]} row_mask:0xf bank_mask:0xf"
        if hack == 6: A("\n".join(X(G+i) for i in range(8)))
        else: A("\n".join([X(m0), X(m1), f"v_max_f32 v5, v{m0}, v{m1}", X(G), X(G+1), D("v_max_f32", 5, 0), X(G+2), X(G+3), D("v_max_f32", 5, 1),
                     X(G+4), X(G+5), D("v_max_f32", 5, 2), X(G+6), f"v_sub_f32 v{m0}, v{m0}, v5", f"v_sub_f32 v{m1}, v{m1}, v5",
                     f"v_mul_f32 v6, {LOG2E}, v{m0}", f"v_mul_f32 v8, {LOG2E}, v{m1}", "v_exp_f32 v6, v6", "v_exp_f32 v8, v8", X(G+7), X(l0), X(l1)]))
        if hack != 6: A(f"v_mul_f32 v{l0}, v{l0}, v6")
        for i in (0, 2): A(f"v_pk_mul_f32 {v(G+i,2)}, {v(G+i,2)}, v[6:7] op_sel_hi:[1,0]")
        if hack != 6: A(f"v_fmac_f32 v{l0}, v{l1}, v8")
        for i in (0, 2): A(f"v_pk_fma_f32 {v(G+i,2)}, {v(G+4+i,2)}, v[8:9], {v(G+i,2)} op_sel_hi:[1,0,1]")
        for b in (0, 1, 2):
            if hack != 6: A(D("v_add_f32", l0, b))
            if b == 2:
                A(D("v_add_f32", G, b))
                if hack != 6: A(f"v_rcp_f32 v6, v{l0}")
            for r in range(G + (b == 2), G + 4): A(D("v_add_f32", r, b))
        for i in (0, 2):
            if hack != 6: A(f"v_pk_mul_f32 {v(G+i,2)}, {v(G+i,2)}, v[6:7] op_sel_hi:[1,0]")
        M = lambda i: A(f"v_mfma_f32_16x16x32_bf16 {v(F,4)}, {v(XO+4*i,4)}, {v(WOR+4*i,4)}, {v(F,4) if i else 0}")
        if pipeO: XO = XO + 32
        delta(XO, G, MASK, 4, 5); delta(XO+4, G+1, MASK, 4, 8)
        M(0); delta(XO+8, G+2, MASK, 4, 5); M(1); delta(XO+12, G+3, MASK, 4, 8); M(2); M(3)
    else:
        A(f"v_max_f32 v5, v{m0}, v{m1}")
        allred([5], "v_max_f32", [0, 1, 2], 7)
        A(f"v_sub_f32 v{m0}, v{m0}, v5\nv_sub_f32 v{m1}, v{m1}, v5\nv_mul_f32 v{m0}, {LOG2E}, v{m0}\nv_mul_f32 v{m1}, {LOG2E}, v{m1}")
        A(f"v_exp_f32 v{m0}, v{m0}\nv_exp_f32 v{m1}, v{m1}")
        A(f"v_mul_f32 v{l0}, v{l0}, v{m0}")
        for i in range(4): A(f"v_mul_f32 v{G+i}, v{G+i}, v{m0}")
        A(f"v_fmac_f32 v{l0}, v{l1}, v{m1}")
        for i in range(4): A(f"v_fmac_f32 v{G+i}, v{G+4+i}, v{m1}")
        allred([l0, G, G+1, G+2, G+3], "v_add_f32", [0, 1, 2], 7)
        A(f"v_rcp_f32 v{l0}, v{l0}")
        for i in range(4): A(f"v_mul_f32 v{G+i}, v{G+i}, v{l0}")
        for i in range(4): delta(XO + 4*i, G + i, MASK, 4, 5 + (i & 1))
        for i in range(4): A(f"v_mfma_f32_16x16x32_bf16 {v(F,4)}, {v(XO+4*i,4)}, {v(WOR+4*i,4)}, {v(F,4) if i else 0}")
    if hack == 8:
        A(f"s_cmp_ge_u32 s{sWAVE}, 2\ns_cbranch_scc1 L_Cdone\ns_nop 5")
        for i in range(4): A(f"v_mov_b32 v{G+i}, v{F+i}")
        A("s_branch L_h8")
    A(f"ds_write_b128 v{XR+6}, {v(F,4)} offset:{L_RED}")
    if g2 and not diag and not lite: A(f"s_cmp_ge_u32 s{sWAVE}, 2\ns_cbranch_scc1 L_Cbar")
    A("s_waitcnt lgkmcnt(0)\ns_barrier")
    if g2 and not diag and not lite: pass
    elif ackwait: A(f"s_cmp_ge_u32 s{sWAVE}, 2\ns_cbranch_scc1 L_Cdone")
    else: A(f"s_cmp_eq_u32 s{sWAVE}, 2\ns_cbranch_scc1 L_Cfin\ns_cmp_eq_u32 s{sWAVE}, 3\ns_cbranch_scc1 L_Cdone")
    if not merge: A(f"s_cmp_eq_u32 s{sWAVE}, 1\ns_cbranch_scc1 {'L_Cdone' if hack in (1, 2) else 'L_Cpubf'}")
    if g2:
        A(f"ds_read2st64_b64 {v(G+4,4)}, v{XR+7} offset0:0 offset1:2\nds_read2st64_b64 {v(G+8,4)}, v{XR+7} offset0:4 offset1:6\nds_read2st64_b64 {v(G+12,4)}, v{XR+7} offset0:8 offset1:10")
        A(f"s_waitcnt lgkmcnt(2)\nv_pk_add_f32 {v(G,2)}, {v(G+4,2)}, {v(G+6,2)}\ns_waitcnt lgkmcnt(1)\nv_pk_add_f32 {v(G+8,2)}, {v(G+8,2)}, {v(G+10,2)}")
        A(f"v_pk_add_f32 {v(G,2)}, {v(G,2)}, {v(G+8,2)}\ns_waitcnt lgkmcnt(0)\nv_pk_add_f32 {v(G+2,2)}, {v(G+12,2)}, {v(G+14,2)}")
    elif opt:
        PA = lambda a, b: A(f"v_pk_add_f32 {v(a,2)}, {v(a,2)}, {v(b,2)}\nv_pk_add_f32 {v(a+2,2)}, {v(a+2,2)}, {v(b+2,2)}")
        for i in range(4): A(f"ds_read_b128 {v(G+4*i,4)}, v{XR+7} offset:{L_RED+1024*i}")
        A("s_waitcnt lgkmcnt(2)"); PA(G, G+4)
        A("s_waitcnt lgkmcnt(1)"); PA(G, G+8)
        if not merge:
            A("s_branch L_Cpub\nL_Cpubf:")
            A(f"ds_read_b128 {v(G,4)}, v{XR+7} offset:{L_RED+4096}\nds_read_b128 {v(G+12,4)}, v{XR+7} offset:{L_RED+4096+1024}")
        A("L_Cpub:\ns_waitcnt lgkmcnt(0)"); PA(G, G+12)
    else:
        for i in range(4): A(f"ds_read_b128 {v(G+4*i,4)}, v{XR+7} offset:{L_RED+1024*i}")
        A("s_waitcnt lgkmcnt(0)")
        for i in range(4): A(f"v_add_f32 v{G+i}, v{G+i}, v{G+8+i}\nv_add_f32 v{G+4+i}, v{G+4+i}, v{G+12+i}")
        A("s_branch L_Cpub")
        A("L_Cpubf:")
        for i in range(2): A(f"ds_read_b128 {v(G+4*i,4)}, v{XR+7} offset:{L_RED+4096+1024*i}")
        A("s_waitcnt lgkmcnt(0)")
        A("L_Cpub:")
        for i in range(4): A(f"v_add_f32 v{G+i}, v{G+i}, v{G+4+i}")
    if hack == 8: A("L_h8:")
    tag(G, 4, vTG)
    store(XR+3, G, 4, sWS, sst)
    stamp("pubS")
    if g2: A("s_waitcnt vmcnt(0)")
    elif ackwait: A(f"s_cmp_eq_u32 s{sWAVE}, 1\ns_cbranch_scc1 L_Cdone\ns_waitcnt vmcnt(0)")
    else: A("s_branch L_Cdone")
    A("L_Cfin:")
    if fsleep: A(f"s_sleep {fsleep}")
    if flag2:
        nf = 4 if fall else 1
        for k in range(1, nf): A(f"v_add_u32 v{F+8+k}, {8192*k}, v{FIN+7}")
        A(f"s_mov_b32 s{sCNT}, 0\nL_pf:")
        for k in range(nf): A(f"global_load_dword v{F+k}, v{F+8+k if k else FIN+7}, s[{sWS}:{sWS+1}] sc1")
        A(f"s_add_u32 s{sCNT}, s{sCNT}, 1\ns_waitcnt vmcnt(0)")
        if fall: A(f"v_bitop3_b32 v5, v{F}, v{F+1}, s{sT} bitop3:0x7e\nv_bitop3_b32 v5, v5, v{F+2}, s{sT} bitop3:0xf6\nv_bitop3_b32 v5, v5, v{F+3}, s{sT} bitop3:0xf6\nv_cmp_ne_u32 vcc, 0, v5")
        else: A(f"v_cmp_ne_u32 vcc, s{sT}, v{F}")
        A(f"s_and_b64 exec, exec, vcc\ns_cbranch_scc0 L_pf_x\ns_cmp_lt_u32 s{sCNT}, 4096\ns_cbranch_scc1 L_pf\nL_pf_x:\ns_mov_b64 exec, -1")
        if fdelay: A(f"s_sleep {fdelay}")
    if pipeS: pollpipe("L_pollS", [(XR+4, 0), (XR+5, 0)][:1 if g2 else 2], [160 + 8*r for r in range(pipeS)], G, 7, stagS)
    else: poll("L_pollS", [(G, 4, XR+4, 0), (G+4, 4, XR+5, 0)][:1 if hack in (1, 2) else 2], 7)
    stamp("gathS")
    if hack == 7: A("s_branch L_h7")
    D2 = lambda r, b: f"v_add_f32_dpp v{r}, v{r}, v{r} {DPP[b]} row_mask:0xf bank_mask:0xf"
    if g2:
        f_, s_ = G + 2, G
        for a in (f_, s_): A(f"v_permlane32_swap_b32 v{a}, v{a+1}")
        for a in (f_, s_): A(f"v_add_f32 v{a}, v{a}, v{a+1}")
        for a in (f_, s_): A(f"v_mov_b32 v{a+1}, v{a}")
        for a in (f_, s_): A(f"v_permlane16_swap_b32 v{a}, v{a+1}")
        for a in (f_, s_): A(f"v_add_f32 v{a}, v{a}, v{a+1}")
    else:
        f_, s_ = G + 4, G
        for a in (f_, f_+1, s_, s_+1): A(f"v_permlane32_swap_b32 v{a}, v{a+2}")
        for a in (f_, s_): A(f"v_pk_add_f32 {v(a,2)}, {v(a,2)}, {v(a+2,2)}")
        for a in (f_, s_): A(f"v_permlane16_swap_b32 v{a}, v{a+1}")
        for a in (f_, s_): A(f"v_add_f32 v{a}, v{a}, v{a+1}")
    for b in range(4): A(D2(f_, b) + ("\n" + D2(s_, b) if b < 3 else ""))
    bf16r(6, f_)
    A(f"v_add_f32 v6, v6, v{FIN+1}"); bf16r(6, 6)
    A(f"v_mul_f32 v7, {LOG2E ^ 0x80000000}, v6\nv_exp_f32 v7, v7\n{D2(s_, 3)}\nv_add_f32 v7, 1.0, v7\nv_rcp_f32 v7, v7")
    bf16r(5, s_)
    A("v_mul_f32 v6, v6, v7"); bf16r(6, 6)
    A("v_mul_f32 v5, v5, v6"); bf16r(5, 5)
    A(f"v_add_f32 v5, v5, v{FIN}\nv_cvt_pk_bf16_f32 v5, v5, v5")
    if hack == 7: A("L_h7:")
    if hops: A("s_branch L_hop0\nL_hopback:")
    if echo:
        r = 64 + 2*CNAMES.index(lx)
        A(f"s_cmp_eq_u32 s2, 0\ns_cbranch_scc0 L_noecho\ns_memrealtime s[58:59]\ns_waitcnt lgkmcnt(0)\ns_sub_u32 s40, s{r}, s64")
        if eskew:
            A(f"s_load_dwordx8 s[32:39], s[{sWS}:{sWS+1}], 0x2000 glc\ns_waitcnt lgkmcnt(0)")
            if eskew == 1:
                A("s_mov_b32 s40, s32\ns_mov_b32 s41, s32")
                for k in range(1, 8): A(f"s_max_u32 s40, s40, s{32+k}\ns_min_u32 s41, s41, s{32+k}")
                A("s_sub_u32 s40, s40, s41")
            elif eskew == 2:
                A("s_add_u32 s40, s36, s37\ns_add_u32 s40, s40, s38\ns_add_u32 s40, s40, s39\ns_sub_u32 s40, s40, s32\ns_sub_u32 s40, s40, s33\ns_sub_u32 s40, s40, s34\ns_sub_u32 s40, s40, s35\ns_add_u32 s40, s40, 600\ns_lshr_b32 s40, s40, 2")
            else:
                A("s_mov_b32 s41, s32")
                for k in range(1, 8): A(f"s_min_u32 s41, s41, s{32+k}")
                A(f"s_sub_u32 s40, s{32+eskew-10}, s41")
        A(f"s_mul_i32 s40, s40, {echo}\ns_min_u32 s40, s40, 20000")
        A("L_echo:\ns_memrealtime s[60:61]\ns_waitcnt lgkmcnt(0)\ns_sub_u32 s41, s60, s58\ns_cmp_lt_u32 s41, s40\ns_cbranch_scc1 L_echo\nL_noecho:")
    if chain:
        A("s_cmp_eq_u32 s2, 0\ns_cbranch_scc0 L_nochain\nv_mov_b32 v6, 0")
        for k in range(chain):
            A(f"global_load_dword v7, v6, s[{sK if k % 2 else sV}:{(sK if k % 2 else sV)+1}] nt\ns_waitcnt vmcnt(0)\nv_add_u32 v6, {(k % 2) << 23}, v6")
        A("L_nochain:")
    A("s_mov_b32 exec_lo, 1\ns_mov_b32 exec_hi, 1" if g2 else "s_mov_b32 exec_lo, 0x00010001\ns_mov_b32 exec_hi, 0x00010001")
    A(f"global_store_short v{FIN+2}, v5, s[{sOUT}:{sOUT+1}] {outfl}")
    A(f"s_or_b32 s40, s2, s{sWAVE}\ns_cbranch_scc1 L_Cdone")
    A(f"s_mov_b64 exec, 1\nv_mov_b32 v5, 0\nglobal_store_dword v5, v{vTG}, s[{sWS}:{sWS+1}]")
    A("L_Cdone:")
    stamp("end")
    dump()
    A("s_endpgm")
    if g2 and not diag and not lite: A("L_Cbar:\ns_waitcnt lgkmcnt(0)\ns_barrier\ns_endpgm")

    cpart = A.L; A.L = []
    role[0] = "S"
    KO, PM = 4, 12
    VV, KF, XP, A1, A2 = 32, 96, 112, 144, 148
    EA = 152
    sW = 33
    if jk: A(f"s_xor_b32 s{sJ}, s{sJ}, {jk}")
    A(f"s_lshr_b32 s34, s2, 7\ns_lshl_b32 s34, s34, 3\ns_add_u32 s34, s34, s{sXC}\ns_lshl_b32 s34, s34, 23\ns_and_b32 s35, s{sJ}, 15")
    TSH = 12 if pat >= 20 else 18
    if pat >= 20:
        A({20: f"s_and_b32 s46, s{sJ}, 3", 21: f"s_add_u32 s46, s{sJ}, s{sWAVE}\ns_and_b32 s46, s46, 3", 22: f"s_lshr_b32 s46, s{sJ}, 2\ns_xor_b32 s46, s46, s{sJ}\ns_and_b32 s46, s46, 3"}[pat])
        A(f"s_lshl_b32 s35, s35, 2\ns_add_u32 s35, s35, s{sWAVE}\ns_lshl_b32 s35, s35, 2\ns_add_u32 s35, s35, s46\ns_lshl_b32 s35, s35, 12\ns_add_u32 s34, s34, s35\ns_add_u32 s34, s34, {28672*256 - 16*4096}")
    elif pat >= 3:
        R = {3: "s_and_b32 s46, s2, 3", 4: f"s_and_b32 s46, s{sJ}, 3", 5: f"s_lshr_b32 s46, s{sJ}, 2\ns_add_u32 s46, s46, s2\ns_and_b32 s46, s46, 3",
             6: f"s_bfe_u32 s46, s{sJ}, 0x20002", 7: f"s_and_b32 s46, s{sWAVE}, 3", 8: f"s_add_u32 s46, s2, s{sJ}\ns_and_b32 s46, s46, 3",
             9: "s_bfe_u32 s46, s2, 0x20001", 10: f"s_lshr_b32 s46, s2, 6\ns_and_b32 s46, s46, 2\ns_xor_b32 s46, s46, s2\ns_and_b32 s46, s46, 3",
             11: f"s_add_u32 s46, s2, s{sWAVE}\ns_and_b32 s46, s46, 3",
             12: f"s_add_u32 s46, s2, s{sJ}\ns_add_u32 s46, s46, s{sWAVE}\ns_and_b32 s46, s46, 3",
             13: f"s_lshr_b32 s46, s{sJ}, 2\ns_add_u32 s46, s46, s{sJ}\ns_add_u32 s46, s46, s2\ns_and_b32 s46, s46, 3",
             14: f"s_lshr_b32 s46, s2, 2\ns_add_u32 s46, s46, s2\ns_and_b32 s46, s46, 3",
             15: f"s_lshr_b32 s46, s{sJ}, 4\ns_add_u32 s46, s46, s{sJ}\ns_add_u32 s46, s46, s2\ns_and_b32 s46, s46, 3"}[pat]
        A(R + "\ns_lshl_b32 s36, s46, 18\ns_add_u32 s34, s34, s36")
    if pat >= 20: pass
    elif pat != 1:
        A(f"s_lshl_b32 s35, s35, 2\ns_add_u32 s35, s35, s{sWAVE}\ns_lshl_b32 s35, s35, 12\ns_add_u32 s34, s34, s35\ns_add_u32 s34, s34, {28672*256 - 4*4096}")
    else:
        A(f"s_lshl_b32 s36, s{sWAVE}, 4\ns_add_u32 s35, s35, s36\ns_lshl_b32 s35, s35, 12\ns_add_u32 s34, s34, s35\ns_add_u32 s34, s34, {28672*256 - 64*4096}")
    A(f"v_lshlrev_b32 v14, 2, v2\nv_xor_b32 v14, v14, v1\nv_lshlrev_b32 v14, 4, v14\nv_lshl_add_u32 v{KO}, v2, 8, v14")
    for i in range(1, 4): A(f"v_xor_b32 v{KO+i}, {16*i}, v{KO}")
    A(f"s_lshl_b32 s36, s{sWAVE}, 14\ns_sub_u32 s36, s36, {4*16384 - L_K}")
    if not coop: A("s_waitcnt lgkmcnt(0)")
    pr(1)
    addbase(sK, "s34")
    def setup2():
        karg2()
        addbase(sV, "s34")
        A(f"s_sub_u32 s{sW}, s{sWAVE}, 4\nv_lshlrev_b32 v3, 4, v0\ns_lshl_b32 s37, s{sW}, 2\nv_mov_b32 v14, s37\nv_mov_b32 v15, 1")
        if boost: A(f"s_xor_b32 s38, s{sJ}, {jq ^ 1}\ns_and_b32 s38, s38, 3\ns_cselect_b64 vcc, 0, -1")
        pr(0)
        A("s_barrier")
    if not head: setup2()
    stamp("first")
    later = Asm()
    B = later
    B(f"v_and_b32 v26, 3, v0\nv_lshlrev_b32 v26, 4, v26\nv_mov_b32 v{PM}, 0xffff\nv_mov_b32 v{PM+1}, 0\nv_lshlrev_b64 v[{PM}:{PM+1}], v26, v[{PM}:{PM+1}]")
    B(f"s_lshl_b32 s38, s{sW}, 10\nv_lshl_add_u32 v{EA+1}, v0, 4, s38")
    B(f"s_lshl_b32 s38, s{sW}, 11\nv_lshl_add_u32 v{EA+2}, v0, 4, s38")
    B(f"v_and_b32 v24, 1, v0\nv_lshlrev_b32 v24, 10, v24\nv_bfe_u32 v25, v0, 1, 4\nv_lshl_add_u32 v24, v25, 4, v24\ns_lshl_b32 s38, s{sW}, 8\nv_add_u32 v{EA+3}, s38, v24")
    B(f"s_lshl_b32 s38, s{sXC}, 2\ns_add_u32 s38, s38, s{sW}\ns_lshr_b32 s39, s{sJ}, 4\ns_and_b32 s40, s{sJ}, 7\ns_bfe_u32 s41, s{sJ}, 0x10003")
    B(f"s_lshl_b32 s39, s39, 7\ns_lshl_b32 s40, s40, 4\ns_add_u32 s39, s39, s40")
    B(f"s_lshl_b32 s40, s38, 14\ns_lshl_b32 s42, s41, 10\ns_add_u32 s40, s40, s42\ns_add_u32 s40, s40, s39\ns_add_u32 s40, s40, {OP}")
    B(f"v_bfe_u32 v24, v0, 2, 3\nv_lshlrev_b32 v24, 11, v24\nv_and_b32 v25, 3, v0\nv_lshl_add_u32 v24, v25, 8, v24\nv_add_u32 v{EA+4}, s40, v24")
    B(f"s_lshl_b32 s38, s38, 9\ns_lshl_b32 s41, s41, 8\ns_add_u32 s38, s38, s41\ns_add_u32 s38, s38, s39\ns_add_u32 s38, s38, {ML}\nv_mov_b32 v25, s38")
    B(f"s_mov_b32 s42, -1\ns_mov_b32 s43, 0\ns_lshl_b32 s38, s{sXC}, 5\ns_add_u32 s38, s38, s{sJ}\nv_cndmask_b32 v{EA+4}, v25, v{EA+4}, s[42:43]")
    B(f"s_lshl_b32 s38, s38, 2\ns_add_u32 s38, s38, s{sW}\ns_lshl_b32 s38, s38, 9\ns_add_u32 s38, s38, {OP}\nv_lshl_add_u32 v{EA+9}, v0, 4, s38\nv_cndmask_b32 v{EA+9}, v25, v{EA+9}, s[42:43]")
    B(f"s_lshl_b32 s38, s{sW}, 4\nv_mov_b32 v{EA+6}, s38\nv_mov_b32 v{EA+8}, {TAGM}")
    chunks = [later.L[i::1] for i in (0,)][0]
    per = -(-len(chunks) // 8)
    def bump(r, T):
        if pat >= 3:
            A(f"s_xor_b32 s45, s46, {T+1}\ns_xor_b32 s44, s46, {T}\ns_sub_i32 s44, s45, s44\ns_lshl_b32 s44, s44, {TSH}\ns_ashr_i32 s45, s44, 31")
            return A(f"s_add_u32 s{r}, s{r}, s44\ns_addc_u32 s{r+1}, s{r+1}, s45")
        if pat != 2: return addbase(r, 262144)
        A(f"s_and_b32 s44, s{sJ}, 3\ns_xor_b32 s45, s44, {T+1}\ns_xor_b32 s44, s44, {T}\ns_sub_u32 s44, s45, s44\ns_add_u32 s44, s44, 16\ns_lshl_b32 s44, s44, 14")
        addbase(r, "s44")
    cnt = [0]
    def after():
        cnt[0] += 1
        n = cnt[0]
        if n == head: setup2()
        if n == 13: A(f"s_waitcnt lgkmcnt(0)\ns_load_dword s{sT}, s[{sWS}:{sWS+1}], 0")
        if n == trig: A(f"ds_write_b32 v14, v15 offset:{L_FT}")
        if 4 <= n < 12:
            for line in chunks[(n-4)*per:(n-3)*per]: A(line)
        p = paceK if n <= 16 else (paceV if n - 16 <= paceVUntil else 0)
        if dip and trig - 2 <= n < trig - 2 + dip: p -= dipw
        if p and n + (2 if coop and n < p else 0) >= p and n < 32:
            if n <= boost: A(f"s_waitcnt vmcnt({p-1+bw})\ns_cbranch_vccnz L_b{n}\ns_waitcnt vmcnt({p-1})\nL_b{n}:")
            else: A(f"s_waitcnt vmcnt({p-1})")
        if coop and n == paceK - 1:
            assert n >= head
            A(f"ds_write_b32 v14, v15 offset:{L_FW+16}")
        if n == 16: stamp("Kiss")
    for T in range(4):
        A(f"s_mov_b32 m0, s36\ns_add_u32 s36, s36, 4096")
        for i in range(4):
            A(f"global_load_lds_dwordx4 v{KO+i}, s[{sK}:{sK+1}] offset:{1024*i} {nt}"); after()
        if T < 3: bump(sK, T)
    for n in range(16):
        A(f"global_load_dwordx4 {v(VV+4*n,4)}, v3, s[{sV}:{sV+1}] offset:{1024*(n&3)} {nt}"); after()
        if n == kpos: A(f"s_waitcnt vmcnt({n+1})\nds_write_b32 v14, v15 offset:{L_FK}")
        if n == fvpos and not woTrig: A(f"ds_write_b32 v14, v15 offset:{L_FV}")
        if n & 3 == 3 and n < 15: bump(sV, n >> 2)
    stamp("issued")
    get_tag()
    A(f"v_mov_b32 v{EA+7}, s{sT}\ns_mov_b32 s36, {LOG2E}")
    waitflag("L_wfP", L_FP, 1, 4, 14)
    A(f"s_mov_b32 s40, s52\nds_read_b128 v[4:7], v{EA+1} offset:{L_P}\ns_waitcnt lgkmcnt(0)")
    for T in range(4):
        for i in range(4):
            for j in range(2):
                A(f"v_and_b32_dpp v{XP+2*(4*T+i)+j}, v{4+T}, v{PM+j} quad_perm:[{i},{i},{i},{i}] row_mask:0xf bank_mask:0xf")
    stamp("pready")
    for n in range(16):
        if opt and n == wpos:
            A("v_mov_b32 v8, 0")
            waitflag("L_wfP4", L_FP, 4, 4, 8)
            A(f"ds_read_b128 v[16:19], v{EA+6} offset:{L_MX}\nds_read_b128 v[20:23], v{EA+6} offset:{L_LW}\ns_waitcnt lgkmcnt(1)")
            A(f"v_max3_f32 v24, v16, v17, v18\nv_max_f32 v24, v24, v19\nv_mul_f32 v25, {LOG2E ^ 0x80000000}, v24")
            for i in range(4): A(f"v_fma_f32 v{16+i}, v{16+i}, s36, v25")
            for i in range(4): A(f"v_exp_f32 v{8+2*i}, v{16+i}")
            A("s_waitcnt lgkmcnt(0)\nv_mul_f32 v25, v20, v8\nv_fmac_f32 v25, v21, v10\nv_fmac_f32 v25, v22, v12\nv_fmac_f32 v25, v23, v14")
        A(f"s_waitcnt vmcnt({15-n})")
        if woTrig == n + 1: A(f"ds_write_b32 v14, v15 offset:{L_FV}")
        A(f"v_mfma_f32_16x16x16_bf16 {v(A1,4)}, {v(XP+2*n,2)}, {v(VV+4*n,2)}, {v(A1,4) if n else 0}")
        A(f"v_mfma_f32_16x16x16_bf16 {v(A2,4)}, {v(XP+2*n,2)}, {v(VV+4*n+2,2)}, {v(A2,4) if n else 0}")
    stamp("PVdone")
    if hack == 4:
        for i in range(2): A(f"v_cndmask_b32 v{A1+i}, v{24+i}, v{A1+i}, s[42:43]")
        tag(A1, 4, EA+7)
        A("s_mov_b32 exec_hi, 1"); store(EA+4, A1, 4, sWS); A("s_barrier\ns_endpgm")
    A(f"ds_write_b128 v{EA+2}, {v(A1,4)} offset:{L_O}\nds_write_b128 v{EA+2}, {v(A2,4)} offset:{L_O+1024}")
    A("s_waitcnt lgkmcnt(0)\ns_barrier")
    stamp("barC")
    if opt:
        for i in range(4): A(f"ds_read_b128 {v(KF+4*i,4)}, v{EA+3} offset:{L_O+2048*i}")
        A("s_waitcnt lgkmcnt(3)")
        for i in (0, 2): A(f"v_pk_mul_f32 {v(KF+i,2)}, {v(KF+i,2)}, v[8:9] op_sel_hi:[1,0]")
        for k in range(1, 4):
            A(f"s_waitcnt lgkmcnt({3-k})")
            for i in (0, 2): A(f"v_pk_fma_f32 {v(KF+i,2)}, {v(KF+4*k+i,2)}, {v(8+2*k,2)}, {v(KF+i,2)} op_sel_hi:[1,0,1]")
    else:
        A(f"ds_read_b128 v[16:19], v{EA+6} offset:{L_MX}\nds_read_b128 v[20:23], v{EA+6} offset:{L_LW}")
        for i in range(4): A(f"ds_read_b128 {v(KF+4*i,4)}, v{EA+3} offset:{L_O+2048*i}")
        A("s_waitcnt lgkmcnt(5)")
        A(f"v_max3_f32 v24, v16, v17, v18\nv_max_f32 v24, v24, v19\nv_mul_f32 v25, {LOG2E ^ 0x80000000}, v24")
        for i in range(4): A(f"v_fma_f32 v{16+i}, v{16+i}, s36, v25")
        for i in range(4): A(f"v_exp_f32 v{16+i}, v{16+i}")
        A("s_waitcnt lgkmcnt(3)")
        A("v_mul_f32 v25, v20, v16")
        for i in range(4): A(f"v_mul_f32 v{KF+i}, v{KF+i}, v16")
        A("v_fmac_f32 v25, v21, v17\nv_fmac_f32 v25, v22, v18\nv_fmac_f32 v25, v23, v19")
        for k in range(1, 4):
            A(f"s_waitcnt lgkmcnt({3-k})")
            for i in range(4): A(f"v_fmac_f32 v{KF+i}, v{KF+4*k+i}, v{16+k}")
    for i in range(2): A(f"v_cndmask_b32 v{KF+i}, v{24+i}, v{KF+i}, s[42:43]")
    tag(KF, 4, EA+7)
    A("s_mov_b32 exec_hi, 1")
    store(EA+4, KF, 4, sWS, ost)
    stamp("pub")
    A("s_cmp_eq_u32 s40, 1\ns_cbranch_scc1 L_Snob")
    store(EA+9, KF, 4, sWSB, "sc1")
    A("L_Snob:")
    dump()
    A("L_end:\ns_endpgm")
    A.L = entry + A.L + cpart
    if cpf: A("; never executed: keeps the code-prefetch loads at the entry inside this section\n.fill 416, 4, 0xbf810000")
    for h in range(hops):
        A(f".p2align 10\nL_hop{h}:\ns_branch {'L_hop%d' % (h+1) if h + 1 < hops else 'L_hopback'}")

    head = (hdr or "") + DOC + f"; @launch grid=(256,1,1) block=(512,1,1) lds={LDS_BYTES + (16384 if coop else 0) + (8192 if tr else 0)}\n"
    head += f'.amdgcn_target "amdgcn-amd-amdhsa--gfx950"\n.text\n.globl {K}\n.p2align 8\n.type {K},@function\n'
    tail = f""".section .rodata,"a"
.p2align 6
.amdhsa_kernel {K}
  .amdhsa_next_free_vgpr 216
  .amdhsa_next_free_sgpr 102
  .amdhsa_accum_offset 216
  .amdhsa_group_segment_fixed_size 0
  .amdhsa_kernarg_size 104
  .amdhsa_user_sgpr_count 2
  .amdhsa_user_sgpr_kernarg_segment_ptr 1
  .amdhsa_system_sgpr_workgroup_id_x 1
  .amdhsa_float_denorm_mode_32 3
.end_amdhsa_kernel
"""
    return head + A.finish() + tail

def header():
    ref = open(f"cdna_kernels/{NAME}.s.ref").read().split("\n")
    return "\n".join(l for l in ref if l.startswith(";") and "@launch" not in l and not l.startswith("; Override") and not l.startswith("; grid=")) + "\n"

if __name__ == "__main__":
    out = sys.argv[1] if len(sys.argv) > 1 else f"cdna_kernels/{NAME}.s"
    open(out, "w").write(gen(hdr=header()))
```
